```python
import torch

def _softmax(x, axis=-1):
    return torch.softmax(x, dim=axis)

def _gelu(x):
    return torch.nn.functional.gelu(x, approximate='tanh')

def _silu(x):
    return torch.nn.functional.silu(x)

def _sigmoid(x):
    return torch.sigmoid(x)

def _layernorm(x, axis=-1, eps=1e-05):
    m = x.mean(dim=axis, keepdim=True)
    v = x.var(dim=axis, keepdim=True, unbiased=False)
    return (x - m) / torch.sqrt(v + eps)

def _scatter_add(tgt, idx, src, axis=0):
    return tgt.clone().index_add_(axis, idx, src)

def _segment_sum(src, seg, n):
    out = torch.zeros((n,) + src.shape[1:], dtype=src.dtype)
    return out.index_add_(0, seg, src)

def _pad(x, pw):
    flat = tuple((v for pair in reversed(pw) for v in pair))
    return torch.nn.functional.pad(x, flat)
kernel_name = 'parallel_sum__memory_aug_recurrent_mem_tr__glu_gated_swiglu__prompt'

def setup_inputs():

    _w = lambda a: (lambda t: t.to(torch.bfloat16) if t.is_floating_point() else t)(torch.as_tensor(a))

    def _A_setup():
        B, S, Dm = (1, 2048, 1024)
        H, Dh = (32, 128)
        M, seg = (8, 32)
        seg = min(seg, S)
        S = S // seg * seg
        return {'x': _w((lambda *s: torch.randn(*s, dtype=torch.bfloat16) * 0.05)(B, S, Dm)), 'mem0': _w((lambda *s: torch.randn(*s, dtype=torch.bfloat16) * 0.2)(B, M, Dm)), 'Wq': _w((lambda *s: torch.randn(*s, dtype=torch.bfloat16) * 1.6)(Dm, H, Dh) * Dm ** (-0.5)), 'Wk': _w((lambda *s: torch.randn(*s, dtype=torch.bfloat16) * 1.6)(Dm, H, Dh) * Dm ** (-0.5)), 'Wv': _w((lambda *s: torch.randn(*s, dtype=torch.bfloat16) * 0.2)(Dm, H, Dh) * Dm ** (-0.5)), 'Wo': _w((lambda *s: torch.randn(*s, dtype=torch.bfloat16) * 0.2)(H, Dh, Dm) * (H * Dh) ** (-0.5)), 'seg_len': seg}
    _A_in = _A_setup()

    def _B_setup():
        B, S, D, F = (1, 2048, 1024, 3584)
        return {'x': _w((lambda *s: torch.randn(*s, dtype=torch.bfloat16) * 0.05)(B, S, D)), 'w1': _w((lambda *s: torch.randn(*s, dtype=torch.bfloat16) * 0.2)(D, F) * (2.0 / D) ** 0.5), 'w3': _w((lambda *s: torch.randn(*s, dtype=torch.bfloat16) * 0.2)(D, F) * (2.0 / D) ** 0.5), 'w2': _w((lambda *s: torch.randn(*s, dtype=torch.bfloat16) * 0.2)(F, D) * (2.0 / F) ** 0.5)}
    _B_in = _B_setup()
    return {'A_x': _A_in['x'], 'A_mem0': _A_in['mem0'], 'A_Wq': _A_in['Wq'], 'A_Wk': _A_in['Wk'], 'A_Wv': _A_in['Wv'], 'A_Wo': _A_in['Wo'], 'A_seg_len': _A_in['seg_len'], 'B_x': _B_in['x'], 'B_w1': _B_in['w1'], 'B_w3': _B_in['w3'], 'B_w2': _B_in['w2']}

def reference(A_x, A_mem0, A_Wq, A_Wk, A_Wv, A_Wo, A_seg_len, B_x, B_w1, B_w3, B_w2):

    def _A_ref(x, mem0, Wq, Wk, Wv, Wo, seg_len):
        B, S, Dm = x.shape
        H, Dh = (Wq.shape[1], Wq.shape[2])
        M = mem0.shape[1]
        scale = Dh ** (-0.5)
        n_seg = S // seg_len
        L = M + seg_len
        idx = torch.arange(L)
        mask = (idx[:, None] < M) | (idx[:, None] >= idx[None, :])
        mem = mem0
        outs = []
        for s in range(n_seg):
            xs = x[:, s * seg_len:(s + 1) * seg_len, :].clone()
            h = torch.concatenate([mem, xs], axis=1)
            q = torch.einsum('btd,dhe->bhte', h, Wq)
            k = torch.einsum('btd,dhe->bhte', h, Wk)
            v = torch.einsum('btd,dhe->bhte', h, Wv)
            scores = torch.einsum('bhqe,bhke->bhqk', q, k) * scale
            scores = torch.where(mask[None, None], scores, -1000000000.0)
            p = _softmax(scores, axis=-1)
            o = torch.einsum('bhqk,bhke->bhqe', p, v)
            o = torch.einsum('bhte,hed->btd', o, Wo)
            mem = o[:, :M, :].clone()
            outs.append(o[:, M:, :])
        return torch.concatenate(outs, axis=1)

    def _B_ref(x, w1, w3, w2):
        gate = torch.einsum('bsd,df->bsf', x, w1)
        up = torch.einsum('bsd,df->bsf', x, w3)
        h = _silu(gate) * up
        out = torch.einsum('bsf,fd->bsd', h, w2)
        return out
    x = A_x
    xn = _layernorm(x, axis=-1)
    return x + _A_ref(xn, A_mem0, A_Wq, A_Wk, A_Wv, A_Wo, A_seg_len) + _B_ref(xn, B_w1, B_w3, B_w2)
```

```python
import sys
from common import *
from k_ln import gen_ln
from k_bulk import *
NAME = 'parallel_sum__memory_aug_recurrent_mem_tr__glu_gated_swiglu__prompt'
TL = 32

def is_chain(wg): return (wg & 7) in XG
BULK = [w for w in range(256) if not is_chain(w)]

def T(ty, a=0, b=0, nj4=0, mode=0, k0=0, nk=1, p=0, urgent=0):
    return dict(t=ty, a=a, b=b, nj4=nj4, mode=mode, k0=k0, nk=nk, p=p, urgent=urgent)

def finalize(lists):
    tab = []
    for wg in range(256):
        l = lists.get(wg, [])
        assert len(l) < TL - 1
        row = []
        for k, t in enumerate(l):
            pref = 0
            if k > 0:
                p = l[k - 1]
                if p['t'] != T_FIN and t['t'] in (T_QK, T_VV, T_FU) and p['nj4'] == t['nj4'] and not p['urgent']:
                    pref = 1
            row.append(desc(t['t'], t['a'], t['b'], t['nj4'], pref, t['mode'], t['k0'], t['nk'], t['p']))
        row += [0] * (TL - len(row))
        tab += row
    return tab

def build(modes, chain_gen=None):
    e = E()
    hdr = open('cdna_kernels/' + NAME + '.s.ref').read().split('\n')
    for l in hdr:
        if l.startswith('; Override'): break
        e.raw(l)
    e.raw('; @launch kernel=ln_kernel grid=(256,1,1) block=(256,1,1) lds=2048')
    for nm, _, _ in modes:
        e.raw(f'; @launch kernel={nm} grid=(256,1,1) block=(256,1,1) lds=163840')
    e.raw('.amdgcn_target "amdgcn-amd-amdhsa--gfx950"\n.text')
    gen_ln(e)
    for k, (nm, _, ch) in enumerate(modes):
        e.raw(f'.globl {nm}\n.p2align 8\n.type {nm},@function\n{nm}:')
        e('s_getpc_b64 s[38:39]')
        e.lab(f'PC_{k}')
        e(f's_add_u32 s38, s38, TABLE_{k}-PC_{k}')
        e('s_addc_u32 s39, s39, 0')
        e(f's_mov_b32 s34, {ch}')
        e('s_branch L_entry')
    e.lab('L_entry')
    e('s_cmp_ge_u32 s2, 256')
    e('s_cbranch_scc1 L_exit')
    load_ptrs(e)
    e(f's_mul_i32 s3, s2, {TL*4}')
    e('s_add_u32 s38, s38, s3'); e('s_addc_u32 s39, s39, 0')
    e('s_load_dword s31, s[38:39], 0')
    e('v_lshrrev_b32 v18, 6, v0')
    e('s_nop 0')
    e('v_readfirstlane_b32 s27, v18')
    e('s_lshr_b32 s28, s27, 1'); e('s_and_b32 s29, s27, 1')
    e('s_waitcnt lgkmcnt(0)')
    srd(e, 8, P_WS, WS_SIZE)
    if chain_gen:
        e('s_cmp_eq_u32 s34, 0'); e('s_cbranch_scc1 L_bulk')
        e('s_and_b32 s3, s2, 7')
        e('s_lshr_b32 s34, s2, 3')
        e('s_mov_b32 s33, 0')
        e(f's_cmp_eq_u32 s3, {XG[0]}'); e('s_cbranch_scc1 L_chain')
        e('s_mov_b32 s33, 1')
        e(f's_cmp_lg_u32 s3, {XG[1]}'); e('s_cbranch_scc1 L_bulk')
        e.lab('L_chain')
        e('s_cmp_lt_u32 s34, 16'); e('s_cbranch_scc1 L_chainP')
        e('s_branch L_chainV')
    e.lab('L_bulk')
    bulk_init(e)
    e('s_branch L_sched')
    gen_sched(e)
    e.lab('L_abort')
    e.lab('L_exit')
    e('s_endpgm')
    gen_gemm(e, 8)
    gen_gemm(e, 4)
    gen_fin(e)
    if chain_gen: chain_gen(e)
    for k, (nm, lists, _) in enumerate(modes):
        e.raw('.p2align 6')
        e.raw(f'.type TABLE_{k},@object')
        e.lab(f'TABLE_{k}')
        tab = finalize(lists)
        for i in range(0, len(tab), 16):
            e.raw('.long ' + ','.join(hex(x) for x in tab[i:i+16]))
        e.raw(f'.size TABLE_{k}, {len(tab)*4}')
    e.raw('.section .rodata,"a"')
    e.raw(kd('ln_kernel', 112, 32, 112))
    for nm, _, _ in modes: e.raw(kd(nm, 512, 102, 256))
    return e.text()

def rr_assign(tasks, wgs):
    lists = {}
    for i, t in enumerate(tasks): lists.setdefault(wgs[i % len(wgs)], []).append(t)
    return lists
```

```python
MB = 1 << 20
KB = 1 << 10
WS_XN  = 0
WS_QKV = 4 * MB
WS_H   = 52 * MB
WS_O   = 66 * MB
WS_STEP = 82 * MB
STEP_SZ = 192 * KB
ST_PR = 0
ST_PL = 32 * KB
ST_OM = 64 * KB
ST_VM = 128 * KB
WS_CNT = 95 * MB
WS_Y   = 96 * MB
WS_DBG = 224 * MB
WS_SIZE = 256 * MB
SENT = 0xFFBFFFBF
C_KV  = 0
C_FU  = 16
C_Y   = 32
C_O   = 48
C_XCC = 64
NCNT = 72
XG = (0, 1)

class E:
    def __init__(s): s.L = []; s.n = 0
    def __call__(s, t):
        for x in t.split('\n'): s.L.append('  ' + x.strip())
    def many(s, l):
        for x in l: s(x)
    def lab(s, t): s.L.append(t + ':')
    def raw(s, t): s.L.append(t)
    def uniq(s, p='L'):
        s.n += 1; return f'{p}_{s.n}'
    def text(s): return '\n'.join(s.L) + '\n'

def kd(name, vgpr, sgpr, accum):
    return f'''.p2align 6
.amdhsa_kernel {name}
  .amdhsa_next_free_vgpr {vgpr}
  .amdhsa_next_free_sgpr {sgpr}
  .amdhsa_accum_offset {accum}
  .amdhsa_group_segment_fixed_size 0
  .amdhsa_kernarg_size 112
  .amdhsa_user_sgpr_count 2
  .amdhsa_user_sgpr_kernarg_segment_ptr 1
  .amdhsa_system_sgpr_workgroup_id_x 1
.end_amdhsa_kernel
'''
def srd(e, d, lo, size):
    e(f's_mov_b32 s{d}, s{lo}'); e(f's_mov_b32 s{d+1}, s{lo+1}')
    e(f's_mov_b32 s{d+2}, {hex(size)}'); e(f's_mov_b32 s{d+3}, 0x20000')
```

```python
from common import *
T_END, T_QK, T_VV, T_FU, T_FD, T_WO, T_FIN = 0, 1, 2, 3, 4, 5, 6
def desc(t, a=0, b=0, nj4=0, pref=0, mode=0, k0=0, nk=1, p=0):
    return t | nj4 << 3 | pref << 4 | mode << 5 | a << 8 | b << 12 | k0 << 18 | (nk - 1) << 22 | p << 26
F_A, F_B, F_K0, F_NK, F_P = 0x40008, 0x6000c, 0x40012, 0x40016, 0x5001a
P_X, P_WQ, P_WK, P_WV, P_WO, P_W1, P_W3, P_W2, P_OUT, P_DBG, P_WS = 56, 60, 62, 64, 66, 72, 74, 76, 78, 80, 82
S = 4
RINGM = 0x1ffff
SPIN_MAX = 1 << 20

def acc(NJ, i, j):
    t = i * NJ + j
    return ('v', 32 + 4 * t) if t < 56 else ('a', (t - 56) * 4)
def rr(r, n=4): return f'{r[0]}[{r[1]}:{r[1]+n-1}]'
def wfrag(half, i): return ('a', 32 + half * 16 + i * 4)
def xfrag(NJ, st, j): return ('a', 64 + st * 32 + j * 4)

def load_ptrs(e):
    e('s_load_dwordx4 s[56:59], s[0:1], 0')
    e('s_load_dwordx8 s[60:67], s[0:1], 16')
    e('s_load_dwordx8 s[72:79], s[0:1], 64')
    e('s_load_dwordx4 s[80:83], s[0:1], 96')

def wait_counter(e, offs_sgpr, target, tag):
    L = e.uniq('W' + tag)
    e('s_mov_b32 s4, 0')
    e.lab(L)
    e(f'buffer_load_dword v18, off, s[8:11], {offs_sgpr} sc1')
    e('s_add_u32 s4, s4, 1')
    e(f's_cmp_gt_u32 s4, {SPIN_MAX}')
    e('s_cbranch_scc1 L_abort')
    e('s_waitcnt vmcnt(0)')
    e('v_readfirstlane_b32 s3, v18')
    e(f's_cmp_ge_u32 s3, {target}')
    e(f's_cbranch_scc1 {L}_ok')
    e('s_sleep 8')
    e(f's_branch {L}')
    e.lab(L + '_ok')

def signal(e):
    L = e.uniq('SIG')
    e('s_cmp_lg_u32 s27, 0')
    e(f's_cbranch_scc1 {L}')
    e('v_mov_b32 v18, s37')
    e('s_mov_b64 exec, 1')
    e('buffer_atomic_add v18, off, s[8:11], s35 sc1')
    e('s_cmp_eq_u32 s36, 0')
    e(f's_cbranch_scc1 {L}_1')
    e('buffer_atomic_add v18, off, s[8:11], s36 sc1')
    e.lab(L + '_1')
    e('s_mov_b64 exec, -1')
    e.lab(L)
    e('s_mov_b32 s35, 0')

def bulk_init(e):
    e('v_and_b32 v18, 63, v0')
    e('v_lshlrev_b32 v0, 4, v18')
    e('v_lshrrev_b32 v19, 2, v18')
    e('v_and_b32 v20, 7, v19')
    e('v_lshlrev_b32 v19, 8, v19')
    e('v_and_b32 v21, 3, v18')
    e('v_lshl_add_u32 v19, v21, 3, v19')
    e('v_add_u32 v19, 16384, v19')
    e('s_lshl_b32 s3, s29, 2')
    e('v_xor_b32 v20, s3, v20')
    for n in range(4):
        e(f'v_xor_b32 v21, {n}, v20')
        e(f'v_lshl_add_u32 v{2+n}, v21, 5, v19')
    e('v_lshrrev_b32 v19, 4, v18')
    e('s_lshl_b32 s3, s29, 4')
    e('v_add_u32 v16, s3, v19')
    e('v_bfe_u32 v20, v18, 1, 3')
    e('v_xor_b32 v20, v20, v19')
    e('v_and_b32 v21, 1, v18')
    e('v_lshlrev_b32 v21, 4, v21')
    e('v_lshl_add_u32 v17, v20, 5, v21')
    e('s_lshl_b32 s42, s27, 12')
    e('s_add_u32 s42, s42, 16384')
    e('s_mov_b32 s16, s8'); e('s_mov_b32 s17, s9'); e('s_mov_b32 s18, s10'); e('s_mov_b32 s19, 0x20000')
    e('s_mov_b32 s12, s8'); e('s_mov_b32 s13, s9'); e('s_mov_b32 s14, 0'); e('s_mov_b32 s15, 0x20000')
    e('s_mov_b32 s35, 0')

def w_voffsets(e, rs, vmode):
    e(f'v_mul_u32_u24 v18, {rs}, v16')
    e('v_xor_b32 v20, 0x80, v17')
    if vmode:
        e('v_and_b32 v19, 0x80, v17'); e('v_add_u32 v19, v19, v17')
        e('v_add_u32 v12, v18, v19')
        e('v_and_b32 v19, 0x80, v20'); e('v_add_u32 v20, v19, v20')
    else:
        e('v_add_u32 v12, v18, v17')
    d = 4 * rs - 1024
    e('v_add_u32 v13, v18, v20')
    e(f'v_add_u32 v13, {d}, v13')
    e(f'v_add_u32 v14, {2*d}, v12')
    e(f'v_add_u32 v15, {2*d}, v13')

def setup_load(e, dreg, tag):
    L = 'SL' + tag
    e(f's_bfe_u32 s4, {dreg}, {F_A}')
    e(f's_bfe_u32 s5, {dreg}, {F_B}')
    e('s_lshl_b32 s20, s4, 13')
    e('s_mov_b32 s18, s10')
    e('s_mov_b32 s40, 32')
    e(f's_and_b32 s3, {dreg}, 7')
    e(f's_cmp_eq_u32 s3, {T_VV}'); e(f's_cbranch_scc1 {L}_v')
    e(f's_cmp_eq_u32 s3, {T_FU}'); e(f's_cbranch_scc1 {L}_fu')
    e(f's_cmp_eq_u32 s3, {T_FD}'); e(f's_cbranch_scc1 {L}_fd')
    e(f's_cmp_eq_u32 s3, {T_WO}'); e(f's_cbranch_scc1 {L}_wo')
    e('s_cmp_eq_u32 s28, 0')
    e(f's_cselect_b32 s12, s{P_WQ}, s{P_WK}'); e(f's_cselect_b32 s13, s{P_WQ+1}, s{P_WK+1}')
    e(f's_mov_b32 s14, {8*MB}'); e(f's_mov_b32 s22, {32*8192}')
    e('s_lshl_b32 s21, s5, 8')
    w_voffsets(e, 8192, 0)
    e(f's_branch {L}_done')
    e.lab(L + '_v')
    e(f's_mov_b32 s12, s{P_WV}'); e(f's_mov_b32 s13, s{P_WV+1}')
    e(f's_mov_b32 s14, {8*MB}'); e(f's_mov_b32 s22, {32*8192}')
    e('s_lshl_b32 s21, s5, 9'); e('s_lshl_b32 s3, s28, 8'); e('s_add_u32 s21, s21, s3')
    w_voffsets(e, 8192, 0)
    e(f's_branch {L}_done')
    e.lab(L + '_fu')
    e('s_cmp_eq_u32 s28, 0')
    e(f's_cselect_b32 s12, s{P_W1}, s{P_W3}'); e(f's_cselect_b32 s13, s{P_W1+1}, s{P_W3+1}')
    e(f's_mov_b32 s14, {7*MB}'); e(f's_mov_b32 s22, {32*7168}')
    e('s_lshl_b32 s21, s5, 8')
    w_voffsets(e, 7168, 0)
    e(f's_branch {L}_done')
    e.lab(L + '_fd')
    e(f's_mov_b32 s12, s{P_W2}'); e(f's_mov_b32 s13, s{P_W2+1}')
    e(f's_mov_b32 s14, {7*MB}'); e(f's_mov_b32 s22, {32*2048}')
    e('s_lshl_b32 s21, s5, 9'); e('s_lshl_b32 s3, s28, 8'); e('s_add_u32 s21, s21, s3')
    e(f's_add_u32 s20, s20, {WS_H}')
    e('s_mov_b32 s40, 112')
    w_voffsets(e, 2048, 0)
    e(f's_branch {L}_done')
    e.lab(L + '_wo')
    e(f's_mov_b32 s12, s{P_WO}'); e(f's_mov_b32 s13, s{P_WO+1}')
    e(f's_mov_b32 s14, {8*MB}'); e(f's_mov_b32 s22, {32*2048}')
    e('s_lshl_b32 s21, s5, 9'); e('s_lshl_b32 s3, s28, 8'); e('s_add_u32 s21, s21, s3')
    e(f's_bfe_u32 s3, {dreg}, {F_K0}')
    e('s_lshl_b32 s4, s3, 19'); e('s_add_u32 s21, s21, s4')
    e('s_lshl_b32 s4, s3, 20'); e('s_add_u32 s20, s20, s4')
    e(f's_add_u32 s20, s20, {WS_O}')
    e(f's_bfe_u32 s40, {dreg}, {F_NK}'); e('s_add_u32 s40, s40, 1'); e('s_lshl_b32 s40, s40, 3')
    w_voffsets(e, 2048, 0)
    e.lab(L + '_done')

def next_desc(e):
    e('s_mov_b32 s30, s31')
    e('s_add_u32 s38, s38, 4'); e('s_addc_u32 s39, s39, 0')
    e('s_load_dword s31, s[38:39], 0')

def gen_gemm(e, NJ):
    G = f'G{NJ}'
    NX = NJ // 2
    ND = NX + 4
    NM = 4 * NJ
    def dmaX(i): return f'buffer_load_dwordx4 v11, s[16:19], s20 offen offset:{i*1024} sc1 lds'
    def dmaW(i): return f'buffer_load_dwordx4 v{12+i}, s[12:15], s21 offen offset:{i*1024} lds'
    preX = ['s_add_u32 m0, s24, s41']; postX = [f's_add_u32 s20, s20, {128*KB}']
    preW = ['s_add_u32 m0, s24, s42']
    postW = ['s_add_u32 s21, s21, s22', 's_add_u32 s24, s24, 32768', f's_and_b32 s24, s24, {RINGM}']
    def rw(half):
        r = []
        for i in range(4):
            b = wfrag(half, i)[1]
            r += [f'ds_read_b64_tr_b16 a[{b}:{b+1}], v{7+i} offset:{half*8192}', f'ds_read_b64_tr_b16 a[{b+2}:{b+3}], v{7+i} offset:{half*8192+4096}']
        return r
    def rx(st): return [f'ds_read_b128 {rr(xfrag(NJ,st,j))}, v6 offset:{j*1024}' for j in range(NJ)]
    adv = ['s_add_u32 s25, s25, 32768', f's_and_b32 s25, s25, {RINGM}', 'v_add_u32 v6, s25, v1'] + [f'v_add_u32 v{7+i}, s25, v{2+i}' for i in range(4)]
    def rdB(st):
        a = rw(0); b = rx(st); return a[:2] + b + a[2:]
    def phase(half, st, rd, pre, dmas, post, extra, first=False, head=()):
        fill = [[] for _ in range(NM)]
        rpg = 1 if NJ == 8 else 2
        for n, x in enumerate(rd): fill[n // rpg].append(x)
        nr = -(-len(rd) // rpg)
        for n, x in enumerate(extra): fill[min(NM - 1, nr + n // rpg)].append(x)
        if NJ == 8: pos = (18, 22, 26, 30)
        else: pos = (8, 10, 12, 14) if len(dmas) == 4 else (9, 13)
        fill[pos[0] - 1] += pre
        for i, x in enumerate(dmas): fill[pos[i]].append(x)
        fill[NM - 1] += post
        e.many(head)
        k = 0
        for i in range(4):
            for j in range(NJ):
                ac = rr(acc(NJ, half * 4 + i, j))
                e(f'v_mfma_f32_16x16x32_bf16 {ac}, {rr(wfrag(half,i))}, {rr(xfrag(NJ,st,j))}, {"0" if first else ac}')
                e.many(fill[k]); k += 1
    DX = [dmaX(i) for i in range(NX)]; DW = [dmaW(i) for i in range(4)]
    e.lab(G + '_cold')
    e(f's_mul_i32 s41, s27, {NX*1024}')
    e('v_add_u32 v11, s41, v0')
    e(f's_mul_i32 s3, s28, {NJ*1024}')
    e('v_add_u32 v1, s3, v0')
    setup_load(e, 's30', G + 'c')
    e('s_mov_b32 s24, 0'); e('s_mov_b32 s25, 0')
    for t in range(S):
        e.many(preX); e('s_nop 0'); e.many(DX); e.many(postX)
        if t < S - 1:
            e.many(preW); e('s_nop 0'); e.many(DW); e.many(postW)
    e('v_mov_b32 v6, v1')
    for i in range(4): e(f'v_mov_b32 v{7+i}, v{2+i}')
    e(f's_waitcnt vmcnt({ND*(S-2)+NX})')
    e('s_barrier')
    e.many(rw(0) + rx(0))
    e.lab(G + '_task')
    e(f's_sub_u32 s32, s40, {S+1}')
    e('s_sub_u32 s33, s40, 1')
    e('s_cmp_lg_u32 s35, 0')
    e('s_cselect_b32 s43, 3, s32')
    bar = [f's_waitcnt lgkmcnt(0) vmcnt({ND*(S-2)})', 's_barrier']
    phase(0, 0, rw(1), preW, DW, postW, adv, first=True, head=['s_waitcnt lgkmcnt(0)'])
    e.many(bar)
    phase(1, 0, rdB(1), preX, DX, postX, [], first=True)
    phase(0, 1, rw(1), preW, DW, postW + ['s_mov_b32 s26, 1'], adv, head=['s_waitcnt lgkmcnt(0)'])
    e.raw('.p2align 6')
    e.lab(G + '_loop')
    e.many(bar)
    phase(1, 1, rdB(0), preX, DX, postX + ['s_cmp_eq_u32 s26, s33'], [])
    e(f's_cbranch_scc1 {G}_epi')
    phase(0, 0, rw(1), preW, DW, postW + ['s_cmp_eq_u32 s26, s43'], adv, head=['s_waitcnt lgkmcnt(0)'])
    e(f's_cbranch_scc1 {G}_event')
    e.lab(G + '_back')
    e.many(bar)
    phase(1, 0, rdB(1), preX, DX, postX, [])
    phase(0, 1, rw(1), preW, DW, postW + ['s_add_u32 s26, s26, 2'], adv, head=['s_waitcnt lgkmcnt(0)'])
    e(f's_branch {G}_loop')
    e.lab(G + '_event')
    e('s_cmp_eq_u32 s26, s32')
    e(f's_cbranch_scc1 {G}_switch')
    signal(e)
    e('s_mov_b32 s43, s32')
    e(f's_branch {G}_back')
    e.lab(G + '_switch')
    e('s_bitcmp1_b32 s31, 4')
    e(f's_cbranch_scc1 {G}_sw1')
    e('s_mov_b32 s14, 0'); e('s_mov_b32 s18, 0')
    e(f's_branch {G}_back')
    e.lab(G + '_sw1')
    setup_load(e, 's31', G + 's')
    e(f's_branch {G}_back')
    e.lab(G + '_epi')
    e(f's_bfe_u32 s4, s30, {F_A}')
    e(f's_bfe_u32 s5, s30, {F_B}')
    e('s_lshl_b32 s6, s4, 3')
    e(f's_mul_i32 s3, s28, {NJ}')
    e('s_add_u32 s6, s6, s3')
    e('s_lshl_b32 s35, s4, 7')
    e(f's_add_u32 s35, s35, {WS_CNT}')
    e('s_mov_b32 s37, 1')
    e('s_and_b32 s3, s30, 7')
    if NJ == 8:
        e(f's_cmp_eq_u32 s3, {T_FU}'); e(f's_cbranch_scc1 {G}_fu')
    else:
        e(f's_cmp_ge_u32 s3, {T_FD}'); e(f's_cbranch_scc1 {G}_fd')
    def pack(m, j):
        a0 = acc(NJ, 2 * m, j); a1 = acc(NJ, 2 * m + 1, j)
        R0 = a0[1]
        if a1[0] == 'a':
            R1 = 20 + 4 * (j & 1)
            for q in range(4): e(f'v_accvgpr_read_b32 v{R1+q}, a{a1[1]+q}')
        else: R1 = a1[1]
        e(f'v_cvt_pk_bf16_f32 v{R0}, v{R0}, v{R0+1}')
        e(f'v_cvt_pk_bf16_f32 v{R0+1}, v{R0+2}, v{R0+3}')
        e(f'v_cvt_pk_bf16_f32 v{R0+2}, v{R1}, v{R1+1}')
        e(f'v_cvt_pk_bf16_f32 v{R0+3}, v{R1+2}, v{R1+3}')
        return R0
    def sig2(base):
        e(f's_add_u32 s35, s35, {base*128}')
        if NJ == 8: e('s_add_u32 s36, s35, 128')
        else: e('s_mov_b32 s36, 0')
    sig2(C_KV)
    e('s_lshr_b32 s6, s6, 1'); e(f's_mul_i32 s6, s6, {768*KB}')
    e(f's_mul_i32 s5, s5, {24*KB}'); e('s_add_u32 s6, s6, s5')
    e(f's_add_u32 s5, s5, {16*KB}')
    e(f's_cmp_eq_u32 s3, {T_VV}')
    e('s_cselect_b32 s5, s5, 0')
    e(f's_mov_b32 s7, {8*KB}'); e(f's_cmov_b32 s7, {24*KB}')
    e('s_add_u32 s6, s6, s5')
    e('s_lshl_b32 s3, s29, 11'); e('s_add_u32 s6, s6, s3')
    e(f's_add_u32 s6, s6, {WS_QKV}')
    for m in range(4):
        if m == 2: e('s_add_u32 s6, s6, s7')
        for j in range(NJ):
            R = pack(m, j)
            e(f's_add_u32 s3, s6, {(j>>1)*768*KB + (j&1)*4096}')
            e(f'buffer_store_dwordx4 v[{R}:{R+3}], v0, s[8:11], s3 offen offset:{(m&1)*1024} sc1')
    e.lab(G + '_done')
    e('s_bitcmp1_b32 s31, 4')
    e('s_cbranch_scc0 L_drain')
    next_desc(e)
    e(f's_branch {G}_task')
    if NJ == 8:
        e.lab(G + '_fu')
        sig2(C_FU)
        e('s_lshl_b32 s5, s5, 2'); e('s_lshl_b32 s3, s29, 1'); e('s_add_u32 s5, s5, s3')
        e('s_lshl_b32 s5, s5, 17'); e('s_lshl_b32 s6, s6, 10'); e('s_add_u32 s6, s6, s5')
        e(f's_add_u32 s6, s6, {WS_H}')
        e('s_mov_b32 s7, 0xbfb8aa3b')
        for m in range(2):
            for j in range(NJ):
                for ii in range(2):
                    i = 2 * m + ii
                    g = acc(NJ, i, j)[1]; ua = acc(NJ, i + 4, j)
                    if ua[0] == 'a':
                        u = 28
                        for q in range(4): e(f'v_accvgpr_read_b32 v{u+q}, a{ua[1]+q}')
                    else: u = ua[1]
                    T = 20 + 4 * ii
                    for q in range(4): e(f'v_mul_f32 v{T+q}, s7, v{g+q}')
                    for q in range(4): e(f'v_exp_f32 v{T+q}, v{T+q}')
                    for q in range(0, 4, 2): e(f'v_pk_mul_f32 v[{g+q}:{g+q+1}], v[{g+q}:{g+q+1}], v[{u+q}:{u+q+1}]')
                    for q in range(4): e(f'v_add_f32 v{T+q}, 1.0, v{T+q}')
                    for q in range(4): e(f'v_rcp_f32 v{T+q}, v{T+q}')
                for ii in range(2):
                    g = acc(NJ, 2 * m + ii, j)[1]; T = 20 + 4 * ii
                    for q in range(0, 4, 2): e(f'v_pk_mul_f32 v[{g+q}:{g+q+1}], v[{g+q}:{g+q+1}], v[{T+q}:{T+q+1}]')
                R = pack(m, j)
                if j % 4 == 0: e(f's_add_u32 s3, s6, {m*128*KB + j*1024}')
                e(f'buffer_store_dwordx4 v[{R}:{R+3}], v0, s[8:11], s3 offen offset:{(j&3)*1024} sc1')
        e(f's_branch {G}_done')
    else:
        e.lab(G + '_fd')
        sig2(C_Y)
        e('s_lshl_b32 s6, s6, 15')
        e('s_lshl_b32 s5, s5, 9'); e('s_add_u32 s6, s6, s5')
        e('s_lshl_b32 s5, s29, 7'); e('s_add_u32 s6, s6, s5')
        e('v_lshrrev_b32 v20, 4, v0')
        e('v_and_b32 v21, 15, v20'); e('v_lshlrev_b32 v21, 11, v21')
        e('v_bfe_u32 v22, v20, 4, 1'); e('v_lshl_add_u32 v21, v22, 5, v21')
        e('v_lshrrev_b32 v22, 5, v20'); e('v_lshl_add_u32 v21, v22, 4, v21')
        srd(e, 44, P_X, 4 * MB); srd(e, 48, P_WS, WS_SIZE)
        e('s_mov_b32 s7, s6')
        e(f's_bfe_u32 s5, s30, {F_P}'); e('s_lshl_b32 s5, s5, 22'); e(f's_add_u32 s5, s5, {WS_Y}')
        e(f's_cmp_eq_u32 s3, {T_FD}'); e(f's_cbranch_scc1 {G}_fd2')
        e('s_mov_b32 s46, 0')
        e('s_bitcmp1_b32 s30, 5'); e(f's_cbranch_scc0 {G}_fd2')
        wait_counter(e, 's35', 4, 'y0')
        srd(e, 44, P_WS, WS_SIZE); srd(e, 48, P_OUT, 4 * MB)
        e(f's_add_u32 s7, s6, {WS_Y}'); e('s_mov_b32 s5, 0')
        e.lab(G + '_fd2')
        e('s_add_u32 s6, s6, s5')
        for j in range(NJ):
            e(f's_add_u32 s3, s7, {j*32768}')
            for ip in range(4):
                Y = 160 + 4 * (j * 4 + ip)
                e(f'buffer_load_dwordx4 v[{Y}:{Y+3}], v21, s[44:47], s3 offen offset:{(ip>>1)*256+(ip&1)*64} sc1')
        for j in range(NJ):
            for ip in range(4):
                R0 = acc(NJ, 2 * ip, j)[1]; R1 = acc(NJ, 2 * ip + 1, j)[1]
                for q in range(4): e(f'v_permlane16_swap_b32 v{R0+q}, v{R1+q}')
        for j in range(NJ):
            e(f's_add_u32 s3, s6, {j*32768}')
            e('s_waitcnt vmcnt(12)')
            for ip in range(4):
                R0 = acc(NJ, 2 * ip, j)[1]; R1 = acc(NJ, 2 * ip + 1, j)[1]; Y = 160 + 4 * (j * 4 + ip)
                for q in range(4):
                    R = (R0, R0 + 2, R1, R1 + 2)[q]
                    e(f'v_lshlrev_b32 v22, 16, v{Y+q}'); e(f'v_and_b32 v23, 0xffff0000, v{Y+q}')
                    e(f'v_pk_add_f32 v[22:23], v[22:23], v[{R}:{R+1}]')
                    e(f'v_cvt_pk_bf16_f32 v{Y+q}, v22, v23')
                e(f'buffer_store_dwordx4 v[{Y}:{Y+3}], v21, s[48:51], s3 offen offset:{(ip>>1)*256+(ip&1)*64} sc1')
        e(f's_branch {G}_done')

def gen_fin(e):
    e.lab('L_fin')
    e(f's_bfe_u32 s4, s30, {F_A}'); e(f's_bfe_u32 s5, s30, {F_B}')
    e('s_lshl_b32 s6, s4, 18'); e('s_lshl_b32 s5, s5, 14'); e('s_add_u32 s6, s6, s5')
    e('s_lshl_b32 s5, s27, 12'); e('s_add_u32 s6, s6, s5')
    e(f's_bfe_u32 s40, s30, {F_P}')
    e('s_lshl_b32 s7, s4, 7'); e(f's_add_u32 s7, s7, {WS_CNT + C_Y*128}')
    e('s_lshl_b32 s41, s40, 2')
    wait_counter(e, 's7', 's41', 'fin')
    srd(e, 48, P_OUT, 4 * MB)
    e(f's_bfe_u32 s26, s30, {F_NK}')
    e.lab('FIN_u')
    for r in range(32, 64, 2): e(f'v_mov_b64 v[{r}:{r+1}], 0')
    e(f's_add_u32 s7, s6, {WS_Y}')
    e('s_mov_b32 s33, 0')
    e.lab('FIN_p')
    e('s_mov_b32 s16, s8'); e('s_mov_b32 s17, s9')
    for k in range(6):
        e(f's_add_u32 s3, s33, {k}'); e('s_cmp_lt_u32 s3, s40'); e('s_cselect_b32 s18, s10, 0')
        for i in range(4):
            R = 64 + 16 * k + 4 * i
            e(f'buffer_load_dwordx4 v[{R}:{R+3}], v0, s[16:19], s7 offen offset:{i*1024} sc1')
        e(f's_add_u32 s7, s7, {4*MB}')
    for k in range(6):
        e(f's_waitcnt vmcnt({20-4*k})')
        for d in range(16):
            R = 64 + 16 * k + d
            e(f'v_lshlrev_b32 v22, 16, v{R}'); e(f'v_and_b32 v23, 0xffff0000, v{R}')
            e(f'v_pk_add_f32 v[{32+2*d}:{33+2*d}], v[{32+2*d}:{33+2*d}], v[22:23]')
    e('s_add_u32 s33, s33, 6'); e('s_cmp_lt_u32 s33, s40'); e('s_cbranch_scc1 FIN_p')
    for d in range(16): e(f'v_cvt_pk_bf16_f32 v{160+d}, v{32+2*d}, v{33+2*d}')
    for i in range(4): e(f'buffer_store_dwordx4 v[{160+4*i}:{163+4*i}], v0, s[48:51], s6 offen offset:{i*1024}')
    e('s_waitcnt vmcnt(0)')
    e(f's_add_u32 s6, s6, {16*KB}')
    e('s_sub_u32 s26, s26, 1'); e('s_cbranch_scc0 FIN_u')
    e('s_branch L_sched')

def gen_sched(e):
    e.lab('L_drain')
    e('s_waitcnt vmcnt(0) lgkmcnt(0)')
    e('s_barrier')
    signal(e)
    e.lab('L_sched')
    e('s_waitcnt lgkmcnt(0)')
    next_desc(e)
    e('s_and_b32 s3, s30, 7')
    e(f's_cmp_eq_u32 s3, {T_END}'); e('s_cbranch_scc1 L_exit')
    e(f's_cmp_eq_u32 s3, {T_FIN}'); e('s_cbranch_scc1 L_fin')
    e(f's_cmp_lt_u32 s3, {T_FD}'); e('s_cbranch_scc1 L_nodep')
    e(f's_bfe_u32 s7, s30, {F_A}'); e('s_lshl_b32 s7, s7, 7')
    e(f's_cmp_eq_u32 s3, {T_FD}')
    e(f's_mov_b32 s5, {WS_CNT + C_O*128}'); e(f's_cmov_b32 s5, {WS_CNT + C_FU*128}')
    e('s_cselect_b32 s6, 28, 32')
    e('s_add_u32 s7, s7, s5')
    wait_counter(e, 's7', 's6', 'dep')
    e.lab('L_nodep')
    e('s_bitcmp1_b32 s30, 3')
    e('s_cbranch_scc1 G4_cold')
    e('s_branch G8_cold')
```

```python
from common import *
from k_bulk import w_voffsets, wait_counter, P_WQ, P_WK, P_WV, P_WO, SPIN_MAX
MEMB = 128 * KB
KVB = 144 * KB
MB_ = MEMB + 4096
NSTEP = 64
SMF = 'v_smfmac_f32_16x16x64_bf16'
MF = 'v_mfma_f32_16x16x32_bf16'
MF16 = 'v_mfma_f32_16x16x16_bf16'
CSC = 0x3e0293ee
OPT = dict(stamp=0, sleepL=1, sleepO=0, vmpos=52)

class Seq:
    def __init__(s, e): s.e = e; s.l = []; s.v = []; s.ld = 0; s.vd = 0
    def L(s, ins, tag=None): s.e(ins); s.l.append(tag)
    def V(s, ins, tag=None): s.e(ins); s.v.append(tag)
    def need(s, ltag=None, vtag=None):
        w = []
        if ltag is not None:
            i = len(s.l) - s.l[::-1].index(ltag)
            if i > s.ld: n = min(15, len(s.l) - i); w.append(f'lgkmcnt({n})'); s.ld = len(s.l) - n
        if vtag is not None:
            i = len(s.v) - s.v[::-1].index(vtag)
            if i > s.vd: n = min(63, len(s.v) - i); w.append(f'vmcnt({n})'); s.vd = len(s.v) - n
        if w: s.e('s_waitcnt ' + ' '.join(w))
    def emit(s, items):
        for it in items:
            if it[0] == 'L': s.L(it[1], it[2])
            elif it[0] == 'V': s.V(it[1], it[2] if len(it) > 2 else None)
            elif it[0] == 'NL': s.need(ltag=it[1])
            elif it[0] == 'NV': s.need(vtag=it[1])
            else: s.e(it[1])

def wreg(rb): return f'a[{8*rb}:{8*rb+7}]' if rb < 32 else f'v[{128+8*(rb-32)}:{128+8*(rb-32)+7}]'
def wreg2(rb, o): return (f'a[{8*rb+o}:{8*rb+o+1}]' if rb < 32 else f'v[{128+8*(rb-32)+o}:{128+8*(rb-32)+o+1}]')

def stamp(e, slot):
    if not OPT['stamp']: return
    e(f's_memtime s[{84+2*slot}:{85+2*slot}]')
    e('s_waitcnt lgkmcnt(0)')
def stamp_flush(e):
    if not OPT['stamp']: return
    e('s_mov_b64 exec, 1')
    for k in range(7):
        e(f'v_mov_b32 v15, s{84+2*k}')
        e(f'buffer_store_dword v15, off, s[8:11], s98 offset:{k*4}')
    e('s_mov_b64 exec, -1')
    e('s_add_u32 s98, s98, 256')

def ldx4(r, vo, so, imm): return f'buffer_load_dwordx4 v[{r}:{r+3}], {vo}, s[8:11], {so} offen offset:{imm} sc1'

def check(e, regs):
    if len(regs) == 4:
        e(f'v_max3_u32 v14, v{regs[0]}, v{regs[1]}, v{regs[2]}'); e(f'v_max_u32 v14, v14, v{regs[3]}')
    else:
        e(f'v_max3_u32 v14, v{regs[0]}, v{regs[1]}, v{regs[2]}')
        e(f'v_max3_u32 v15, v{regs[3]}, v{regs[4]}, v{regs[5]}')
        i = 6; t = 14
        while i + 1 < len(regs):
            e(f'v_max3_u32 v{t}, v{t}, v{regs[i]}, v{regs[i+1]}'); i += 2; t = 29 - t
        e('v_max_u32 v14, v14, v15')
    e(f'v_cmp_eq_u32 vcc, {hex(SENT)}, v14')

def poll(e, items, tag, sleep=0, issued=False):
    L = e.uniq('P' + tag)
    def issue():
        for it in items: e(ldx4(*it))
    e('s_mov_b32 s40, 0')
    if not issued: issue()
    e.lab(L)
    e('s_waitcnt vmcnt(0)')
    check(e, [it[0] + k for it in items for k in range(4)])
    e(f's_cbranch_vccz {L}_ok')
    e('s_add_u32 s40, s40, 1')
    e(f's_cmp_gt_u32 s40, {SPIN_MAX}')
    e('s_cbranch_scc1 L_abort')
    if sleep: e(f's_sleep {sleep}')
    e('s_mov_b64 exec, vcc')
    issue()
    e('s_mov_b64 exec, -1')
    e(f's_branch {L}')
    e.lab(L + '_ok')

def local_store(e, ins):
    L = e.uniq('LS')
    e('s_cmp_eq_u32 s37, 0')
    e(f's_cbranch_scc1 {L}')
    for x in ins: e(x)
    e(f's_branch {L}_d')
    e.lab(L)
    for x in ins: e(x + (' sc1' if x.startswith('buffer') else ''))
    e.lab(L + '_d')

def common_init(e):
    e('s_and_b32 s30, s34, 15'); e('s_lshl_b32 s3, s33, 4'); e('s_add_u32 s30, s30, s3')
    e('v_and_b32 v30, 63, v0')
    e('v_lshlrev_b32 v0, 4, v30')
    e('v_lshrrev_b32 v19, 4, v30')
    e('s_lshl_b32 s3, s29, 4')
    e('v_add_u32 v16, s3, v19')
    e('v_bfe_u32 v20, v30, 1, 3'); e('v_xor_b32 v20, v20, v19')
    e('v_and_b32 v21, 1, v30'); e('v_lshlrev_b32 v21, 4, v21')
    e('v_lshl_add_u32 v17, v20, 5, v21')
    e('s_getreg_b32 s36, hwreg(HW_REG_XCC_ID, 0, 4)')
    e('s_add_u32 s36, s36, 1')
    e('v_mov_b32 v18, s36')
    e('s_lshl_b32 s3, s34, 2'); e('s_lshl_b32 s47, s33, 7'); e(f's_add_u32 s47, s47, {WS_CNT + C_XCC*128}')
    e('s_add_u32 s3, s3, s47')
    e('s_mov_b64 exec, 1')
    e('buffer_store_dword v18, off, s[8:11], s3 sc1')
    e('s_mov_b64 exec, -1')
    e('s_mov_b32 s15, 0x20000'); e(f's_mov_b32 s14, {8*MB}')
    e('v_lshrrev_b32 v29, 2, v30'); e('v_and_b32 v28, 7, v29'); e('v_lshlrev_b32 v29, 8, v29')
    e('v_and_b32 v21, 3, v30'); e('v_lshl_add_u32 v29, v21, 3, v29')
    e('s_lshl_b32 s41, s27, 12')

def common_regs(e):
    e('v_and_b32 v18, 8, v30'); e('v_cmp_eq_u32 vcc, 0, v18')
    e('v_mov_b32 v1, 0xeeee'); e('v_mov_b32 v18, 0x4444')
    e('v_cndmask_b32 v1, v1, v18, vcc')
    e(f's_add_u32 s3, s41, {MEMB}'); e('v_add_u32 v5, s3, v0')
    e('v_lshlrev_b32 v12, 7, v30')
    e('s_mov_b32 s31, 0')
    e(f's_mov_b32 s32, {WS_STEP}')
    e('s_lshl_b32 s3, s33, 14'); e('s_add_u32 s48, s3, s41'); e(f's_xor_b32 s49, s48, {16*KB}')
    e(f's_add_u32 s48, s48, {ST_PL}'); e(f's_add_u32 s49, s49, {ST_PR}')
    e('s_lshl_b32 s50, s30, 11')
    if OPT['stamp']:
        e('s_lshl_b32 s98, s2, 14'); e('s_lshl_b32 s3, s27, 6'); e('s_add_u32 s98, s98, s3'); e(f's_add_u32 s98, s98, {WS_DBG}')
    L = e.uniq('XC')
    e('v_and_b32 v18, 31, v30'); e('v_lshlrev_b32 v18, 2, v18')
    e('s_mov_b32 s40, 0')
    e.lab(L)
    e('buffer_load_dword v19, v18, s[8:11], s47 offen sc1')
    e('s_add_u32 s40, s40, 1'); e(f's_cmp_gt_u32 s40, {SPIN_MAX}'); e('s_cbranch_scc1 L_abort')
    e('s_waitcnt vmcnt(0)')
    e('v_cmp_eq_u32 vcc, 0, v19')
    e(f's_cbranch_vccnz {L}')
    e('v_cmp_ne_u32 vcc, s36, v19')
    e('s_cmp_eq_u64 vcc, 0')
    e('s_cselect_b32 s37, 1, 0')

def gather_mem(e, q):
    e('s_add_u32 s42, s32, s48'); e('s_add_u32 s43, s32, s49')
    stamp(e, 0)
    poll(e, [(48 + 4 * p, 'v0', 's42', p * 1024) for p in range(4)], 'l', sleep=OPT['sleepL'])
    stamp(e, 1)
    R = [(32 + 4 * p, 'v0', 's43', p * 1024) for p in range(4)]
    for it in R: e(ldx4(*it))
    for d in range(16):
        e(f'v_lshlrev_b32 v{80+2*d}, 16, v{48+d}'); e(f'v_and_b32 v{81+2*d}, 0xffff0000, v{48+d}')
    poll(e, R, 'r', issued=True)
    stamp(e, 2)
    for p in range(4):
        for k in range(4):
            d = 4 * p + k
            e(f'v_lshlrev_b32 v{48+2*k}, 16, v{32+d}'); e(f'v_and_b32 v{49+2*k}, 0xffff0000, v{32+d}')
        for k in range(4):
            d = 4 * p + k
            e(f'v_pk_add_f32 v[{48+2*k}:{49+2*k}], v[{48+2*k}:{49+2*k}], v[{80+2*d}:{81+2*d}]')
        for k in range(4): e(f'v_cvt_pk_bf16_f32 v{32+4*p+k}, v{48+2*k}, v{49+2*k}')
        q.L(f'ds_write_b128 v5, v[{32+4*p}:{35+4*p}] offset:{p*1024}', 'AW')
    e('s_nop 0')

def softmax(e):
    e('s_mov_b32 vcc_lo, 0'); e('s_mov_b32 vcc_hi, -1')
    e('v_max3_f32 v20, v24, v25, v26'); e('v_max3_f32 v21, v27, v28, v29'); e('v_max3_f32 v20, v20, v30, v31')
    for r in range(4): e(f'v_cndmask_b32 v{16+r}, v23, v{16+r}, vcc')
    e('v_max3_f32 v21, v21, v16, v17'); e('v_max3_f32 v20, v20, v18, v19'); e('v_max_f32 v20, v20, v21')
    def cross(op):
        for sw in ('v_permlane32_swap_b32', 'v_permlane16_swap_b32'):
            e('v_mov_b32 v21, v20'); e('s_nop 1'); e(f'{sw} v20, v21'); e(f'{op} v20, v20, v21')
    cross('v_max_f32')
    e('v_mul_f32 v20, s45, v20')
    S = [24, 25, 26, 27, 28, 29, 30, 31, 16, 17, 18, 19]
    for r in S: e(f'v_fma_f32 v{r}, v{r}, s45, -v20')
    for r in S: e(f'v_exp_f32 v{r}, v{r}')
    e('v_pk_add_f32 v[20:21], v[24:25], v[26:27]'); e('v_pk_add_f32 v[22:23], v[28:29], v[30:31]')
    e('v_pk_add_f32 v[20:21], v[20:21], v[16:17]'); e('v_pk_add_f32 v[22:23], v[22:23], v[18:19]')
    e('v_pk_add_f32 v[20:21], v[20:21], v[22:23]'); e('v_add_f32 v20, v20, v21')
    cross('v_add_f32')
    e('v_rcp_f32 v20, v20')
    e('s_nop 0')
    for r in S[::2]: e(f'v_pk_mul_f32 v[{r}:{r+1}], v[{r}:{r+1}], v[20:21] op_sel_hi:[1,0]')
    for d in range(4): e(f'v_cvt_pk_bf16_f32 v{24+d}, v{24+2*d}, v{25+2*d}')
    for d in range(2): e(f'v_cvt_pk_bf16_f32 v{16+d}, v{16+2*d}, v{17+2*d}')

def gen_P(e):
    e.lab('L_chainP')
    common_init(e)
    e('s_cmp_eq_u32 s28, 0')
    e(f's_cselect_b32 s12, s{P_WQ}, s{P_WK}'); e(f's_cselect_b32 s13, s{P_WQ+1}, s{P_WK+1}')
    w_voffsets(e, 8192, 0)
    e('s_lshl_b32 s21, s30, 8')
    e('s_lshl_b32 s3, s27, 1'); e('v_xor_b32 v18, s3, v28')
    e('s_lshl_b32 s3, s27, 15'); e('v_add_u32 v19, s3, v29')
    e('v_lshl_add_u32 v2, v18, 5, v19'); e('v_xor_b32 v3, 32, v2')
    def load(n):
        tau, hf = n >> 1, n & 1
        for Q in range(4):
            e(f's_add_u32 m0, s41, {Q*32768 + hf*16384}')
            e(f's_add_u32 s20, s21, {((4*Q+tau)*64 + 32*hf)*8192}')
            for i in range(4): e(f'buffer_load_dwordx4 v{12+i}, s[12:15], s20 offen offset:{i*1024} lds')
    rot = lambda r: [f'v_add_u32 v{r}, 0x8000, v{r}', f'v_and_b32 v{r}, 0x1ffff, v{r}']
    load(0); load(1)
    for n in range(6):
        tau, hf = n >> 1, n & 1
        e('s_waitcnt vmcnt(16)'); e('s_barrier')
        for q in range(4):
            for tl in range(4):
                for u in range(2):
                    e(f'ds_read_b64_tr_b16 {wreg2((q*3+tau)*4+tl, 4*hf+2*u)}, v{2+(tl&1)} offset:{hf*16384+(tl>>1)*8192+u*4096}')
            e.many(rot(2) + rot(3))
        e('s_waitcnt lgkmcnt(0)'); e('s_barrier')
        load(n + 2)
    common_regs(e)
    e('v_lshrrev_b32 v18, 5, v30'); e('v_lshlrev_b32 v6, 9, v18')
    e('v_and_b32 v18, 15, v30'); e('v_lshl_add_u32 v6, v18, 5, v6')
    e('v_bfe_u32 v18, v30, 4, 1'); e('v_lshl_add_u32 v6, v18, 3, v6')
    e('s_lshl_b32 s3, s27, 10'); e(f's_add_u32 s3, s3, {MB_}'); e('v_add_u32 v6, s3, v6')
    e('v_lshlrev_b32 v7, 3, v30'); e(f'v_add_u32 v7, {MB_}, v7')
    e(f'v_add_u32 v8, {KVB}, v0')
    e('v_and_b32 v18, 3, v30'); e('v_lshlrev_b32 v9, 8, v18')
    e('v_lshrrev_b32 v18, 2, v30'); e('v_lshl_add_u32 v9, v18, 4, v9')
    e('s_lshl_b32 s3, s27, 10'); e(f's_add_u32 s3, s3, {KVB + 8192}'); e('v_add_u32 v9, s3, v9')
    e('v_and_b32 v18, 31, v30'); e('v_lshlrev_b32 v10, 6, v18')
    e('s_lshl_b32 s3, s27, 4'); e('v_add_u32 v10, s3, v10')
    e('v_xor_b32 v13, 16, v10')
    e('v_and_b32 v18, 7, v30'); e('v_lshlrev_b32 v11, 4, v18')
    e('v_lshrrev_b32 v18, 4, v30'); e('v_lshl_add_u32 v11, v18, 7, v11')
    e('s_lshl_b32 s3, s27, 9'); e('v_add_u32 v11, s3, v11')
    e('s_lshl_b32 s3, s29, 4')
    e('v_and_b32 v18, 15, v30'); e('v_add_u32 v18, s3, v18')
    e('v_lshrrev_b32 v19, 4, v30'); e('v_lshlrev_b32 v19, 2, v19'); e('v_sub_u32 v18, v18, v19')
    for T in range(2):
        for r in range(4):
            m = 68 + 2 * (4 * T + r)
            e(f'v_cmp_le_i32 s[{m}:{m+1}], {16*T+r}, v18')
    e(f's_mul_i32 s35, s30, {24*KB}'); e(f's_add_u32 s35, s35, {WS_QKV}')
    e('s_lshl_b32 s36, s30, 2'); e('s_add_u32 s36, s36, s27'); e('s_lshl_b32 s36, s36, 17')
    e('s_lshl_b32 s3, s29, 10'); e('s_add_u32 s36, s36, s3')
    e(f's_mov_b32 s45, {hex(CSC)}')
    e(f's_add_u32 s46, s41, {KVB}')
    def prefetch():
        e('s_mov_b32 m0, s46')
        e('s_add_u32 s3, s35, s41'); e('s_add_u32 s3, s3, 8192')
        for i in range(4): e(f'buffer_load_dwordx4 v0, s[8:11], s3 offen offset:{i*1024} sc1 lds')
        e('s_lshl_b32 s3, s29, 12'); e('s_add_u32 s3, s3, s35')
        for ks in range(4): e(ldx4(112 + 4 * ks, 'v0', 's3', ks * 1024))
        e('s_add_u32 s3, s32, s50'); e(f's_add_u32 s3, s3, {ST_OM}')
        e('s_mov_b64 exec, 0xffff'); e('buffer_load_dword v14, v12, s[8:11], s3 offen sc1'); e('s_mov_b64 exec, -1')
    e(f's_mov_b32 s7, {WS_CNT + C_KV*128}')
    wait_counter(e, 's7', 48, 'kv0')
    e('s_barrier')
    prefetch()
    e.raw('.p2align 6')
    e.lab('CP_top')
    q = Seq(e)
    def wrd(n):
        tl = n & 3; B = 64 + 8 * (n & 1)
        return [(f'ds_read_b64_tr_b16 v[{B+4*hf+2*u}:{B+4*hf+2*u+1}], v{2+(tl&1)} offset:{hf*16384+(tl>>1)*8192+u*4096}', f'W{n}') for hf in range(2) for u in range(2)]
    for n in range(2):
        for x, t in wrd(n): q.L(x, t)
    for r in range(16, 32, 2): e(f'v_mov_b64 v[{r}:{r+1}], 0')
    e(f'v_add_u32 v4, 4096, v5'); e(f'v_and_b32 v4, {hex(MEMB + 0x3fff)}, v4')
    e('s_add_u32 s44, s32, s50'); e(f's_add_u32 s44, s44, {ST_VM}')
    gather_mem(e, q)
    fill = [[] for _ in range(64)]; pre = [[] for _ in range(64)]
    for n in range(2, 16):
        for k, (x, t) in enumerate(wrd(n)): fill[4 * n - 5 + k].append(('L', x, t))
        if n & 3 == 2: fill[4 * n - 2] += [('X', x) for x in rot(2)]
        if n & 3 == 3: fill[4 * n - 2] += [('X', x) for x in rot(3)]
    for qq in range(1, 4):
        base = 16 * (qq - 1) + 3
        if qq == 1: fill[base - 1] += [('NL', 'AW'), ('X', 's_barrier')]
        for p in range(4):
            R = 32 + 16 * (qq & 1) + 4 * p
            fill[base + p].append(('L', f'ds_read_b128 v[{R}:{R+3}], v4 offset:{p*1024}', f'A{qq}'))
        if qq < 3: fill[base + 4] += [('X', 'v_add_u32 v4, 4096, v4'), ('X', f'v_and_b32 v4, {hex(MEMB + 0x3fff)}, v4')]
        pre[16 * qq].append(('NL', f'A{qq}'))
    pre[48] += [('X', 's_barrier')]
    fill[8].append(('X', 'v_xor_b32 v15, 0x400, v9'))
    for n in range(4):
        for t in range(2):
            R = 80 + 4 * n + 2 * t
            fill[9 + 4 * n + 2 * t].append(('L', f'ds_read_b64_tr_b16 v[{R}:{R+1}], {"v9" if n < 2 else "v15"} offset:{t*4096+(n&1)*8}', 'VT'))
    for ks in range(4): fill[49 + ks].append(('L', f'ds_read_b128 v[{32+4*ks}:{35+4*ks}], v8 offset:{ks*1024}', 'K0'))
    VM = [(96, 'v10', 's44', 0), (100, 'v13', 's44', 0)]
    for k, it in enumerate(VM): fill[OPT['vmpos'] + 2 * k].append(('V', ldx4(*it)))
    k = 0
    for qq in range(4):
        for tl in range(4):
            for kp in range(4):
                q.emit(pre[k])
                A = 32 + 16 * (qq & 1) + 4 * kp
                if kp < 3: B = wreg((qq * 3 + kp) * 4 + tl)
                else:
                    n = 4 * qq + tl; q.need(ltag=f'W{n}'); b = 64 + 8 * (n & 1); B = f'v[{b}:{b+7}]'
                e(f'{SMF} v[{16+4*tl}:{19+4*tl}], v[{A}:{A+3}], {B}, v1')
                q.emit(fill[k]); k += 1
    for ks in range(4): q.L(f'ds_read_b128 v[{64+4*ks}:{67+4*ks}], v8 offset:{ks*1024+4096}', 'K1')
    for a, d, off in ((16, 20, 0), (24, 22, 16)):
        for r in range(4): e(f'v_permlane32_swap_b32 v{a+r}, v{a+4+r}')
        e(f'v_pk_add_f32 v[{a}:{a+1}], v[{a}:{a+1}], v[{a+4}:{a+5}]'); e(f'v_pk_add_f32 v[{a+2}:{a+3}], v[{a+2}:{a+3}], v[{a+6}:{a+7}]')
        e(f'v_cvt_pk_bf16_f32 v{d}, v{a}, v{a+1}'); e(f'v_cvt_pk_bf16_f32 v{d+1}, v{a+2}, v{a+3}')
        e(f'ds_write_b64 v6, v[{d}:{d+1}] offset:{off}')
    e('s_waitcnt lgkmcnt(0)')
    e('s_barrier')
    stamp(e, 3)
    for ks in range(4):
        for u in range(2): e(f'ds_read_b64_tr_b16 v[{48+4*ks+2*u}:{49+4*ks+2*u}], v7 offset:{ks*1024+u*512}')
    e('v_mov_b32 v23, 0xff800000')
    def scores(B, waits):
        for ks in range(4):
            if waits: e(f's_waitcnt lgkmcnt({6-2*ks})')
            X = f'v[{B+4*ks}:{B+4*ks+3}]'
            for D, A in ((24, 32), (28, 64), (16, 48)):
                e(f'{MF} v[{D}:{D+3}], v[{A+4*ks}:{A+4*ks+3}], {X}, {"0" if ks == 0 else f"v[{D}:{D+3}]"}')
    e(f's_cmp_eq_u32 s31, {NSTEP-1}'); e('s_cbranch_scc1 CP_last')
    scores(48, True)
    poll(e, VM, 'vm', issued=True)
    e('s_nop 1')
    softmax(e)
    e('s_add_u32 s42, s32, s50'); e(f's_add_u32 s42, s42, {ST_OM}')
    for n in range(2): e(f'{MF} v[{104+4*n}:{107+4*n}], v[{80+4*n}:{83+4*n}], v[24:27], 0')
    for n in range(2): e(f'{MF16} v[{104+4*n}:{107+4*n}], v[{96+2*n}:{97+2*n}], v[16:17], v[{104+4*n}:{107+4*n}]')
    e('v_mov_b32 v23, 0xff800000')
    e('s_mov_b32 exec_lo, 0x00ff00ff'); e('s_mov_b32 exec_hi, 0x00ff00ff')
    e('s_nop 4')
    for d in range(4): e(f'v_cvt_pk_bf16_f32 v{104+d}, v{104+2*d}, v{105+2*d}')
    local_store(e, ['buffer_store_dwordx4 v[104:107], v11, s[8:11], s42 offen'])
    e('s_mov_b64 exec, -1')
    stamp(e, 4)
    e('s_branch CP_x')
    e.lab('CP_last')
    poll(e, VM, 'vm', issued=True)
    e('s_waitcnt lgkmcnt(0)')
    e.lab('CP_x')
    scores(112, False)
    e('v_mov_b32 v22, 0xd028965f')
    e('s_nop 5')
    for ee in range(8): e(f'v_cndmask_b32 v{24+ee}, v22, v{24+ee}, s[{68+2*ee}:{69+2*ee}]')
    softmax(e)
    e('s_nop 1')
    for n in range(4): e(f'{MF} v[{32+4*n}:{35+4*n}], v[{80+4*n}:{83+4*n}], v[24:27], 0')
    for n in range(4): e(f'{MF16} v[{32+4*n}:{35+4*n}], v[{96+2*n}:{97+2*n}], v[16:17], v[{32+4*n}:{35+4*n}]')
    e(f's_add_u32 s42, s36, {WS_O}'); e(f's_xor_b32 s43, s36, {128*KB}'); e(f's_add_u32 s43, s43, {WS_O}')
    e('s_add_u32 s36, s36, 2048')
    e('s_add_u32 s31, s31, 1'); e(f's_add_u32 s32, s32, {STEP_SZ}'); e(f's_add_u32 s35, s35, {768*KB}')
    e('s_nop 1')
    for pr in range(2):
        for d in range(4): e(f'v_cvt_pk_bf16_f32 v{32+8*pr+d}, v{32+8*pr+2*d}, v{33+8*pr+2*d}')
        e(f'buffer_store_dwordx4 v[{32+8*pr}:{35+8*pr}], v0, s[8:11], s{42+pr} offen sc1')
    stamp(e, 5)
    e('s_and_b32 s3, s31, 3'); e('s_cmp_lg_u32 s3, 0'); e('s_cbranch_scc1 CP_nb')
    e('s_waitcnt vmcnt(0)'); e('s_barrier')
    e('s_lshl_b32 s7, s31, 5')
    e('s_cmp_lg_u32 s27, 0'); e('s_cbranch_scc1 CP_ns')
    e(f's_add_u32 s3, s7, {WS_CNT + C_O*128 - 128}')
    e('v_mov_b32 v18, 1'); e('s_mov_b64 exec, 1'); e('buffer_atomic_add v18, off, s[8:11], s3 sc1'); e('s_mov_b64 exec, -1')
    e.lab('CP_ns')
    e(f's_cmp_ge_u32 s31, {NSTEP}'); e('s_cbranch_scc1 L_exit')
    e(f's_add_u32 s7, s7, {WS_CNT + C_KV*128}')
    wait_counter(e, 's7', 48, 'kv')
    e.lab('CP_nb')
    prefetch()
    stamp_flush(e)
    e('s_branch CP_top')

def gen_VO(e):
    e.lab('L_chainV')
    common_init(e)
    w_voffsets(e, 8192, 0)
    e(f's_mov_b32 s12, s{P_WV}'); e(f's_mov_b32 s13, s{P_WV+1}')
    e(f's_mov_b32 s16, s{P_WO}'); e(f's_mov_b32 s17, s{P_WO+1}'); e(f's_mov_b32 s18, {8*MB}'); e('s_mov_b32 s19, 0x20000')
    e('s_lshl_b32 s21, s30, 8'); e('s_lshl_b32 s3, s28, 18'); e('s_add_u32 s21, s21, s3')
    e('s_lshl_b32 s22, s33, 22'); e('s_lshl_b32 s3, s27, 20'); e('s_add_u32 s22, s22, s3')
    e('s_and_b32 s3, s34, 15'); e('s_lshl_b32 s3, s3, 7'); e('s_add_u32 s22, s22, s3')
    e('s_lshl_b32 s3, s27, 1'); e('v_xor_b32 v18, s3, v28')
    e('s_lshl_b32 s3, s27, 14'); e('v_add_u32 v19, s3, v29')
    e('v_lshl_add_u32 v2, v18, 5, v19'); e('v_xor_b32 v3, 32, v2')
    e('v_lshrrev_b32 v18, 5, v30'); e('v_lshlrev_b32 v22, 15, v18')
    e('v_bfe_u32 v18, v30, 4, 1'); e('v_lshl_add_u32 v22, v18, 13, v22')
    e('v_bfe_u32 v18, v30, 3, 1'); e('v_lshl_add_u32 v22, v18, 11, v22')
    e('v_bfe_u32 v18, v30, 1, 2'); e('v_lshrrev_b32 v19, 4, v30'); e('v_xor_b32 v18, v18, v19'); e('v_lshl_add_u32 v22, v18, 5, v22')
    e('v_and_b32 v18, 1, v30'); e('v_lshl_add_u32 v22, v18, 4, v22')
    e('v_lshrrev_b32 v18, 2, v30'); e('v_lshlrev_b32 v8, 7, v18')
    e('v_bfe_u32 v18, v30, 3, 2'); e('v_lshl_add_u32 v8, v18, 5, v8')
    e('v_and_b32 v18, 3, v30'); e('v_lshl_add_u32 v8, v18, 3, v8')
    e('s_lshl_b32 s23, s27, 14'); e('s_add_u32 s23, s23, 65536'); e('v_add_u32 v8, s23, v8')
    def loadV(tau):
        for Q in range(4):
            e(f's_add_u32 m0, s41, {Q*16384}')
            e(f's_add_u32 s20, s21, {(4*Q+tau)*64*8192}')
            for i in range(4): e(f'buffer_load_dwordx4 v{12+i}, s[12:15], s20 offen offset:{i*1024} lds')
    RND = ((0, 1), (2, 4), (5, 6), (3, 7))
    KREG = {0: 0, 1: 1, 2: 2, 4: 3, 5: 4, 6: 5}
    def loadO(n):
        for sl, ks in enumerate(RND[n]):
            for i in range(8):
                e(f's_add_u32 m0, s23, {sl*8192 + i*1024}')
                e(f's_add_u32 s20, s22, {(64*ks + 32*(i>>2) + 8*(i&1) + 2*((i>>1)&1))*2048}')
                e('buffer_load_dwordx4 v22, s[16:19], s20 offen lds')
    def ord_(sl, dst):
        r = []
        for n in range(4):
            r.append(('X', f'v_xor_b32 v18, {n<<5}, v8'))
            for x in range(2):
                for u in range(2): r.append(('L', f'ds_read_b64_tr_b16 {dst(n, 4*x+2*u)}, v18 offset:{sl*8192+x*4096+u*2048}', 'O'))
        return r
    rot = lambda r: [f'v_add_u32 v{r}, 0x4000, v{r}', f'v_and_b32 v{r}, 0xffff, v{r}']
    loadV(0); loadO(0)
    for n in range(3):
        e('s_waitcnt vmcnt(16)'); e('s_barrier')
        for q in range(4):
            for t in range(2):
                for hf in range(2):
                    for u in range(2):
                        e(f'ds_read_b64_tr_b16 {wreg2((q*3+n)*2+t, 4*hf+2*u)}, v{2+t} offset:{hf*8192+u*4096}')
            e.many(rot(2) + rot(3))
        e('s_waitcnt lgkmcnt(0)'); e('s_barrier')
        loadV(n + 1)
        e('s_waitcnt vmcnt(16)')
        for sl, ks in enumerate(RND[n]):
            for it in ord_(sl, lambda t, o: wreg2(24 + KREG[ks] * 4 + t, o)): e(it[1])
        e('s_waitcnt lgkmcnt(0)')
        loadO(n + 1)
    common_regs(e)
    e('s_barrier')
    e('v_and_b32 v18, 31, v30'); e('v_lshlrev_b32 v6, 6, v18')
    e('v_lshrrev_b32 v18, 5, v30'); e('v_lshl_add_u32 v6, v18, 3, v6')
    e('s_lshl_b32 s3, s27, 4'); e('v_add_u32 v6, s3, v6')
    e('v_bfe_u32 v18, v30, 3, 1'); e('v_lshlrev_b32 v11, 6, v18')
    for bit, sh in ((1, 5), (2, 4), (5, 3), (0, 2), (4, 9)):
        e(f'v_bfe_u32 v18, v30, {bit}, 1'); e(f'v_lshl_add_u32 v11, v18, {sh}, v11')
    e('s_lshl_b32 s3, s27, 10'); e(f's_add_u32 s3, s3, {KVB}'); e('v_add_u32 v11, s3, v11')
    e(f'v_add_u32 v7, {KVB - MEMB}, v5')
    e('v_bfe_u32 v18, v30, 1, 2'); e('v_lshlrev_b32 v13, 7, v18')
    e('v_lshrrev_b32 v18, 3, v30'); e('v_lshl_add_u32 v13, v18, 4, v13')
    e('v_and_b32 v18, 1, v30'); e('v_lshl_add_u32 v13, v18, 3, v13')
    e('s_lshl_b32 s35, s30, 10')
    e('s_lshl_b32 s3, s27, 9'); e('s_add_u32 s3, s3, s35'); e('v_add_u32 v13, s3, v13')
    e('s_lshl_b32 s36, s33, 15'); e('s_lshl_b32 s3, s27, 13'); e('s_add_u32 s36, s36, s3'); e(f's_add_u32 s36, s36, {ST_OM}')
    e('s_add_u32 s3, s32, s50'); e(f's_add_u32 s3, s3, {ST_VM}')
    e('s_mov_b64 exec, 0xffff'); e('buffer_load_dword v14, v12, s[8:11], s3 offen sc1'); e('s_mov_b64 exec, -1')
    e.raw('.p2align 6')
    e.lab('CV_top')
    q = Seq(e)
    def wrd(n):
        t = n & 1; B = 64 + 8 * t
        return [(f'ds_read_b64_tr_b16 v[{B+4*hf+2*u}:{B+4*hf+2*u+1}], v{2+t} offset:{hf*8192+u*4096}', f'W{n}') for hf in range(2) for u in range(2)]
    for n in range(2):
        for x, t in wrd(n): q.L(x, t)
    e.many(rot(2) + rot(3))
    for r in range(16, 24, 2): e(f'v_mov_b64 v[{r}:{r+1}], 0')
    e(f'v_add_u32 v4, 4096, v5'); e(f'v_and_b32 v4, {hex(MEMB + 0x3fff)}, v4')
    gather_mem(e, q)
    fill = [[] for _ in range(32)]; pre = [[] for _ in range(32)]
    for n in range(2, 8):
        for k, (x, t) in enumerate(wrd(n)): fill[4 * n - 5 + k].append(('L', x, t))
        fill[4 * n - 2] += [('X', x) for x in rot(2 + (n & 1))]
    for qq in range(1, 4):
        base = 8 * (qq - 1) + (1 if qq == 1 else 0)
        if qq == 1: fill[base] += [('NL', 'AW'), ('X', 's_barrier')]
        for p in range(4):
            R = 32 + 16 * (qq & 1) + 4 * p
            fill[base + p // 2].append(('L', f'ds_read_b128 v[{R}:{R+3}], v4 offset:{p*1024}', f'A{qq}'))
        if qq < 3: fill[base + 2] += [('X', 'v_add_u32 v4, 4096, v4'), ('X', f'v_and_b32 v4, {hex(MEMB + 0x3fff)}, v4')]
        pre[8 * qq].append(('NL', f'A{qq}'))
    k = 0
    for qq in range(4):
        for t in range(2):
            for kp in range(4):
                q.emit(pre[k])
                A = 32 + 16 * (qq & 1) + 4 * kp
                if kp < 3: B = wreg((qq * 3 + kp) * 2 + t)
                else:
                    n = 2 * qq + t; q.need(ltag=f'W{n}'); b = 64 + 8 * t; B = f'v[{b}:{b+7}]'
                e(f'{SMF} v[{16+4*t}:{19+4*t}], v[{A}:{A+3}], {B}, v1')
                q.emit(fill[k]); k += 1
    e('s_add_u32 s42, s32, s50'); e(f's_add_u32 s42, s42, {ST_VM}')
    e('s_nop 5')
    for r in range(4): e(f'v_permlane32_swap_b32 v{16+r}, v{20+r}')
    e('v_pk_add_f32 v[16:17], v[16:17], v[20:21]'); e('v_pk_add_f32 v[18:19], v[18:19], v[22:23]')
    e('v_cvt_pk_bf16_f32 v20, v16, v17'); e('v_cvt_pk_bf16_f32 v21, v18, v19')
    local_store(e, ['buffer_store_dwordx2 v[20:21], v6, s[8:11], s42 offen'])
    stamp(e, 3)
    e(f's_cmp_eq_u32 s31, {NSTEP-1}'); e('s_cbranch_scc1 L_exit')
    e(f's_add_u32 s42, s42, {STEP_SZ}')
    e('s_add_u32 s43, s32, s35'); e(f's_add_u32 s43, s43, {STEP_SZ + ST_PL}')
    e('s_cmp_lg_u32 s27, 0'); e('s_cbranch_scc1 CV_nw')
    e('s_mov_b64 exec, 0xffff'); e('buffer_load_dword v14, v12, s[8:11], s42 offen sc1')
    e('s_mov_b64 exec, 0xff'); e('buffer_load_dword v15, v12, s[8:11], s43 offen sc1'); e('s_mov_b64 exec, -1')
    e.lab('CV_nw')
    for sl in range(2):
        for it in ord_(sl, lambda t, o: f'v[{64+32*sl+8*t+o}:{64+32*sl+8*t+o+1}]'): e(it[1])
    for r in range(16, 32, 2): e(f'v_mov_b64 v[{r}:{r+1}], 0')
    e('s_add_u32 s42, s32, s36'); e('s_add_u32 s43, s42, 4096')
    e('s_waitcnt lgkmcnt(0)')
    stamp(e, 4)
    poll(e, [(32 + 4 * ks, 'v0', 's42' if ks < 4 else 's43', (ks & 3) * 1024) for ks in range(8)], 'o', sleep=OPT['sleepO'])
    stamp(e, 5)
    for ks in range(8):
        for t in range(4):
            B = wreg(24 + KREG[ks] * 4 + t) if ks in KREG else f'v[{64+32*(ks>>2)+8*t}:{64+32*(ks>>2)+8*t+7}]'
            e(f'{SMF} v[{16+4*t}:{19+4*t}], v[{32+4*ks}:{35+4*ks}], {B}, v1')
    e('s_add_u32 s31, s31, 1'); e(f's_add_u32 s32, s32, {STEP_SZ}')
    e(f's_add_u32 s42, s32, {ST_PR}'); e(f's_add_u32 s43, s32, {ST_PL}')
    e('s_nop 2')
    for c in range(2):
        a = 16 + 8 * c
        for r in range(4): e(f'v_permlane32_swap_b32 v{a+r}, v{a+4+r}')
        e(f'v_pk_add_f32 v[{a}:{a+1}], v[{a}:{a+1}], v[{a+4}:{a+5}]'); e(f'v_pk_add_f32 v[{a+2}:{a+3}], v[{a+2}:{a+3}], v[{a+6}:{a+7}]')
        for r in range(4): e(f'ds_write_b32 v11, v{a+r} offset:{c*4096+r*128}')
    e('s_waitcnt lgkmcnt(0)')
    e('s_barrier')
    e('s_cmp_ge_u32 s27, 2'); e('s_cbranch_scc1 CV_nr')
    for w in range(4): e(f'ds_read_b128 v[{36+4*w}:{39+4*w}], v7 offset:{w*1024}')
    e('s_waitcnt lgkmcnt(2)')
    e('v_pk_add_f32 v[36:37], v[36:37], v[40:41]'); e('v_pk_add_f32 v[38:39], v[38:39], v[42:43]')
    e('s_waitcnt lgkmcnt(0)')
    e('v_pk_add_f32 v[44:45], v[44:45], v[48:49]'); e('v_pk_add_f32 v[46:47], v[46:47], v[50:51]')
    e('v_pk_add_f32 v[36:37], v[36:37], v[44:45]'); e('v_pk_add_f32 v[38:39], v[38:39], v[46:47]')
    e('v_cvt_pk_bf16_f32 v24, v36, v37'); e('v_cvt_pk_bf16_f32 v25, v38, v39')
    e('buffer_store_dwordx2 v[24:25], v13, s[8:11], s42 offen sc1')
    local_store(e, ['buffer_store_dwordx2 v[24:25], v13, s[8:11], s43 offen'])
    e.lab('CV_nr')
    stamp(e, 6)
    stamp_flush(e)
    e('s_branch CV_top')

def gen_chain(e):
    gen_P(e); gen_VO(e)
```

```python
from common import *
def gen_ln(e, name='ln_kernel'):
    e.raw(f'.globl {name}\n.p2align 8\n.type {name},@function\n{name}:')
    e('s_cmp_ge_u32 s2, 256')
    e('s_cbranch_scc1 LN_end')
    e('s_load_dwordx4 s[4:7], s[0:1], 0')
    e('s_load_dwordx2 s[16:17], s[0:1], 104')
    e('v_and_b32 v1, 63, v0')
    e('v_lshrrev_b32 v2, 6, v0')
    e('s_waitcnt lgkmcnt(0)')
    srd(e, 8, 4, 4 * MB)
    srd(e, 12, 16, WS_SIZE)
    srd(e, 20, 6, 16 * KB)
    e('s_cmp_ge_u32 s2, 128')
    e('s_cbranch_scc1 LN_init')
    e('v_lshrrev_b32 v3, 4, v1')
    e('v_and_b32 v4, 15, v1')
    e('v_lshlrev_b32 v5, 11, v4')
    e('v_lshl_add_u32 v5, v2, 9, v5')
    e('v_lshl_add_u32 v5, v3, 3, v5')
    e('s_lshl_b32 s3, s2, 15')
    D = 16
    for kk in range(8):
        e(f'buffer_load_dwordx2 v[{D+4*kk}:{D+4*kk+1}], v5, s[8:11], s3 offen offset:{kk*64}')
        e(f'buffer_load_dwordx2 v[{D+4*kk+2}:{D+4*kk+3}], v5, s[8:11], s3 offen offset:{kk*64+32}')
    e('v_lshlrev_b32 v6, 6, v4')
    e('v_lshl_add_u32 v7, v2, 2, v3')
    e('v_lshl_add_u32 v7, v7, 2, v6')
    F = 48
    for n in range(32):
        if n % 2 == 0: e(f's_waitcnt vmcnt({15 - n // 2})')
        e(f'v_lshlrev_b32 v{F+2*n}, 16, v{D+n}')
        e(f'v_and_b32 v{F+2*n+1}, 0xffff0000, v{D+n}')
    def reduce(src):
        pass
    for c in range(4): e(f'v_add_f32 v{8+c}, v{F+c}, v{F+4+c}')
    for n in range(8, 64): e(f'v_add_f32 v{8+n%4}, v{8+n%4}, v{F+n}')
    def finish(off):
        e('v_add_f32 v8, v8, v9'); e('v_add_f32 v10, v10, v11'); e('v_add_f32 v8, v8, v10')
        e(f'ds_write_b32 v7, v8 offset:{off}')
        e('s_waitcnt lgkmcnt(0)'); e('s_barrier')
        for q in range(4): e(f'ds_read_b128 v[{D+4*q}:{D+4*q+3}], v6 offset:{off+16*q}')
        e('s_waitcnt lgkmcnt(0)')
        for c in range(4): e(f'v_add_f32 v{8+c}, v{D+c}, v{D+4+c}')
        for n in range(8, 16): e(f'v_add_f32 v{8+n%4}, v{8+n%4}, v{D+n}')
        e('v_add_f32 v8, v8, v9'); e('v_add_f32 v10, v10, v11'); e('v_add_f32 v8, v8, v10')
        e('v_mul_f32 v8, 0x3a800000, v8')
    finish(0)
    e('v_mov_b32 v12, v8')
    for n in range(64):
        e(f'v_sub_f32 v13, v{F+n}, v12')
        if n < 4: e(f'v_mul_f32 v{8+n}, v13, v13')
        else: e(f'v_fmac_f32 v{8+n%4}, v13, v13')
    finish(1024)
    e('v_cvt_pk_bf16_f32 v13, v12, v8')
    e('v_lshlrev_b32 v12, 16, v13')
    e('v_and_b32 v8, 0xffff0000, v13')
    e('v_add_f32 v8, 0x3727c5ac, v8')
    e('v_cvt_pk_bf16_f32 v8, v8, v8')
    e('v_lshlrev_b32 v8, 16, v8')
    e('v_sqrt_f32 v8, v8')
    e('s_nop 0')
    e('v_cvt_pk_bf16_f32 v8, v8, v8')
    e('v_lshlrev_b32 v8, 16, v8')
    e('v_rcp_f32 v8, v8')
    e('v_lshlrev_b32 v5, 4, v1')
    e('v_lshl_add_u32 v5, v2, 20, v5')
    e('s_lshl_b32 s3, s2, 10')
    for n in range(32):
        e(f'v_sub_f32 v{F+2*n}, v{F+2*n}, v12')
        e(f'v_sub_f32 v{F+2*n+1}, v{F+2*n+1}, v12')
        e(f'v_cvt_pk_bf16_f32 v13, v{F+2*n}, v{F+2*n+1}')
        e(f'v_lshlrev_b32 v14, 16, v13')
        e(f'v_and_b32 v15, 0xffff0000, v13')
        e(f'v_mul_f32 v14, v14, v8')
        e(f'v_mul_f32 v15, v15, v8')
        e(f'v_cvt_pk_bf16_f32 v{D+n}, v14, v15')
        if n % 4 == 3:
            kk = n // 4
            e(f'buffer_store_dwordx4 v[{D+4*kk}:{D+4*kk+3}], v5, s[12:15], s3 offen')
            e(f's_add_u32 s3, s3, {128*KB}')
    e('s_endpgm')
    e.lab('LN_init')
    e('s_sub_u32 s24, s2, 128')
    for r in range(4): e(f'v_mov_b32 v{8+r}, {hex(SENT)}')
    e('v_lshlrev_b32 v5, 4, v0')
    startA = WS_STEP + 64 * KB
    endA = WS_STEP + 64 * STEP_SZ
    e(f's_mov_b32 s14, {hex(endA)}')
    e('s_lshl_b32 s3, s24, 12')
    e(f's_add_u32 s3, s3, {hex(startA)}')
    npass = -(-(endA - startA) // (512 * KB))
    for p in range(npass):
        e('buffer_store_dwordx4 v[8:11], v5, s[12:15], s3 offen')
        e(f's_add_u32 s3, s3, {512*KB}')
    e(f's_mov_b32 s14, {hex(WS_SIZE)}')
    for r in range(4): e(f'v_mov_b32 v{16+r}, 0')
    e('s_cmp_ge_u32 s24, 16')
    e('s_cbranch_scc1 LN_mem0')
    e('s_lshl_b32 s3, s24, 12')
    e(f's_add_u32 s3, s3, {hex(WS_CNT)}')
    e('buffer_store_dwordx4 v[16:19], v5, s[12:15], s3 offen')
    e('s_endpgm')
    e.lab('LN_mem0')
    e('s_cmp_ge_u32 s24, 20')
    e('s_cbranch_scc1 LN_end')
    e('s_sub_u32 s24, s24, 16')
    e('s_lshl_b32 s3, s24, 8')
    e('v_add_u32 v3, s3, v0')
    e('v_and_b32 v4, 7, v3')
    e('v_lshlrev_b32 v4, 11, v4')
    e('v_lshrrev_b32 v6, 5, v3')
    e('v_lshl_add_u32 v4, v6, 6, v4')
    e('v_bfe_u32 v6, v3, 4, 1')
    e('v_lshl_add_u32 v4, v6, 4, v4')
    e('v_bfe_u32 v6, v3, 3, 1')
    e('v_lshl_add_u32 v4, v6, 2, v4')
    for a in range(4):
        e(f'buffer_load_dword v{12+a}, v4, s[20:23], 0 offen offset:{32*(a&1) + 8*(a>>1)}')
    e('v_lshlrev_b32 v3, 4, v3')
    e('s_waitcnt vmcnt(0)')
    for a in range(4):
        e(f'v_cmp_eq_u32 vcc, v8, v{12+a}')
        e('s_nop 1')
        e(f'v_cndmask_b32 v{12+a}, v{12+a}, -1, vcc')
    for off, R in ((ST_PR, 12), (ST_PL, 12), (ST_PR + 16*KB, 16), (ST_PL + 16*KB, 16)):
        e(f's_mov_b32 s3, {hex(WS_STEP + off)}')
        e(f'buffer_store_dwordx4 v[{R}:{R+3}], v3, s[12:15], s3 offen')
    e.lab('LN_end')
    e('s_endpgm')
```

```python
from build import *
import k_chain, sys
out = 't_split.s'
for a in sys.argv[1:]:
    k, v = a.split('=')
    if k == 'out': out = v
    else: k_chain.OPT[k] = int(v)
allw = list(range(256))
t1 = [T(T_QK, a, h, 1) for a in (0, 1) for h in range(32)] + [T(T_VV, a, hp, 1) for a in (0, 1) for hp in range(16)]
for r in range(1, 8):
    t1 += [T(T_QK, 2*r, h) for h in range(32)] + [T(T_VV, 2*r, hp) for hp in range(16)]
for r in range(8): t1 += [T(T_FU, 2*r, f) for f in range(28)]
t2 = [T(T_FD, a, n, 1) for a in range(16) for n in range(4)]
t3 = [T(T_WO, a, n, 1, mode=1, nk=16) for a in range(14) for n in range(4)]
t3 += [T(T_WO, 14, n, 1, k0=4*k, nk=4, p=1+k) for n in range(4) for k in range(4)]
t3 += [T(T_WO, 15, n, 1, k0=k, nk=1, p=1+k) for n in range(4) for k in range(16)]
t3 += [T(T_FIN, 14, 4*k, nk=4, p=5) for k in range(4)] + [T(T_FIN, 15, k, nk=1, p=17) for k in range(16)]
src = build([('b1_kernel', rr_assign(t1, allw), 0), ('c_kernel', rr_assign(t2, BULK), 1), ('b3_kernel', rr_assign(t3, allw), 0)], chain_gen=k_chain.gen_chain)
open(out, 'w').write(src)
```

```python
import sys
from common import *
from k_ln import gen_start
from k_bulk import *
NAME = 'parallel_sum__memory_aug_recurrent_mem_tr__glu_gated_swiglu__prompt'
TL = 16

def is_chain(wg): return (wg & 7) in XG
BULK = [w for w in range(256) if not is_chain(w)]

def T(ty, a=0, b=0, nj4=0, mode=0, k0=0, nk=1, p=0, urgent=0, hb=0):
    return dict(hb=hb, t=ty, a=a, b=b, nj4=nj4, mode=mode, k0=k0, nk=nk, p=p, urgent=urgent)

def finalize(lists):
    tab = []
    for wg in range(256):
        l = lists.get(wg, [])
        assert len(l) < TL - 1
        row = []
        for k, t in enumerate(l):
            pref = 0
            if k > 0:
                p = l[k - 1]
                if p['t'] != T_FIN and t['t'] in (T_QK, T_VV, T_FU) and p['nj4'] == t['nj4'] and not p['urgent']:
                    pref = 1
            row.append(desc(t['t'], t['a'], t['b'], t['nj4'], pref, t['mode'], t['k0'], t['nk'], t['p'], t['hb']))
        row += [0] * (TL - len(row))
        tab += row
    return tab

def build(lists, chain_gen):
    e = E()
    K = NAME + '_kernel'
    hdr = open('cdna_kernels/' + NAME + '.s.ref').read().split('\n')
    for l in hdr:
        if l.startswith('; Override'): break
        e.raw(l)
    e.raw('; @launch grid=(256,1,1) block=(256,1,1) lds=163840')
    e.raw('.amdgcn_target "amdgcn-amd-amdhsa--gfx950"\n.text')
    e.raw(f'.globl {K}\n.p2align 8\n.type {K},@function\n{K}:')
    e('s_cmp_ge_u32 s2, 256')
    e('s_cbranch_scc1 L_exit')
    load_ptrs(e)
    e('s_getpc_b64 s[38:39]')
    e.lab('PC_0')
    e('s_add_u32 s38, s38, TABLE_0-PC_0'); e('s_addc_u32 s39, s39, 0')
    e(f's_mul_i32 s3, s2, {TL*4}')
    e('s_add_u32 s38, s38, s3'); e('s_addc_u32 s39, s39, 0')
    e('v_lshrrev_b32 v18, 6, v0')
    e('s_nop 0')
    e('v_readfirstlane_b32 s27, v18')
    e('s_lshr_b32 s28, s27, 1'); e('s_and_b32 s29, s27, 1')
    e('s_waitcnt lgkmcnt(0)')
    e('s_load_dword s31, s[38:39], 0')
    srd(e, 8, P_WS, WS_SIZE)
    srd(e, 68, P_DBG, 256)
    e('s_and_b32 s3, s2, 7')
    e('s_lshr_b32 s34, s2, 3')
    e('s_mov_b32 s33, 0')
    e(f's_cmp_eq_u32 s3, {XG[0]}'); e('s_cbranch_scc1 L_chain')
    e('s_mov_b32 s33, 1')
    e(f's_cmp_lg_u32 s3, {XG[1]}'); e('s_cbranch_scc1 L_bulk')
    e.lab('L_chain')
    e('s_waitcnt lgkmcnt(0)')
    e('s_cmp_lt_u32 s34, 16'); e('s_cbranch_scc1 L_chainP')
    e('s_branch L_chainV')
    e.lab('L_bulk')
    bulk_init(e)
    tstamp(e)
    gen_start(e)
    gen_sched(e)
    e.lab('L_abort')
    e.lab('L_exit')
    e('s_endpgm')
    gen_gemm(e, 8)
    gen_gemm(e, 4)
    gen_gemm(e, 2)
    gen_fin(e)
    chain_gen(e)
    e.raw('.p2align 6')
    e.raw('.type TABLE_0,@object')
    e.lab('TABLE_0')
    tab = finalize(lists)
    for i in range(0, len(tab), 16):
        e.raw('.long ' + ','.join(hex(x) for x in tab[i:i+16]))
    e.raw(f'.size TABLE_0, {len(tab)*4}')
    e.raw('.section .rodata,"a"')
    e.raw(kd(K, 512, 102, 256))
    return e.text()
```

```python
MB = 1 << 20
KB = 1 << 10
WS_XN  = 0
WS_QKV = 4 * MB
WS_H   = 52 * MB
WS_O   = 66 * MB
WS_STEP = 82 * MB
STEP_SZ = 256 * KB
ST_PR = 0
ST_PL = 64 * KB
ST_OM = 96 * KB
ST_VM = 160 * KB
ST_FL = 224 * KB
ST_F2 = 228 * KB
WS_CNT = 95 * MB
WS_Y   = 96 * MB
WS_DBG = 224 * MB
WS_SIZE = 256 * MB
SENT = 0xFFBFFFBF
C_KV  = 0
C_FU  = 16
C_O   = 32
C_HP  = 48
C_Y   = 64
NCNT = 128
D_XN = 0
D_CH = 8
D_PAR = 128
D_XGO = 132
MISC_WG = 250
XG = (0, 1)

class E:
    def __init__(s): s.L = []; s.n = 0
    def __call__(s, t):
        for x in t.split('\n'): s.L.append('  ' + x.strip())
    def many(s, l):
        for x in l: s(x)
    def lab(s, t): s.L.append(t + ':')
    def raw(s, t): s.L.append(t)
    def uniq(s, p='L'):
        s.n += 1; return f'{p}_{s.n}'
    def text(s): return '\n'.join(s.L) + '\n'

def kd(name, vgpr, sgpr, accum):
    return f'''.p2align 6
.amdhsa_kernel {name}
  .amdhsa_next_free_vgpr {vgpr}
  .amdhsa_next_free_sgpr {sgpr}
  .amdhsa_accum_offset {accum}
  .amdhsa_group_segment_fixed_size 0
  .amdhsa_kernarg_size 112
  .amdhsa_user_sgpr_count 2
  .amdhsa_user_sgpr_kernarg_segment_ptr 1
  .amdhsa_system_sgpr_workgroup_id_x 1
.end_amdhsa_kernel
'''
def srd(e, d, lo, size):
    e(f's_mov_b32 s{d}, s{lo}'); e(f's_mov_b32 s{d+1}, s{lo+1}')
    e(f's_mov_b32 s{d+2}, {hex(size)}'); e(f's_mov_b32 s{d+3}, 0x20000')
```

```python
from common import *
T_END, T_QK, T_VV, T_FU, T_FD, T_WO, T_FIN = 0, 1, 2, 3, 4, 5, 6
def desc(t, a=0, b=0, nj4=0, pref=0, mode=0, k0=0, nk=1, p=0, hb=0):
    return t | (nj4 == 1) << 3 | (nj4 == 2) << 6 | hb << 7 | pref << 4 | mode << 5 | a << 8 | b << 12 | k0 << 18 | (nk - 1) << 22 | p << 26
F_A, F_B, F_K0, F_NK, F_P = 0x40008, 0x6000c, 0x40012, 0x40016, 0x5001a
P_X, P_WQ, P_WK, P_WV, P_WO, P_W1, P_W3, P_W2, P_OUT, P_DBG, P_WS = 56, 60, 62, 64, 66, 72, 74, 76, 78, 80, 82
S = 4
RINGM = 0x1ffff
SPIN_MAX = 1 << 20

def acc(NJ, i, j):
    t = i * NJ + j
    return ('v', 32 + 4 * t) if t < 56 else ('a', (t - 56) * 4)
def rr(r, n=4): return f'{r[0]}[{r[1]}:{r[1]+n-1}]'
def wfrag(half, i): return ('a', 32 + half * 16 + i * 4)
def xfrag(NJ, st, j): return ('a', 64 + st * 32 + j * 4)

def load_ptrs(e):
    e('s_load_dwordx4 s[56:59], s[0:1], 0')
    e('s_load_dwordx8 s[60:67], s[0:1], 16')
    e('s_load_dwordx8 s[72:79], s[0:1], 64')
    e('s_load_dwordx4 s[80:83], s[0:1], 96')

def wait_counter(e, offs_sgpr, target, tag, srd_='s[8:11]', slp=8, wg=True, imm=0):
    L = e.uniq('W' + tag)
    if wg: e('s_cmp_lg_u32 s27, 0'); e(f's_cbranch_scc1 {L}_ok')
    e('s_mov_b32 s4, 0')
    e.lab(L)
    e(f'buffer_load_dword v18, off, {srd_}, {offs_sgpr} offset:{imm} sc1')
    e('s_add_u32 s4, s4, 1')
    e(f's_cmp_gt_u32 s4, {SPIN_MAX}')
    e('s_cbranch_scc1 L_abort')
    e('s_waitcnt vmcnt(0)')
    e('v_readfirstlane_b32 s3, v18')
    e(f's_cmp_ge_u32 s3, {target}')
    e(f's_cbranch_scc1 {L}_ok')
    e(f's_sleep {slp}')
    e(f's_branch {L}')
    e.lab(L + '_ok')
    if wg: e('s_barrier')

def signal(e):
    L = e.uniq('SIG')
    e('s_cmp_lg_u32 s27, 0')
    e(f's_cbranch_scc1 {L}')
    e('v_mov_b32 v18, s37')
    e('s_mov_b64 exec, 1')
    e('buffer_atomic_add v18, off, s[8:11], s35 sc1')
    e('s_cmp_eq_u32 s36, 0')
    e(f's_cbranch_scc1 {L}_1')
    e('buffer_atomic_add v18, off, s[8:11], s36 sc1')
    e.lab(L + '_1')
    e('s_mov_b64 exec, -1')
    e.lab(L)
    e('s_mov_b32 s35, 0')

def bulk_init(e):
    e('v_and_b32 v18, 63, v0')
    e('v_lshlrev_b32 v0, 4, v18')
    e('v_lshrrev_b32 v19, 2, v18')
    e('v_and_b32 v20, 7, v19')
    e('v_lshlrev_b32 v19, 8, v19')
    e('v_and_b32 v21, 3, v18')
    e('v_lshl_add_u32 v19, v21, 3, v19')
    e('v_add_u32 v19, 16384, v19')
    e('s_lshl_b32 s3, s29, 2')
    e('v_xor_b32 v20, s3, v20')
    for n in range(4):
        e(f'v_xor_b32 v21, {n}, v20')
        e(f'v_lshl_add_u32 v{2+n}, v21, 5, v19')
    e('v_lshrrev_b32 v19, 4, v18')
    e('s_lshl_b32 s3, s29, 4')
    e('v_add_u32 v16, s3, v19')
    e('v_bfe_u32 v20, v18, 1, 3')
    e('v_xor_b32 v20, v20, v19')
    e('v_and_b32 v21, 1, v18')
    e('v_lshlrev_b32 v21, 4, v21')
    e('v_lshl_add_u32 v17, v20, 5, v21')
    e('s_lshl_b32 s42, s27, 12')
    e('s_add_u32 s42, s42, 16384')
    e('s_mov_b32 s16, s8'); e('s_mov_b32 s17, s9'); e('s_mov_b32 s18, s10'); e('s_mov_b32 s19, 0x20000')
    e('s_mov_b32 s12, s8'); e('s_mov_b32 s13, s9'); e('s_mov_b32 s14, 0'); e('s_mov_b32 s15, 0x20000')
    e('s_mov_b32 s35, 0'); e('s_mov_b32 s87, 0')
    if BOPT['tstamp']:
        e('s_lshl_b32 s86, s2, 14'); e('s_lshl_b32 s3, s27, 10'); e('s_add_u32 s86, s86, s3'); e(f's_add_u32 s86, s86, {WS_DBG}'); e('s_mov_b32 s30, 0')

def w_voffsets(e, rs, vmode):
    e(f'v_mul_u32_u24 v18, {rs}, v16')
    e('v_xor_b32 v20, 0x80, v17')
    if vmode:
        e('v_and_b32 v19, 0x80, v17'); e('v_add_u32 v19, v19, v17')
        e('v_add_u32 v12, v18, v19')
        e('v_and_b32 v19, 0x80, v20'); e('v_add_u32 v20, v19, v20')
    else:
        e('v_add_u32 v12, v18, v17')
    d = 4 * rs - 1024
    e('v_add_u32 v13, v18, v20')
    e(f'v_add_u32 v13, {d}, v13')
    e(f'v_add_u32 v14, {2*d}, v12')
    e(f'v_add_u32 v15, {2*d}, v13')

def setup_load(e, dreg, tag):
    L = 'SL' + tag
    e(f's_bfe_u32 s4, {dreg}, {F_A}')
    e(f's_bfe_u32 s5, {dreg}, {F_B}')
    e(f's_bfe_u32 s20, {dreg}, 0x50007'); e('s_lshl_b32 s20, s20, 12')
    e('s_mov_b32 s18, s10')
    e('s_mov_b32 s40, 32')
    e(f's_and_b32 s3, {dreg}, 7')
    e(f's_cmp_eq_u32 s3, {T_VV}'); e(f's_cbranch_scc1 {L}_v')
    e(f's_cmp_eq_u32 s3, {T_FU}'); e(f's_cbranch_scc1 {L}_fu')
    e(f's_cmp_eq_u32 s3, {T_FD}'); e(f's_cbranch_scc1 {L}_fd')
    e(f's_cmp_eq_u32 s3, {T_WO}'); e(f's_cbranch_scc1 {L}_wo')
    e('s_cmp_eq_u32 s28, 0')
    e(f's_cselect_b32 s12, s{P_WQ}, s{P_WK}'); e(f's_cselect_b32 s13, s{P_WQ+1}, s{P_WK+1}')
    e(f's_mov_b32 s14, {8*MB}'); e(f's_mov_b32 s22, {32*8192}')
    e('s_lshl_b32 s21, s5, 8')
    w_voffsets(e, 8192, 0)
    e(f's_branch {L}_done')
    e.lab(L + '_v')
    e(f's_mov_b32 s12, s{P_WV}'); e(f's_mov_b32 s13, s{P_WV+1}')
    e(f's_mov_b32 s14, {8*MB}'); e(f's_mov_b32 s22, {32*8192}')
    e('s_lshl_b32 s21, s5, 9'); e('s_lshl_b32 s3, s28, 8'); e('s_add_u32 s21, s21, s3')
    w_voffsets(e, 8192, 0)
    e(f's_branch {L}_done')
    e.lab(L + '_fu')
    e('s_cmp_eq_u32 s28, 0')
    e(f's_cselect_b32 s12, s{P_W1}, s{P_W3}'); e(f's_cselect_b32 s13, s{P_W1+1}, s{P_W3+1}')
    e(f's_mov_b32 s14, {7*MB}'); e(f's_mov_b32 s22, {32*7168}')
    e('s_lshl_b32 s21, s5, 8')
    w_voffsets(e, 7168, 0)
    e(f's_branch {L}_done')
    e.lab(L + '_fd')
    e(f's_mov_b32 s12, s{P_W2}'); e(f's_mov_b32 s13, s{P_W2+1}')
    e(f's_mov_b32 s14, {7*MB}'); e(f's_mov_b32 s22, {32*2048}')
    e('s_lshl_b32 s21, s5, 9'); e('s_lshl_b32 s3, s28, 8'); e('s_add_u32 s21, s21, s3')
    e(f's_add_u32 s20, s20, {WS_H}')
    e('s_mov_b32 s40, 112')
    w_voffsets(e, 2048, 0)
    e(f's_branch {L}_done')
    e.lab(L + '_wo')
    e(f's_mov_b32 s12, s{P_WO}'); e(f's_mov_b32 s13, s{P_WO+1}')
    e(f's_mov_b32 s14, {8*MB}'); e(f's_mov_b32 s22, {32*2048}')
    e('s_lshl_b32 s21, s5, 9'); e('s_lshl_b32 s3, s28, 8'); e('s_add_u32 s21, s21, s3')
    e(f's_bfe_u32 s3, {dreg}, {F_K0}')
    e('s_lshl_b32 s4, s3, 19'); e('s_add_u32 s21, s21, s4')
    e('s_lshl_b32 s4, s3, 20'); e('s_add_u32 s20, s20, s4')
    e(f's_add_u32 s20, s20, {WS_O}')
    e(f's_bfe_u32 s40, {dreg}, {F_NK}'); e('s_add_u32 s40, s40, 1'); e('s_lshl_b32 s40, s40, 3')
    w_voffsets(e, 2048, 0)
    e.lab(L + '_done')

BOPT = dict(tstamp=0, wpf=1)
def tstamp(e):
    if not BOPT['tstamp']: return
    e('s_memrealtime s[84:85]'); e('s_waitcnt lgkmcnt(0)')
    e('v_mov_b32 v18, s84'); e('v_mov_b32 v19, s30')
    e('s_mov_b64 exec, 1'); e('buffer_store_dwordx2 v[18:19], off, s[8:11], s86'); e('s_mov_b64 exec, -1')
    e('s_add_u32 s86, s86, 8')

def next_desc(e):
    tstamp(e)
    e('s_mov_b32 s30, s31')
    e('s_add_u32 s38, s38, 4'); e('s_addc_u32 s39, s39, 0')
    e('s_load_dword s31, s[38:39], 0')

def dep_wait(e):
    L = e.uniq('DW')
    e('s_cmp_lg_u32 s87, 0'); e(f's_cbranch_scc1 {L}_x')
    wait_counter(e, '0', 1, 'xn', 's[68:71]', 2, imm=D_XGO)
    e('s_mov_b32 s87, 1')
    e.lab(L + '_x')
    e('s_and_b32 s3, s30, 7')
    e(f's_cmp_lt_u32 s3, {T_FD}'); e(f's_cbranch_scc1 {L}')
    e(f's_bfe_u32 s7, s30, {F_A}'); e('s_lshl_b32 s7, s7, 7')
    e(f's_cmp_eq_u32 s3, {T_FD}')
    e(f's_mov_b32 s5, {WS_CNT + C_O*128}'); e(f's_cmov_b32 s5, {WS_CNT + C_FU*128}')
    e('s_cselect_b32 s6, 28, 32')
    e('s_add_u32 s7, s7, s5')
    e(f's_cmp_lg_u32 s7, {WS_CNT + (C_O+15)*128}'); e(f's_cbranch_scc1 {L}_g')
    e(f's_bfe_u32 s7, s30, {F_K0}'); e('s_lshl_b32 s7, s7, 7'); e(f's_add_u32 s7, s7, {WS_CNT + C_HP*128}'); e('s_mov_b32 s6, 2')
    e.lab(L + '_g')
    wait_counter(e, 's7', 's6', 'dep', slp=3)
    e.lab(L)
    tstamp(e)

def gen_gemm(e, NJ):
    G = f'G{NJ}'
    NX = NJ // 2
    ND = NX + 4
    NM = 4 * NJ
    def dmaX(i): return f'buffer_load_dwordx4 v11, s[16:19], s20 offen offset:{i*1024} sc1 lds'
    def dmaW(i): return f'buffer_load_dwordx4 v{12+i}, s[12:15], s21 offen offset:{i*1024} lds'
    preX = ['s_add_u32 m0, s24, s41']; postX = [f's_add_u32 s20, s20, {128*KB}']
    preW = ['s_add_u32 m0, s24, s42']
    postW = ['s_add_u32 s21, s21, s22', 's_add_u32 s24, s24, 32768', f's_and_b32 s24, s24, {RINGM}']
    def rw(half):
        r = []
        for i in range(4):
            b = wfrag(half, i)[1]
            r += [f'ds_read_b64_tr_b16 a[{b}:{b+1}], v{7+i} offset:{half*8192}', f'ds_read_b64_tr_b16 a[{b+2}:{b+3}], v{7+i} offset:{half*8192+4096}']
        return r
    def rx(st): return [f'ds_read_b128 {rr(xfrag(NJ,st,j))}, v6 offset:{j*1024}' for j in range(NJ)]
    adv = ['s_add_u32 s25, s25, 32768', f's_and_b32 s25, s25, {RINGM}', 'v_add_u32 v6, s25, v1'] + [f'v_add_u32 v{7+i}, s25, v{2+i}' for i in range(4)]
    def rdB(st):
        a = rw(0); b = rx(st); return a[:2] + b + a[2:]
    def phase(half, st, rd, pre, dmas, post, extra, first=False, head=()):
        fill = [[] for _ in range(NM)]
        rpg = {8: 1, 4: 2, 2: 3}[NJ]
        for n, x in enumerate(rd): fill[n // rpg].append(x)
        nr = -(-len(rd) // rpg)
        for n, x in enumerate(extra): fill[min(NM - 1, nr + n // rpg)].append(x)
        if NJ == 8: pos = (18, 22, 26, 30)
        elif NJ == 4: pos = (8, 10, 12, 14) if len(dmas) == 4 else (9, 13)
        else: pos = (3, 4, 5, 6) if len(dmas) == 4 else (5,)
        fill[pos[0] - 1] += pre
        for i, x in enumerate(dmas): fill[pos[i]].append(x)
        fill[NM - 1] += post
        e.many(head)
        k = 0
        for i in range(4):
            for j in range(NJ):
                ac = rr(acc(NJ, half * 4 + i, j))
                e(f'v_mfma_f32_16x16x32_bf16 {ac}, {rr(wfrag(half,i))}, {rr(xfrag(NJ,st,j))}, {"0" if first else ac}')
                e.many(fill[k]); k += 1
    DX = [dmaX(i) for i in range(NX)]; DW = [dmaW(i) for i in range(4)]
    e.lab(G + '_cold')
    e(f's_mul_i32 s41, s27, {NX*1024}')
    e('v_add_u32 v11, s41, v0')
    e(f's_mul_i32 s3, s28, {NJ*1024}')
    e('v_add_u32 v1, s3, v0')
    setup_load(e, 's30', G + 'c')
    e('s_mov_b32 s24, 0'); e('s_mov_b32 s25, 0')
    for t in range(S - 1):
        e.many(preW); e('s_nop 0'); e.many(DW); e.many(postW)
    dep_wait(e)
    for t in range(S):
        e(f's_add_u32 m0, s41, {t*32768}'); e('s_nop 0'); e.many(DX); e.many(postX)
    e('v_mov_b32 v6, v1')
    for i in range(4): e(f'v_mov_b32 v{7+i}, v{2+i}')
    e(f's_waitcnt vmcnt({NX})')
    e('s_barrier')
    e.many(rw(0) + rx(0))
    e.lab(G + '_task')
    e(f's_sub_u32 s32, s40, {S+1}')
    e('s_sub_u32 s33, s40, 1')
    e('s_cmp_lg_u32 s35, 0')
    e('s_cselect_b32 s43, 3, s32')
    bar = [f's_waitcnt lgkmcnt(0) vmcnt({ND*(S-2)})', 's_barrier']
    phase(0, 0, rw(1), preW, DW, postW, adv, first=True, head=['s_waitcnt lgkmcnt(0)'])
    e.many(bar)
    phase(1, 0, rdB(1), preX, DX, postX, [], first=True)
    phase(0, 1, rw(1), preW, DW, postW + ['s_mov_b32 s26, 1'], adv, head=['s_waitcnt lgkmcnt(0)'])
    e.raw('.p2align 6')
    e.lab(G + '_loop')
    e.many(bar)
    phase(1, 1, rdB(0), preX, DX, postX + ['s_cmp_eq_u32 s26, s33'], [])
    e(f's_cbranch_scc1 {G}_epi')
    phase(0, 0, rw(1), preW, DW, postW + ['s_cmp_eq_u32 s26, s43'], adv, head=['s_waitcnt lgkmcnt(0)'])
    e(f's_cbranch_scc1 {G}_event')
    e.lab(G + '_back')
    e.many(bar)
    phase(1, 0, rdB(1), preX, DX, postX, [])
    phase(0, 1, rw(1), preW, DW, postW + ['s_add_u32 s26, s26, 2'], adv, head=['s_waitcnt lgkmcnt(0)'])
    e(f's_branch {G}_loop')
    e.lab(G + '_event')
    e('s_cmp_eq_u32 s26, s32')
    e(f's_cbranch_scc1 {G}_switch')
    signal(e)
    e('s_mov_b32 s43, s32')
    e(f's_branch {G}_back')
    e.lab(G + '_switch')
    e('s_bitcmp1_b32 s31, 4')
    e(f's_cbranch_scc1 {G}_sw1')
    e('s_mov_b32 s14, 0'); e('s_mov_b32 s18, 0')
    e(f's_branch {G}_back')
    e.lab(G + '_sw1')
    setup_load(e, 's31', G + 's')
    e(f's_branch {G}_back')
    e.lab(G + '_epi')
    e(f's_bfe_u32 s4, s30, {F_A}')
    e(f's_bfe_u32 s5, s30, {F_B}')
    e('s_bfe_u32 s6, s30, 0x50007'); e('s_lshl_b32 s6, s6, 2')
    e(f's_mul_i32 s3, s28, {NJ}')
    e('s_add_u32 s6, s6, s3')
    e('s_lshl_b32 s35, s4, 7')
    e(f's_add_u32 s35, s35, {WS_CNT}')
    e('s_mov_b32 s37, 1')
    e('s_and_b32 s3, s30, 7')
    if NJ == 8:
        e(f's_cmp_eq_u32 s3, {T_FU}'); e(f's_cbranch_scc1 {G}_fu')
    else:
        e(f's_cmp_ge_u32 s3, {T_FD}'); e(f's_cbranch_scc1 {G}_fd')
    def pack(m, j):
        a0 = acc(NJ, 2 * m, j); a1 = acc(NJ, 2 * m + 1, j)
        R0 = a0[1]
        if a1[0] == 'a':
            R1 = 20 + 4 * (j & 1)
            for q in range(4): e(f'v_accvgpr_read_b32 v{R1+q}, a{a1[1]+q}')
        else: R1 = a1[1]
        e(f'v_cvt_pk_bf16_f32 v{R0}, v{R0}, v{R0+1}')
        e(f'v_cvt_pk_bf16_f32 v{R0+1}, v{R0+2}, v{R0+3}')
        e(f'v_cvt_pk_bf16_f32 v{R0+2}, v{R1}, v{R1+1}')
        e(f'v_cvt_pk_bf16_f32 v{R0+3}, v{R1+2}, v{R1+3}')
        return R0
    def sig2(base):
        e(f's_add_u32 s35, s35, {base*128}')
        if NJ == 8: e('s_add_u32 s36, s35, 128')
        else: e('s_mov_b32 s36, 0')
    sig2(C_KV)
    if NJ > 2: e('s_mov_b32 s37, 2')
    e('s_lshr_b32 s6, s6, 1'); e(f's_mul_i32 s6, s6, {24*KB}')
    e(f's_mul_i32 s5, s5, {1536*KB}'); e('s_add_u32 s6, s6, s5')
    e(f's_add_u32 s5, s5, {16*KB}')
    e(f's_cmp_eq_u32 s3, {T_VV}')
    e('s_cselect_b32 s5, s5, 0')
    e(f's_mov_b32 s7, {8*KB}'); e(f's_cmov_b32 s7, {1536*KB}')
    e('s_add_u32 s6, s6, s5')
    e('s_lshl_b32 s3, s29, 11'); e('s_add_u32 s6, s6, s3')
    e(f's_add_u32 s6, s6, {WS_QKV}')
    for m in range(4):
        if m == 2: e('s_add_u32 s6, s6, s7')
        for j in range(NJ):
            R = pack(m, j)
            e(f's_add_u32 s3, s6, {(j>>1)*24*KB + (j&1)*4096}')
            e(f'buffer_store_dwordx4 v[{R}:{R+3}], v0, s[8:11], s3 offen offset:{(m&1)*1024} sc1')
    e.lab(G + '_done')
    e('s_bitcmp1_b32 s31, 4')
    e('s_cbranch_scc0 L_drain')
    next_desc(e)
    e(f's_branch {G}_task')
    if NJ == 8:
        e.lab(G + '_fu')
        sig2(C_FU)
        e('s_lshl_b32 s5, s5, 2'); e('s_lshl_b32 s3, s29, 1'); e('s_add_u32 s5, s5, s3')
        e('s_lshl_b32 s5, s5, 17'); e('s_lshl_b32 s6, s6, 10'); e('s_add_u32 s6, s6, s5')
        e(f's_add_u32 s6, s6, {WS_H}')
        e('s_mov_b32 s7, 0xbfb8aa3b')
        for m in range(2):
            for j in range(NJ):
                for ii in range(2):
                    i = 2 * m + ii
                    g = acc(NJ, i, j)[1]; ua = acc(NJ, i + 4, j)
                    if ua[0] == 'a':
                        u = 28
                        for q in range(4): e(f'v_accvgpr_read_b32 v{u+q}, a{ua[1]+q}')
                    else: u = ua[1]
                    T = 20 + 4 * ii
                    for q in range(4): e(f'v_mul_f32 v{T+q}, s7, v{g+q}')
                    for q in range(4): e(f'v_exp_f32 v{T+q}, v{T+q}')
                    for q in range(0, 4, 2): e(f'v_pk_mul_f32 v[{g+q}:{g+q+1}], v[{g+q}:{g+q+1}], v[{u+q}:{u+q+1}]')
                    for q in range(4): e(f'v_add_f32 v{T+q}, 1.0, v{T+q}')
                    for q in range(4): e(f'v_rcp_f32 v{T+q}, v{T+q}')
                for ii in range(2):
                    g = acc(NJ, 2 * m + ii, j)[1]; T = 20 + 4 * ii
                    for q in range(0, 4, 2): e(f'v_pk_mul_f32 v[{g+q}:{g+q+1}], v[{g+q}:{g+q+1}], v[{T+q}:{T+q+1}]')
                R = pack(m, j)
                if j % 4 == 0: e(f's_add_u32 s3, s6, {m*128*KB + j*1024}')
                e(f'buffer_store_dwordx4 v[{R}:{R+3}], v0, s[8:11], s3 offen offset:{(j&3)*1024} sc1')
        e(f's_branch {G}_done')
    else:
        e.lab(G + '_fd')
        e('s_lshl_b32 s35, s4, 2'); e('s_add_u32 s35, s35, s5'); e('s_lshl_b32 s35, s35, 7'); e(f's_add_u32 s35, s35, {WS_CNT + C_Y*128}')
        e('s_mov_b32 s36, 0'); e(f's_mov_b32 s37, {NJ//2}')
        e('s_lshl_b32 s6, s6, 15')
        e('s_lshl_b32 s5, s5, 9'); e('s_add_u32 s6, s6, s5')
        e('s_lshl_b32 s5, s29, 7'); e('s_add_u32 s6, s6, s5')
        e('v_lshrrev_b32 v20, 4, v0')
        e('v_and_b32 v21, 15, v20'); e('v_lshlrev_b32 v21, 11, v21')
        e('v_bfe_u32 v22, v20, 4, 1'); e('v_lshl_add_u32 v21, v22, 5, v21')
        e('v_lshrrev_b32 v22, 5, v20'); e('v_lshl_add_u32 v21, v22, 4, v21')
        srd(e, 44, P_X, 4 * MB); srd(e, 48, P_WS, WS_SIZE)
        e('s_mov_b32 s7, s6')
        e(f's_bfe_u32 s5, s30, {F_P}'); e('s_lshl_b32 s5, s5, 22'); e(f's_add_u32 s5, s5, {WS_Y}')
        e(f's_cmp_eq_u32 s3, {T_FD}'); e(f's_cbranch_scc1 {G}_fd2')
        e('s_mov_b32 s46, 0')
        e('s_bitcmp1_b32 s30, 5'); e(f's_cbranch_scc0 {G}_fd2')
        wait_counter(e, 's35', 2, 'y0')
        srd(e, 44, P_WS, WS_SIZE); srd(e, 48, P_OUT, 4 * MB)
        e(f's_add_u32 s7, s6, {WS_Y}'); e('s_mov_b32 s5, 0')
        e.lab(G + '_fd2')
        e('s_add_u32 s6, s6, s5')
        for j in range(NJ):
            e(f's_add_u32 s3, s7, {j*32768}')
            for ip in range(4):
                Y = 160 + 4 * (j * 4 + ip)
                e(f'buffer_load_dwordx4 v[{Y}:{Y+3}], v21, s[44:47], s3 offen offset:{(ip>>1)*256+(ip&1)*64} sc1')
        for j in range(NJ):
            for ip in range(4):
                R0 = acc(NJ, 2 * ip, j)[1]; R1 = acc(NJ, 2 * ip + 1, j)[1]
                for q in range(4): e(f'v_permlane16_swap_b32 v{R0+q}, v{R1+q}')
        for j in range(NJ):
            e(f's_add_u32 s3, s6, {j*32768}')
            e(f's_waitcnt vmcnt({4*NJ-4})')
            for ip in range(4):
                R0 = acc(NJ, 2 * ip, j)[1]; R1 = acc(NJ, 2 * ip + 1, j)[1]; Y = 160 + 4 * (j * 4 + ip)
                for q in range(4):
                    R = (R0, R0 + 2, R1, R1 + 2)[q]
                    e(f'v_lshlrev_b32 v22, 16, v{Y+q}'); e(f'v_and_b32 v23, 0xffff0000, v{Y+q}')
                    e(f'v_pk_add_f32 v[22:23], v[22:23], v[{R}:{R+1}]')
                    e(f'v_cvt_pk_bf16_f32 v{Y+q}, v22, v23')
                e(f'buffer_store_dwordx4 v[{Y}:{Y+3}], v21, s[48:51], s3 offen offset:{(ip>>1)*256+(ip&1)*64} sc1')
        e(f's_branch {G}_done')

def gen_fin(e):
    e.lab('L_fin')
    e(f's_bfe_u32 s4, s30, {F_A}'); e(f's_bfe_u32 s5, s30, {F_B}'); e(f's_bfe_u32 s33, s30, {F_K0}')
    e('s_lshl_b32 s6, s4, 18'); e('s_lshl_b32 s5, s5, 14'); e('s_add_u32 s6, s6, s5')
    e('s_lshl_b32 s5, s27, 12'); e('s_add_u32 s6, s6, s5'); e('s_lshl_b32 s5, s33, 9'); e('s_add_u32 s6, s6, s5')
    e('v_and_b32 v20, 0x200, v0'); e('v_mul_u32_u24 v20, 3, v20'); e('v_add_u32 v20, v20, v0')
    e(f's_bfe_u32 s40, s30, {F_P}')
    e('s_lshl_b32 s7, s4, 2'); e('s_add_u32 s7, s7, s33'); e('s_lshl_b32 s7, s7, 7'); e(f's_add_u32 s7, s7, {WS_CNT + C_Y*128}')
    e('s_lshl_b32 s41, s40, 1')
    wait_counter(e, 's7', 's41', 'fin', slp=2)
    srd(e, 48, P_OUT, 4 * MB)
    e(f's_bfe_u32 s26, s30, {F_NK}')
    e.lab('FIN_u')
    e(f's_add_u32 s7, s6, {WS_Y}')
    for k in range(17):
        e(f's_cmp_gt_u32 s40, {k}'); e('s_cselect_b32 s18, s10, 0')
        e(f'buffer_load_dwordx4 v[{64+4*k}:{67+4*k}], v20, s[16:19], s7 offen sc1')
        e(f's_add_u32 s7, s7, {4*MB}')
    for k in range(17):
        e(f's_waitcnt vmcnt({16-k})')
        for d in range(4):
            R = 64 + 4 * k + d
            if k == 0: e(f'v_lshlrev_b32 v{32+2*d}, 16, v{R}'); e(f'v_and_b32 v{33+2*d}, 0xffff0000, v{R}')
            else:
                e(f'v_lshlrev_b32 v22, 16, v{R}'); e(f'v_and_b32 v23, 0xffff0000, v{R}')
                e(f'v_pk_add_f32 v[{32+2*d}:{33+2*d}], v[{32+2*d}:{33+2*d}], v[22:23]')
    for d in range(4): e(f'v_cvt_pk_bf16_f32 v{40+d}, v{32+2*d}, v{33+2*d}')
    e('buffer_store_dwordx4 v[40:43], v20, s[48:51], s6 offen')
    e(f's_add_u32 s6, s6, {16*KB}')
    e('s_sub_u32 s26, s26, 1'); e('s_cbranch_scc0 FIN_u')
    e('s_branch L_sched')

def gen_sched(e):
    e.lab('L_drain')
    e('s_waitcnt vmcnt(0) lgkmcnt(0)')
    e('s_barrier')
    signal(e)
    e.lab('L_sched')
    e('s_waitcnt lgkmcnt(0)')
    next_desc(e)
    e('s_and_b32 s3, s30, 7')
    e(f's_cmp_eq_u32 s3, {T_END}'); e('s_cbranch_scc1 L_exit')
    e(f's_cmp_eq_u32 s3, {T_FIN}'); e('s_cbranch_scc1 L_fin')
    e('s_bitcmp1_b32 s30, 3')
    e('s_cbranch_scc1 G4_cold')
    e('s_bitcmp1_b32 s30, 6')
    e('s_cbranch_scc1 G2_cold')
    e('s_branch G8_cold')
```

```python
from common import *
from k_bulk import w_voffsets, wait_counter, P_X, P_WQ, P_WK, P_WV, P_WO, SPIN_MAX
MEMB = 128 * KB
KVB = 144 * KB
MB_ = MEMB + 4096
NSTEP = 64
SMF = 'v_smfmac_f32_16x16x64_bf16'
MF = 'v_mfma_f32_16x16x32_bf16'
MF16 = 'v_mfma_f32_16x16x16_bf16'
CSC = 0x3e0293ee
OPT = dict(stamp=0, sleepL=0, sleepF=0, vmpos=61, flagpos=6, rfirst=0, wnt=0, par=-1, fs=2, pp=0, dlyL=0, dlyR=16, dlyF=0, f2pos=9, lfirst=0, ahead=6, pace=8, st2=0)

class Seq:
    def __init__(s, e): s.e = e; s.l = []; s.v = []; s.ld = 0; s.vd = 0
    def L(s, ins, tag=None): s.e(ins); s.l.append(tag)
    def V(s, ins, tag=None): s.e(ins); s.v.append(tag)
    def need(s, ltag=None, vtag=None):
        w = []
        if ltag is not None:
            i = len(s.l) - s.l[::-1].index(ltag)
            if i > s.ld: n = min(15, len(s.l) - i); w.append(f'lgkmcnt({n})'); s.ld = len(s.l) - n
        if vtag is not None:
            i = len(s.v) - s.v[::-1].index(vtag)
            if i > s.vd: n = min(63, len(s.v) - i); w.append(f'vmcnt({n})'); s.vd = len(s.v) - n
        if w: s.e('s_waitcnt ' + ' '.join(w))
    def emit(s, items):
        for it in items:
            if it[0] == 'L': s.L(it[1], it[2])
            elif it[0] == 'V': s.V(it[1], it[2] if len(it) > 2 else None)
            elif it[0] == 'NL': s.need(ltag=it[1])
            elif it[0] == 'NV': s.need(vtag=it[1])
            elif it[0] == 'LAB': s.e.lab(it[1])
            else: s.e(it[1])

def wreg(rb): return f'a[{8*rb}:{8*rb+7}]' if rb < 32 else f'v[{128+8*(rb-32)}:{128+8*(rb-32)+7}]'
def wreg2(rb, o): return (f'a[{8*rb+o}:{8*rb+o+1}]' if rb < 32 else f'v[{128+8*(rb-32)+o}:{128+8*(rb-32)+o+1}]')

SREG = [84, 86, 88, 90, 92, 94, 96, 56, 58, 60, 62, 64, 66]
def stamp_ins(slot):
    r = SREG[slot]
    return f's_memrealtime s[{r}:{r+1}]' if OPT['stamp'] == 2 else f's_memtime s[{r}:{r+1}]'
def stamp(e, slot):
    if OPT['stamp']: e(stamp_ins(slot))
def stamp_flush(e):
    if not OPT['stamp']: return
    e('s_waitcnt lgkmcnt(0)')
    for k, r in enumerate(SREG + [99]): e(f'v_writelane_b32 v21, s{r}, {k}')
    e('v_lshrrev_b32 v20, 2, v0')
    e('s_mov_b64 exec, 0x3fff')
    e('buffer_store_dword v21, v20, s[8:11], s98 offen')
    e('s_mov_b64 exec, -1')
    e('s_add_u32 s98, s98, 256')

def ldx4(r, vo, so, imm): return f'buffer_load_dwordx4 v[{r}:{r+3}], {vo}, s[8:11], {so} offen offset:{imm} sc1'

def check(e, regs):
    if len(regs) == 4:
        e(f'v_max3_u32 v14, v{regs[0]}, v{regs[1]}, v{regs[2]}'); e(f'v_max_u32 v14, v14, v{regs[3]}')
    else:
        e(f'v_max3_u32 v14, v{regs[0]}, v{regs[1]}, v{regs[2]}')
        e(f'v_max3_u32 v15, v{regs[3]}, v{regs[4]}, v{regs[5]}')
        i = 6; t = 14
        while i + 1 < len(regs):
            e(f'v_max3_u32 v{t}, v{t}, v{regs[i]}, v{regs[i+1]}'); i += 2; t = 29 - t
        e('v_max_u32 v14, v14, v15')
    e(f'v_cmp_eq_u32 vcc, {hex(SENT)}, v14')

DEFER = []
def poll(e, items, tag, sleep=0, issued=False, mid=(), first=0, cnt=False):
    L = e.uniq('P' + tag)
    if not issued:
        for it in items: e(ldx4(*it))
    e(f's_waitcnt vmcnt({first})')
    e.lab(L)
    check(e, [it[0] + k for it in items for k in range(4)])
    e.many(mid)
    e(f's_cbranch_vccnz {L}_re')
    r = [f'{L}_re:', 's_add_u32 s40, s40, 1', f's_cmp_gt_u32 s40, {SPIN_MAX}', 's_cbranch_scc1 L_abort']
    if sleep: r.append(f's_sleep {sleep}')
    if cnt and OPT['stamp']: r.append('s_add_u32 s99, s99, 0x10000' if cnt == 1 else 's_add_u32 s99, s99, 0x1000000')
    r += ['s_mov_b64 exec, vcc'] + [ldx4(*it) for it in items] + ['s_mov_b64 exec, -1', 's_waitcnt vmcnt(0)', f's_branch {L}']
    DEFER.append(r)
def flush_defer(e):
    for r in DEFER:
        e.raw(r[0]); e.many(r[1:])
    DEFER.clear()

LOC = [1]
def local_store(e, ins):
    for x in ins: e(x + (' sc1' if x.startswith('buffer') and not LOC[0] else ''))

def common_init(e):
    e('s_and_b32 s30, s34, 15'); e('s_lshl_b32 s3, s33, 4'); e('s_add_u32 s30, s30, s3')
    e('v_and_b32 v30, 63, v0')
    e('v_lshlrev_b32 v0, 4, v30')
    e('v_lshrrev_b32 v19, 4, v30')
    e('s_lshl_b32 s3, s29, 4')
    e('v_add_u32 v16, s3, v19')
    e('v_bfe_u32 v20, v30, 1, 3'); e('v_xor_b32 v20, v20, v19')
    e('v_and_b32 v21, 1, v30'); e('v_lshlrev_b32 v21, 4, v21')
    e('v_lshl_add_u32 v17, v20, 5, v21')
    e('s_mov_b32 s15, 0x20000'); e(f's_mov_b32 s14, {8*MB}')
    e('v_lshrrev_b32 v29, 2, v30'); e('v_and_b32 v28, 7, v29'); e('v_lshlrev_b32 v29, 8, v29')
    e('v_and_b32 v21, 3, v30'); e('v_lshl_add_u32 v29, v21, 3, v29')
    e('s_lshl_b32 s41, s27, 12')
    e('s_getreg_b32 s47, hwreg(HW_REG_XCC_ID, 0, 3)'); e('s_lshl_b32 s47, s47, 3')
    e('s_lshl_b64 s[4:5], 1, s47')
    e('v_mov_b32 v18, s4'); e('v_mov_b32 v19, s5'); e('s_lshl_b32 s3, s33, 3')
    e('s_cmp_eq_u32 s27, 0'); e('s_cselect_b32 s4, 1, 0'); e('s_mov_b32 s5, 0')
    e('s_mov_b64 exec, s[4:5]')
    e(f'buffer_atomic_add_x2 v[18:19], off, s[68:71], s3 offset:{D_CH} sc1')
    e('s_mov_b64 exec, -1')

def common_regs(e):
    e('v_and_b32 v18, 8, v30'); e('v_cmp_eq_u32 vcc, 0, v18')
    e('v_mov_b32 v1, 0xeeee'); e('v_mov_b32 v18, 0x4444')
    e('v_cndmask_b32 v1, v1, v18, vcc')
    e(f's_add_u32 s3, s41, {MEMB}'); e('v_add_u32 v5, s3, v0')
    e('s_mov_b32 s51, 0x3f80'); e('s_mov_b32 s52, 0x3f800000')
    e('s_lshl_b32 s53, s33, 11'); e(f's_add_u32 s53, s53, {ST_FL}')
    e('s_cmp_eq_u32 s27, 3'); e('s_cselect_b32 s20, 1, 0'); e('s_mov_b32 s21, 0')
    e('s_mov_b32 s31, 0')
    e(f's_mov_b32 s32, {WS_STEP}'); e(f's_mov_b32 s25, {WS_STEP + 3*STEP_SZ}'); e(f's_mov_b32 s26, {WS_STEP + STEP_SZ}')
    e('s_lshl_b32 s3, s33, 14'); e('s_add_u32 s48, s3, s41'); e(f's_xor_b32 s49, s48, {16*KB}')
    e('s_and_b32 s3, s49, 0x6000'); e('s_add_u32 s49, s49, s3')
    e(f's_add_u32 s48, s48, {ST_PL}')
    e('s_lshl_b32 s50, s30, 11')
    e('s_lshl_b32 s22, s33, 11'); e(f's_add_u32 s22, s22, {ST_F2}')
    if OPT['stamp']:
        e('s_lshl_b32 s98, s2, 14'); e('s_lshl_b32 s3, s27, 6'); e('s_add_u32 s98, s98, s3'); e(f's_add_u32 s98, s98, {WS_DBG}'); e('s_mov_b32 s99, 0')

def handshake(e, code0, code1):
    L = e.uniq('HS')
    e('s_getpc_b64 s[4:5]')
    e.lab(L + '_pc')
    e(f's_add_u32 s4, s4, {code0}-{L}_pc'); e('s_addc_u32 s5, s5, 0')
    e('v_lshlrev_b32 v18, 2, v0'); e('v_add_u32 v18, s41, v18')
    e(f'v_min_u32 v18, {code1}-{code0}-4, v18')
    e('global_load_dword v19, v18, s[4:5]')
    e('s_mov_b32 s40, 0'); e('s_lshl_b32 s7, s33, 3')
    e.lab(L)
    e(f'buffer_load_dwordx2 v[20:21], off, s[68:71], s7 offset:{D_CH} sc1')
    e(f'buffer_load_dwordx2 v[22:23], off, s[68:71], 0 offset:{D_PAR} sc1')
    e('s_add_u32 s40, s40, 1'); e(f's_cmp_gt_u32 s40, {SPIN_MAX}'); e('s_cbranch_scc1 L_abort')
    e('s_waitcnt vmcnt(0)')
    e('v_readfirstlane_b32 s4, v20'); e('v_readfirstlane_b32 s5, v21'); e('v_readfirstlane_b32 s6, v22'); e('v_readfirstlane_b32 s3, v23')
    e('s_cmp_eq_u32 s3, 0'); e(f's_cbranch_scc1 {L}_s')
    e('s_cmp_eq_u32 s6, 0'); e(f's_cbranch_scc1 {L}_s')
    e('s_add_u32 s3, s4, s5'); e('s_mul_i32 s3, s3, 0x01010101'); e('s_lshr_b32 s3, s3, 24')
    e('s_cmp_eq_u32 s3, 32'); e(f's_cbranch_scc1 {L}_ok')
    e.lab(L + '_s')
    e('s_sleep 4'); e(f's_branch {L}')
    e.lab(L + '_ok')
    e('s_lshr_b64 s[4:5], s[4:5], s47'); e('s_and_b32 s4, s4, 0xff')
    e('s_cmp_eq_u32 s4, 32'); e('s_cselect_b32 s37, 1, 0')
    e('s_and_b32 s6, s6, 1'); e('s_lshl_b32 s6, s6, 13')
    if OPT['par'] >= 0: e(f's_mov_b32 s6, {OPT["par"]*8192}')
    e('s_add_u32 s49, s49, s6')

def probe(e, vaddr, so, tag, mask=None, sleep=0):
    L = e.uniq('Q' + tag)
    e('s_cmp_lg_u32 s27, 3'); e(f's_cbranch_scc1 {L}_w')
    if mask is not None: e(f's_mov_b64 exec, {mask}')
    if OPT['pp']:
        e(f'buffer_load_dword v14, {vaddr}, s[8:11], {so} offen sc1')
        e(f's_nop 15'); e(f's_nop {OPT["pp"]}')
        e.lab(L)
        for (rn, rc) in ((32, 14), (14, 32)):
            e(f'buffer_load_dword v{rn}, {vaddr}, s[8:11], {so} offen sc1')
            e('s_waitcnt vmcnt(1)')
            e(f'v_cmp_eq_u32 vcc, {hex(SENT)}, v{rc}')
            e(f's_cbranch_vccz {L}_ok')
        e('s_add_u32 s40, s40, 1'); e(f's_cmp_gt_u32 s40, {SPIN_MAX}'); e('s_cbranch_scc1 L_abort')
        e(f's_branch {L}')
        e.lab(L + '_ok')
    else:
        e.lab(L)
        if sleep: e(f's_sleep {sleep}')
        e(f'buffer_load_dword v14, {vaddr}, s[8:11], {so} offen sc1')
        e('s_add_u32 s40, s40, 1'); e(f's_cmp_gt_u32 s40, {SPIN_MAX}'); e('s_cbranch_scc1 L_abort')
        e('s_waitcnt vmcnt(0)')
        e(f'v_cmp_eq_u32 vcc, {hex(SENT)}, v14')
        e(f's_cbranch_vccnz {L}')
    if mask is not None: e('s_mov_b64 exec, -1')
    e.lab(L + '_w')
    e('s_barrier')

def gather_mem(e, q):
    e('s_add_u32 s42, s32, s48'); e('s_add_u32 s43, s32, s49')
    e('v_lshrrev_b32 v15, 2, v0' if OPT['fs'] == 2 else f'v_lshlrev_b32 v15, {OPT["fs"]-4}, v0')
    e('s_add_u32 s3, s32, s22')
    stamp(e, 0)
    probe(e, 'v15', 's3', 'l', '0xffff', sleep=OPT['sleepL'])
    for k in range(OPT['dlyL'] // 16): e('s_nop 15')
    if OPT['dlyL'] % 16: e(f's_nop {OPT["dlyL"] % 16}')
    stamp(e, 1)
    if OPT['rfirst']:
        R = [(96 + 4 * p, 'v0', 's43', p * 1024) for p in range(4)]
        Lc = [(48 + 4 * p, 'v0', 's42', p * 1024) for p in range(4)]
        for it in R: e(ldx4(*it))
        if OPT['rfirst'] == 1: e('s_waitcnt vmcnt(3)')
        first, second, c1, c2 = R, Lc, 1, 2
    else:
        Lc = [(96 + 4 * p, 'v0', 's42', p * 1024) for p in range(4)]
        R = [(48 + 4 * p, 'v0', 's43', p * 1024) for p in range(4)]
        for it in Lc: e(ldx4(*it))
        first, second, c1, c2 = Lc, R, 2, 1
    if OPT['rfirst'] != 1:
        for k in range(OPT['dlyR'] // 16): e('s_nop 15')
        if OPT['dlyR'] % 16: e(f's_nop {OPT["dlyR"] % 16}')
    for it in second: e(ldx4(*it))
    poll(e, first, 'a', issued=True, first=4, cnt=c1)
    for d in range(16):
        e(f'v_lshlrev_b32 v{80+2*d}, 16, v{96+d}'); e(f'v_and_b32 v{81+2*d}, 0xffff0000, v{96+d}')
    poll(e, second, 'b', issued=True, cnt=c2)
    stamp(e, 2)
    e.raw('.p2align 3')
    def dots(p):
        for k in range(4):
            d = 4 * p + k
            e(f'v_dot2_f32_bf16 v{80+2*d}, v{48+d}, s51, v{80+2*d}'); e(f'v_dot2_f32_bf16 v{81+2*d}, v{48+d}, s52, v{81+2*d}')
    dots(0)
    for p in range(4):
        if p < 3: dots(p + 1)
        for k in range(4): e(f'v_cvt_pk_bf16_f32 v{32+4*p+k}, v{80+8*p+2*k}, v{81+8*p+2*k}')
        q.L(f'ds_write_b128 v5, v[{32+4*p}:{35+4*p}] offset:{p*1024}', 'AW')

def softmax(e, pv, nt, D, hook=None):
    e('v_max3_f32 v21, v21, v16, v17'); e('v_max3_f32 v20, v20, v18, v19'); e('v_max_f32 v20, v20, v21')
    def cross(op):
        r = []
        for sw in ('v_permlane32_swap_b32', 'v_permlane16_swap_b32'):
            r += ['v_mov_b32 v21, v20', 's_nop 1', f'{sw} v20, v21', f'{op} v20, v20, v21']
        return r
    e.many(cross('v_max_f32'))
    if hook: hook(3)
    S = [24, 25, 26, 27, 28, 29, 30, 31, 16, 17, 18, 19]
    for r in S[::2]: e(f'v_pk_add_f32 v[{r}:{r+1}], v[{r}:{r+1}], v[20:21] op_sel_hi:[1,0] neg_lo:[0,1] neg_hi:[0,1]')
    for r in S[::2]: e(f'v_pk_mul_f32 v[{r}:{r+1}], v[{r}:{r+1}], s[100:101]')
    if hook: hook(4)
    for r in S: e(f'v_exp_f32 v{r}, v{r}')
    if hook: hook(5)
    e('v_pk_add_f32 v[20:21], v[24:25], v[26:27]'); e('v_pk_add_f32 v[22:23], v[28:29], v[30:31]')
    for d in range(4): e(f'v_cvt_pk_bf16_f32 v{24+d}, v{24+2*d}, v{25+2*d}')
    e('v_pk_add_f32 v[20:21], v[20:21], v[16:17]'); e('v_pk_add_f32 v[22:23], v[22:23], v[18:19]')
    for d in range(2): e(f'v_cvt_pk_bf16_f32 v{16+d}, v{16+2*d}, v{17+2*d}')
    rest = ['v_pk_add_f32 v[20:21], v[20:21], v[22:23]', 'v_add_f32 v20, v20, v21'] + cross('v_add_f32') + ['v_rcp_f32 v20, v20']
    k = 0
    for i, m in enumerate(pv):
        e(m)
        if hook and i == 0: hook(6)
        if hook and i == 2: hook(7)
        if i < len(pv) - 1 and k < 2: e(rest[k]); k += 1
    e.many(rest[k:])
    e('s_nop 0')
    for r in range(D, D + 4 * nt, 2): e(f'v_pk_mul_f32 v[{r}:{r+1}], v[{r}:{r+1}], v[20:21] op_sel_hi:[1,0]')
    for pr in range(nt // 2):
        for d in range(4): e(f'v_cvt_pk_bf16_f32 v{D+8*pr+d}, v{D+8*pr+2*d}, v{D+8*pr+2*d+1}')

def gen_P(e):
    e.lab('L_chainP')
    common_init(e)
    e('s_cmp_eq_u32 s28, 0')
    e(f's_cselect_b32 s12, s{P_WQ}, s{P_WK}'); e(f's_cselect_b32 s13, s{P_WQ+1}, s{P_WK+1}')
    w_voffsets(e, 8192, 0)
    e('s_lshl_b32 s21, s30, 8')
    e('s_lshl_b32 s3, s27, 1'); e('v_xor_b32 v18, s3, v28')
    e('s_lshl_b32 s3, s27, 15'); e('v_add_u32 v19, s3, v29')
    e('v_lshl_add_u32 v2, v18, 5, v19'); e('v_xor_b32 v3, 32, v2')
    def load(n):
        tau, hf = n >> 1, n & 1
        for Q in range(4):
            e(f's_add_u32 m0, s41, {Q*32768 + hf*16384}')
            e(f's_add_u32 s20, s21, {((4*Q+tau)*64 + 32*hf)*8192}')
            for i in range(4): e(f'buffer_load_dwordx4 v{12+i}, s[12:15], s20 offen offset:{i*1024}{OPT["wnt"]*" nt"} lds')
    rot = lambda r: [f'v_add_u32 v{r}, 0x8000, v{r}', f'v_and_b32 v{r}, 0x1ffff, v{r}']
    load(0); load(1)
    for n in range(6):
        tau, hf = n >> 1, n & 1
        e('s_waitcnt vmcnt(16)'); e('s_barrier')
        for q in range(4):
            for tl in range(4):
                for u in range(2):
                    e(f'ds_read_b64_tr_b16 {wreg2((q*3+tau)*4+tl, 4*hf+2*u)}, v{2+(tl&1)} offset:{hf*16384+(tl>>1)*8192+u*4096}')
            e.many(rot(2) + rot(3))
        e('s_waitcnt lgkmcnt(0)'); e('s_barrier')
        load(n + 2)
    e('s_waitcnt vmcnt(0)'); e('s_barrier')
    e('s_lshl_b32 s3, s27, 15'); e('v_add_u32 v4, s3, v0')
    for hf in range(2):
        for q in range(4):
            for tl in range(4):
                for u in range(2):
                    R = 64 + 4 * (4 * q + tl) + 2 * u
                    e(f'ds_read_b64_tr_b16 v[{R}:{R+1}], v{2+(tl&1)} offset:{hf*16384+(tl>>1)*8192+u*4096}')
            e.many(rot(2) + rot(3))
        e('s_waitcnt lgkmcnt(0)'); e('s_barrier')
        for n in range(16): e(f'ds_write_b128 v4, v[{64+4*n}:{67+4*n}] offset:{hf*16384+n*1024}')
        e('s_waitcnt lgkmcnt(0)')
    e('v_mov_b32 v2, v4')
    common_regs(e)
    e('v_lshrrev_b32 v18, 5, v30'); e('v_lshlrev_b32 v6, 9, v18')
    e('v_and_b32 v18, 15, v30'); e('v_lshl_add_u32 v6, v18, 5, v6')
    e('v_bfe_u32 v18, v30, 4, 1'); e('v_lshl_add_u32 v6, v18, 3, v6')
    e('s_lshl_b32 s3, s27, 10'); e(f's_add_u32 s3, s3, {MB_}'); e('v_add_u32 v6, s3, v6')
    e('v_lshlrev_b32 v7, 3, v30'); e(f'v_add_u32 v7, {MB_}, v7')
    e(f'v_add_u32 v8, {KVB}, v0')
    e('v_and_b32 v18, 3, v30'); e('v_lshlrev_b32 v9, 8, v18')
    e('v_lshrrev_b32 v18, 2, v30'); e('v_lshl_add_u32 v9, v18, 4, v9')
    e('s_lshl_b32 s3, s27, 10'); e(f's_add_u32 s3, s3, {KVB + 8192}'); e('v_add_u32 v9, s3, v9')
    e('v_xor_b32 v3, 0x400, v9')
    e('v_and_b32 v18, 31, v30'); e('v_lshlrev_b32 v10, 6, v18')
    e('s_lshl_b32 s3, s27, 4'); e('v_add_u32 v10, s3, v10')
    e('v_xor_b32 v13, 16, v10')
    e('v_and_b32 v18, 7, v30'); e('v_lshlrev_b32 v11, 4, v18')
    e('v_lshrrev_b32 v18, 4, v30'); e('v_lshl_add_u32 v11, v18, 7, v11')
    e('s_lshl_b32 s3, s27, 9'); e('v_add_u32 v11, s3, v11')
    e(f's_lshl_b32 s3, s34, {OPT["fs"]}'); e('s_add_u32 s53, s53, s3')
    for r in range(4): e(f'v_mov_b32 v{108+r}, {hex(SENT)}')
    def slots(sc):
        for k in range(4):
            e(f's_add_u32 s3, s50, {WS_STEP + k*STEP_SZ + ST_OM}'); e(f's_add_u32 s4, s53, {WS_STEP + k*STEP_SZ}')
            e(f'buffer_store_dwordx4 v[108:111], v11, s[8:11], s3 offen{sc}')
            e('s_mov_b64 exec, s[20:21]'); e(f'buffer_store_dword v108, off, s[8:11], s4{sc}'); e('s_mov_b64 exec, -1')
    handshake(e, 'CP1_top', 'CP0_top')
    e('s_cmp_eq_u32 s37, 0'); e('s_cbranch_scc1 CP_nl')
    for k in range(4):
        e(f's_add_u32 s3, s50, {WS_STEP + k*STEP_SZ + ST_OM}'); e(f's_add_u32 s4, s53, {WS_STEP + k*STEP_SZ}')
        e('buffer_load_dword v18, v11, s[8:11], s3 offen sc1'); e('buffer_load_dword v18, off, s[8:11], s4 sc1')
    e('s_waitcnt vmcnt(0)')
    slots('')
    e.lab('CP_nl')
    e('s_lshl_b32 s3, s29, 4')
    e('v_and_b32 v18, 15, v30'); e('v_add_u32 v18, s3, v18')
    e('v_lshrrev_b32 v19, 4, v30'); e('v_lshlrev_b32 v19, 2, v19'); e('v_sub_u32 v18, v18, v19')
    for T in range(2):
        for r in range(4):
            m = 68 + 2 * (4 * T + r)
            e(f'v_cmp_le_i32 s[{m}:{m+1}], {16*T+r}, v18')
    e(f's_mul_i32 s35, s30, {1536*KB}'); e(f's_add_u32 s35, s35, {WS_QKV}')
    e('s_lshl_b32 s36, s30, 2'); e('s_add_u32 s36, s36, s27'); e('s_lshl_b32 s36, s36, 17')
    e('s_lshl_b32 s3, s29, 10'); e('s_add_u32 s36, s36, s3')
    e(f's_mov_b32 s100, {hex(CSC)}'); e(f's_mov_b32 s101, {hex(CSC)}')
    e(f's_add_u32 s46, s41, {KVB}')
    def prefetch(nxt):
        e('s_mov_b32 m0, s46')
        e('s_add_u32 s3, s35, s41'); e(f's_add_u32 s3, s3, {8192 + nxt*24*KB}')
        for i in range(4): e(f'buffer_load_dwordx4 v0, s[8:11], s3 offen offset:{i*1024} sc1 lds')
        e('v_lshlrev_b32 v15, 3, v0')
        e(f's_add_u32 s3, s35, {nxt*24*KB}')
        e('buffer_load_dword v14, v15, s[8:11], s3 offen sc1')
        e(f's_add_u32 s3, s31, {nxt+1}'); e('s_lshr_b32 s3, s3, 2'); e('s_lshl_b32 s3, s3, 7'); e(f's_add_u32 s3, s3, {WS_CNT + C_KV*128}')
        e('buffer_load_dword v12, off, s[8:11], s3 sc1')
    e(f's_mov_b32 s7, {WS_CNT + C_KV*128}')
    wait_counter(e, 's7', 96, 'kv0', slp=4)
    prefetch(0)
    e('s_mov_b32 s16, s8'); e('s_mov_b32 s17, s9'); e('s_mov_b32 s18, 0'); e('s_mov_b32 s19, 0x20000'); e('s_mov_b32 s38, 0'); e('s_mov_b32 s39, 0')
    e('s_cmp_eq_u32 s27, 0'); e('s_cselect_b32 s23, 5, -1')
    e('s_cmp_eq_u32 s37, 0'); e('s_cbranch_scc1 CP0_top')
    for loc in (1, 0):
        LOC[0] = loc
        P_loop(e, f'CP{loc}', prefetch)

def P_loop(e, X, prefetch):
    e.raw('.p2align 6')
    e.lab(X + '_top')
    e('s_mov_b32 s40, 0')
    q = Seq(e)
    def wrd(n):
        B = 64 + 8 * (n & 1)
        return [(f'ds_read_b128 v[{B+4*hf}:{B+4*hf+3}], v2 offset:{hf*16384+n*1024}', f'W{n}') for hf in range(2)]
    for n in range(2):
        for x, t in wrd(n): q.L(x, t)
    for r in range(16, 32, 2): e(f'v_mov_b64 v[{r}:{r+1}], 0')
    e(f'v_add_u32 v4, 4096, v5'); e(f'v_and_b32 v4, {hex(MEMB + 0x3fff)}, v4')
    e('s_add_u32 s44, s32, s50'); e(f's_add_u32 s54, s44, {ST_OM}'); e(f's_add_u32 s44, s44, {ST_VM}')
    e('s_add_u32 s55, s32, s53')
    e('s_lshl_b32 s24, s29, 12'); e('s_add_u32 s24, s24, s35')
    gather_mem(e, q)
    fill = [[] for _ in range(64)]; pre = [[] for _ in range(64)]
    for n in range(2, 16):
        for k, (x, t) in enumerate(wrd(n)): fill[4 * n - 5 + k].append(('L', x, t))
    for qq in range(1, 4):
        base = 16 * (qq - 1)
        if qq == 1: fill[2] += [('NL', 'AW'), ('X', 's_barrier')]
        for p in range(4):
            R = 32 + 16 * (qq & 1) + 4 * p
            fill[base + ((2, 2, 5, 6) if qq == 1 else (1, 2, 5, 6))[p]].append(('L', f'ds_read_b128 v[{R}:{R+3}], v4 offset:{p*1024}', f'A{qq}'))
        if qq < 3: fill[base + 9] += [('X', 'v_add_u32 v4, 4096, v4')]; fill[base + 10] += [('X', f'v_and_b32 v4, {hex(MEMB + 0x3fff)}, v4')]
        pre[16 * qq].append(('NL', f'A{qq}'))
    pre[48] += [('X', 's_barrier')]
    fill[39] += [('X', 'v_lshlrev_b32 v4, 22, v0')]; fill[40] += [('X', 'v_ashrrev_i32 v4, 8, v4')]; fill[43] += [('X', 'v_xor_b32 v4, -1, v4')]; fill[44] += [('X', 'v_and_b32 v4, 0xff800000, v4')]
    vp = [13, 14, 29, 30, 41, 42, 45, 46]
    for n in range(4):
        for t in range(2):
            R = 80 + 4 * n + 2 * t
            fill[vp[2 * n + t]].append(('L', f'ds_read_b64_tr_b16 v[{R}:{R+1}], {"v9" if n < 2 else "v3"} offset:{t*4096+(n&1)*8}', 'VT'))
    for ks in range(4): fill[(49, 50, 53, 54)[ks]].append(('L', f'ds_read_b128 v[{32+4*ks}:{35+4*ks}], v8 offset:{ks*1024}', 'K0'))
    VM = [(96, 'v10', 's44', 0), (100, 'v13', 's44', 0)]
    def post(a, d, off, tag):
        return [('X', f'v_permlane32_swap_b32 v{a+r}, v{a+4+r}') for r in range(4)] + \
               [('X', f'v_pk_add_f32 v[{a}:{a+1}], v[{a}:{a+1}], v[{a+4}:{a+5}]'), ('X', f'v_pk_add_f32 v[{a+2}:{a+3}], v[{a+2}:{a+3}], v[{a+6}:{a+7}]'),
                ('X', f'v_cvt_pk_bf16_f32 v{d}, v{a}, v{a+1}'), ('X', f'v_cvt_pk_bf16_f32 v{d+1}, v{a+2}, v{a+3}'),
                ('L', f'ds_write_b64 v6, v[{d}:{d+1}] offset:{off}', tag)]
    if OPT['stamp'] and not OPT['st2']:
        pre[0].insert(0, ('X', stamp_ins(7))); fill[2].append(('X', stamp_ins(8)))
        pre[16].append(('X', stamp_ins(9))); pre[32].append(('X', stamp_ins(10))); pre[48].append(('X', stamp_ins(11))); fill[63].append(('X', stamp_ins(12)))
    OST = [f'buffer_store_dwordx4 v[{112+4*pr}:{115+4*pr}], v0, s[16:19], s{38+pr} offen sc1' for pr in range(2)]
    fill[0].append(('V', OST[0])); fill[0].append(('V', OST[1]))
    fill[7] += [('X', 's_cmp_eq_u32 s31, s23'), ('X', f's_cbranch_scc1 {X}_sig'), ('LAB', f'{X}_sigb')]
    DEFER.append([f'{X}_sig:', 's_add_u32 s23, s23, 4', 's_lshl_b32 s3, s31, 5', f's_add_u32 s3, s3, {WS_CNT + C_O*128 - 160}', 'v_mov_b32 v15, 1', 's_mov_b64 exec, 1',
                  'buffer_atomic_add v15, off, s[8:11], s3 sc1', 's_mov_b64 exec, -1', f's_branch {X}_sigb'])
    for ks in range(4): fill[1 + (ks >> 1)].insert(ks & 1, ('V', ldx4(112 + 4 * ks, 'v0', 's24', ks * 1024)))
    pq = post(16, 20, 0, 'MQ')
    fill[58].append(('X', 's_nop 1'))
    for k, it in enumerate(pq): fill[(59, 59, 60, 60, 61, 61, 62, 62, 62)[k]].append(it)
    k = 0
    for qq in range(4):
        for tl in range(4):
            for kp in range(4):
                q.emit(pre[k])
                A = 32 + 16 * (qq & 1) + 4 * kp
                if kp < 3: B = wreg((qq * 3 + kp) * 4 + tl)
                else:
                    n = 4 * qq + tl; q.need(ltag=f'W{n}'); b = 64 + 8 * (n & 1); B = f'v[{b}:{b+7}]'
                e(f'{SMF} v[{16+4*tl}:{19+4*tl}], v[{A}:{A+3}], {B}, v1')
                q.emit(fill[k]); k += 1
    for ks in range(4): q.L(f'ds_read_b128 v[{64+4*ks}:{67+4*ks}], v8 offset:{ks*1024+4096}', 'K1')
    minit = [f'v_mov_b32 v{16+r}, v4' for r in range(4)]
    e.many(minit)
    q.emit(post(24, 22, 16, 'MK'))
    for it in VM: e(ldx4(*it))
    q.need(ltag='MK')
    e('s_barrier')
    for ks in range(4):
        for u in range(2): q.L(f'ds_read_b64_tr_b16 v[{48+4*ks+2*u}:{49+4*ks+2*u}], v7 offset:{ks*1024+u*512}', f'X{ks}')
    def mf(D, A, B, ks, z=True): e(f'{MF} v[{D}:{D+3}], v[{A+4*ks}:{A+4*ks+3}], v[{B+4*ks}:{B+4*ks+3}], {"0" if ks == 0 and z else f"v[{D}:{D+3}]"}')
    def flag(pos):
        if OPT['st2'] and pos >= 1: stamp(e, min(12, 6 + pos))
        if OPT['flagpos'] == pos: local_store(e, ['s_mov_b64 exec, s[20:21]', 'buffer_store_dword v1, off, s[8:11], s55', 's_mov_b64 exec, -1'])
    stamp(e, 3)
    for ks in range(4):
        q.need(ltag=f'X{ks}'); mf(24, 32, 48, ks)
        mf(28, 64, 48, ks)
    flag(0)
    for ks in range(4):
        mf(16, 48, 48, ks, False)
        if ks == 1: flag(1)
    xmax = ['v_max3_f32 v20, v24, v25, v26', 'v_max3_f32 v21, v27, v28, v29', 'v_max3_f32 v20, v20, v30, v31']
    poll(e, VM, 'vm', issued=True, mid=xmax)
    e(f's_cmp_eq_u32 s31, {NSTEP-1}'); e(f's_cbranch_scc1 {X}_last')
    def pvl(nt, D):
        return [f'{MF} v[{D+4*n}:{D+4*n+3}], v[{80+4*n}:{83+4*n}], v[24:27], 0' for n in range(nt)] + \
               [f'{MF16} v[{D+4*n}:{D+4*n+3}], v[{96+2*n}:{97+2*n}], v[16:17], v[{D+4*n}:{D+4*n+3}]' for n in range(nt)]
    softmax(e, pvl(2, 104), 2, 104, flag)
    e('s_mov_b32 exec_lo, 0x00ff00ff'); e('s_mov_b32 exec_hi, 0x00ff00ff')
    local_store(e, ['buffer_store_dwordx4 v[104:107], v11, s[8:11], s54 offen'])
    stamp(e, 4)
    for r in range(4): e(f'v_mov_b32 v{108+r}, {hex(SENT)}')
    e('s_add_u32 s3, s25, s50'); e(f's_add_u32 s3, s3, {ST_OM}'); e('s_add_u32 s4, s25, s53')
    local_store(e, ['buffer_store_dwordx4 v[108:111], v11, s[8:11], s3 offen', 's_mov_b64 exec, s[20:21]', 'buffer_store_dword v108, off, s[8:11], s4'])
    e('s_mov_b64 exec, -1')
    e('v_readfirstlane_b32 s3, v12')
    e('s_nop 0')
    e('s_cmp_ge_u32 s3, 96'); e(f's_cbranch_scc1 {X}_rdy')
    e('s_add_u32 s7, s31, 1'); e('s_lshr_b32 s7, s7, 2'); e('s_lshl_b32 s7, s7, 7'); e(f's_add_u32 s7, s7, {WS_CNT + C_KV*128}')
    wait_counter(e, 's7', 96, 'kv', wg=False)
    e.lab(X + '_rdy')
    prefetch(1)
    e(f's_branch {X}_x')
    e.lab(X + '_last')
    e.lab(X + '_x')
    e.many(minit)
    e('v_mov_b32 v22, 0xff800000')
    for ee in range(8): e(f'v_cndmask_b32 v{24+ee}, v22, 0, s[{68+2*ee}:{69+2*ee}]')
    e('s_nop 1')
    for ks in range(4): mf(24, 32, 112, ks, False); mf(28, 64, 112, ks, False)
    for ks in range(4): mf(16, 48, 112, ks, False)
    e('s_nop 4')
    e.many(xmax)
    softmax(e, pvl(4, 32), 4, 32)
    e(f's_add_u32 s38, s36, {WS_O}'); e(f's_xor_b32 s39, s36, {128*KB}'); e(f's_add_u32 s39, s39, {WS_O}')
    for d in range(4): e(f'v_mov_b32 v{112+d}, v{32+d}'); e(f'v_mov_b32 v{116+d}, v{40+d}')
    e('s_mov_b32 s18, s10')
    e('s_add_u32 s36, s36, 2048')
    e('s_add_u32 s31, s31, 1'); e('s_mov_b32 s25, s32'); e('s_mov_b32 s32, s26'); e(f's_add_u32 s26, s26, {STEP_SZ}'); e('s_and_b32 s26, s26, 0xfffff'); e(f's_or_b32 s26, s26, {WS_STEP}'); e(f's_add_u32 s35, s35, {24*KB}')
    stamp(e, 5)
    stamp_flush(e)
    e(f's_cmp_lt_u32 s31, {NSTEP}'); e(f's_cbranch_scc1 {X}_top')
    e.many(OST)
    e('s_waitcnt vmcnt(0)'); e('s_barrier')
    e('s_cmp_lg_u32 s27, 0'); e('s_cbranch_scc1 L_exit')
    e('s_lshr_b32 s3, s30, 1'); e('s_lshl_b32 s3, s3, 7'); e(f's_add_u32 s3, s3, {WS_CNT + C_HP*128}')
    e('v_mov_b32 v18, 1'); e('s_mov_b64 exec, 1'); e('buffer_atomic_add v18, off, s[8:11], s3 sc1')
    e('s_endpgm')
    flush_defer(e)

def gen_VO(e):
    e.lab('L_chainV')
    common_init(e)
    w_voffsets(e, 8192, 0)
    e(f's_mov_b32 s12, s{P_WV}'); e(f's_mov_b32 s13, s{P_WV+1}')
    e(f's_mov_b32 s16, s{P_WO}'); e(f's_mov_b32 s17, s{P_WO+1}'); e(f's_mov_b32 s18, {8*MB}'); e('s_mov_b32 s19, 0x20000')
    e('s_lshl_b32 s21, s30, 8'); e('s_lshl_b32 s3, s28, 18'); e('s_add_u32 s21, s21, s3')
    e('s_lshl_b32 s22, s33, 22'); e('s_lshl_b32 s3, s27, 20'); e('s_add_u32 s22, s22, s3')
    e('s_and_b32 s3, s34, 15'); e('s_lshl_b32 s3, s3, 7'); e('s_add_u32 s22, s22, s3')
    e('s_lshl_b32 s3, s27, 1'); e('v_xor_b32 v18, s3, v28')
    e('s_lshl_b32 s3, s27, 14'); e('v_add_u32 v19, s3, v29')
    e('v_lshl_add_u32 v2, v18, 5, v19'); e('v_xor_b32 v3, 32, v2')
    e('v_lshrrev_b32 v18, 5, v30'); e('v_lshlrev_b32 v22, 15, v18')
    e('v_bfe_u32 v18, v30, 4, 1'); e('v_lshl_add_u32 v22, v18, 13, v22')
    e('v_bfe_u32 v18, v30, 3, 1'); e('v_lshl_add_u32 v22, v18, 11, v22')
    e('v_bfe_u32 v18, v30, 1, 2'); e('v_lshrrev_b32 v19, 4, v30'); e('v_xor_b32 v18, v18, v19'); e('v_lshl_add_u32 v22, v18, 5, v22')
    e('v_and_b32 v18, 1, v30'); e('v_lshl_add_u32 v22, v18, 4, v22')
    e('v_lshrrev_b32 v18, 2, v30'); e('v_lshlrev_b32 v8, 7, v18')
    e('v_bfe_u32 v18, v30, 3, 2'); e('v_lshl_add_u32 v8, v18, 5, v8')
    e('v_and_b32 v18, 3, v30'); e('v_lshl_add_u32 v8, v18, 3, v8')
    e('s_lshl_b32 s23, s27, 14'); e('s_add_u32 s23, s23, 65536'); e('v_add_u32 v8, s23, v8')
    def loadV(tau):
        for Q in range(4):
            e(f's_add_u32 m0, s41, {Q*16384}')
            e(f's_add_u32 s20, s21, {(4*Q+tau)*64*8192}')
            for i in range(4): e(f'buffer_load_dwordx4 v{12+i}, s[12:15], s20 offen offset:{i*1024}{OPT["wnt"]*" nt"} lds')
    RND = ((0, 1), (2, 4), (5, 6), (3, 7))
    KREG = {0: 0, 1: 1, 2: 2, 4: 3, 5: 4, 6: 5}
    def loadO(n):
        for sl, ks in enumerate(RND[n]):
            for i in range(8):
                e(f's_add_u32 m0, s23, {sl*8192 + i*1024}')
                e(f's_add_u32 s20, s22, {(64*ks + 32*(i>>2) + 8*(i&1) + 2*((i>>1)&1))*2048}')
                e(f'buffer_load_dwordx4 v22, s[16:19], s20 offen{OPT["wnt"]*" nt"} lds')
    def ord_(sl, dst):
        r = []
        for n in range(4):
            r.append(('X', f'v_xor_b32 v18, {n<<5}, v8'))
            for x in range(2):
                for u in range(2): r.append(('L', f'ds_read_b64_tr_b16 {dst(n, 4*x+2*u)}, v18 offset:{sl*8192+x*4096+u*2048}', 'O'))
        return r
    rot = lambda r: [f'v_add_u32 v{r}, 0x4000, v{r}', f'v_and_b32 v{r}, 0xffff, v{r}']
    loadV(0); loadO(0)
    for n in range(3):
        e('s_waitcnt vmcnt(16)'); e('s_barrier')
        for q in range(4):
            for t in range(2):
                for hf in range(2):
                    for u in range(2):
                        e(f'ds_read_b64_tr_b16 {wreg2((q*3+n)*2+t, 4*hf+2*u)}, v{2+t} offset:{hf*8192+u*4096}')
            e.many(rot(2) + rot(3))
        e('s_waitcnt lgkmcnt(0)'); e('s_barrier')
        loadV(n + 1)
        e('s_waitcnt vmcnt(16)')
        for sl, ks in enumerate(RND[n]):
            for it in ord_(sl, lambda t, o: wreg2(24 + KREG[ks] * 4 + t, o)): e(it[1])
        e('s_waitcnt lgkmcnt(0)')
        loadO(n + 1)
    e('s_waitcnt vmcnt(0)'); e('s_barrier')
    for q in range(4):
        for t in range(2):
            for hf in range(2):
                for u in range(2):
                    R = 64 + 8 * (2 * q + t) + 4 * hf + 2 * u
                    e(f'ds_read_b64_tr_b16 v[{R}:{R+1}], v{2+t} offset:{hf*8192+u*4096}')
        e.many(rot(2) + rot(3))
    e('s_waitcnt lgkmcnt(0)'); e('s_barrier')
    e('s_lshl_b32 s3, s27, 14'); e('v_add_u32 v2, s3, v0')
    for n in range(16): e(f'ds_write_b128 v2, v[{64+4*n}:{67+4*n}] offset:{n*1024}')
    e('s_waitcnt lgkmcnt(0)')
    for sl in range(2):
        for it in ord_(sl, lambda t, o: f'v[{64+32*sl+8*t+o}:{64+32*sl+8*t+o+1}]'): e(it[1])
    e('s_waitcnt lgkmcnt(0)')
    e('v_add_u32 v8, s23, v0')
    for n in range(16): e(f'ds_write_b128 v8, v[{64+4*n}:{67+4*n}] offset:{n*1024}')
    e('s_waitcnt lgkmcnt(0)')
    common_regs(e)
    e('s_barrier')
    e('v_and_b32 v18, 31, v30'); e('v_lshlrev_b32 v6, 6, v18')
    e('v_lshrrev_b32 v18, 5, v30'); e('v_lshl_add_u32 v6, v18, 3, v6')
    e('s_lshl_b32 s3, s27, 4'); e('v_add_u32 v6, s3, v6')
    e('v_bfe_u32 v18, v30, 3, 1'); e('v_lshlrev_b32 v11, 6, v18')
    for bit, sh in ((1, 5), (2, 4), (5, 3), (0, 2)):
        e(f'v_bfe_u32 v18, v30, {bit}, 1'); e(f'v_lshl_add_u32 v11, v18, {sh}, v11')
    e('v_bfe_u32 v18, v30, 4, 1'); e('v_mul_u32_u24 v18, 640, v18'); e('v_add_u32 v11, v11, v18')
    e('s_mul_i32 s3, s27, 1280'); e(f's_add_u32 s3, s3, {KVB}'); e('v_add_u32 v11, s3, v11')
    e('v_add_u32 v10, 5120, v11')
    e('v_bfe_u32 v18, v30, 2, 3'); e('v_mul_u32_u24 v7, 160, v18')
    e('v_lshrrev_b32 v18, 5, v30'); e('v_lshl_add_u32 v7, v18, 5, v7')
    e('v_and_b32 v18, 3, v30'); e('v_lshl_add_u32 v7, v18, 3, v7')
    e('s_mul_i32 s3, s28, 5120'); e('s_lshl_b32 s4, s29, 6'); e('s_add_u32 s3, s3, s4'); e(f's_add_u32 s3, s3, {KVB}'); e('v_add_u32 v7, s3, v7')
    e('s_lshl_b32 s35, s30, 10')
    e('s_lshl_b32 s3, s27, 8'); e('v_lshlrev_b32 v13, 2, v30'); e('v_add_u32 v13, s3, v13')
    e('s_and_b32 s3, s35, 0x6000'); e('s_add_u32 s46, s35, s3'); e(f's_add_u32 s35, s35, {ST_PL}')
    e(f'v_lshlrev_b32 v9, {OPT["fs"]}, v30')
    e('v_lshlrev_b32 v12, 7, v30')
    e('s_lshl_b32 s36, s33, 15'); e('s_lshl_b32 s3, s27, 13'); e('s_add_u32 s36, s36, s3'); e(f's_add_u32 s36, s36, {ST_OM}')
    e('s_and_b32 s3, s34, 15'); e(f's_lshl_b32 s3, s3, {OPT["fs"]}'); e('s_add_u32 s24, s22, s3')
    e(f'v_mov_b32 v24, {hex(SENT)}'); e(f'v_mov_b32 v25, {hex(SENT)}')
    handshake(e, 'CV1_top', 'CV0_top')
    e('s_add_u32 s46, s46, s6')
    e(f's_add_u32 s3, s24, {WS_STEP}')
    e('s_mov_b64 exec, s[20:21]'); e('buffer_store_dword v1, off, s[8:11], s3 sc1'); e('s_mov_b64 exec, -1')
    e('s_cmp_eq_u32 s37, 0'); e('s_cbranch_scc1 CV0_top')
    for k in range(4):
        R = WS_STEP + k * STEP_SZ
        e(f's_add_u32 s3, s50, {R + ST_VM}'); e('buffer_load_dword v18, v6, s[8:11], s3 offen sc1')
        e(f's_add_u32 s3, s35, {R}'); e('buffer_load_dword v18, v13, s[8:11], s3 offen sc1')
        e(f's_add_u32 s3, s24, {R}'); e('buffer_load_dword v18, off, s[8:11], s3 sc1')
    e('s_waitcnt vmcnt(0)')
    for k in range(4):
        R = WS_STEP + k * STEP_SZ
        e(f's_add_u32 s3, s50, {R + ST_VM}'); e('buffer_store_dwordx2 v[24:25], v6, s[8:11], s3 offen')
        if k:
            e(f's_add_u32 s3, s35, {R}'); e('buffer_store_dword v24, v13, s[8:11], s3 offen')
            e(f's_add_u32 s3, s24, {R}')
            e('s_mov_b64 exec, s[20:21]'); e('buffer_store_dword v24, off, s[8:11], s3'); e('s_mov_b64 exec, -1')
    for loc in (1, 0):
        LOC[0] = loc
        V_loop(e, f'CV{loc}', KREG)

def V_loop(e, X, KREG):
    e.raw('.p2align 6')
    e.lab(X + '_top')
    e('s_mov_b32 s40, 0')
    q = Seq(e)
    def wrd(n):
        B = 64 + 8 * (n & 1)
        return [(f'ds_read_b128 v[{B+4*hf}:{B+4*hf+3}], v2 offset:{n*2048+hf*1024}', f'W{n}') for hf in range(2)]
    for n in range(2):
        for x, t in wrd(n): q.L(x, t)
    for r in range(16, 24, 2): e(f'v_mov_b64 v[{r}:{r+1}], 0')
    e(f'v_add_u32 v4, 4096, v5'); e(f'v_and_b32 v4, {hex(MEMB + 0x3fff)}, v4')
    gather_mem(e, q)
    fill = [[] for _ in range(32)]; pre = [[] for _ in range(32)]
    for n in range(2, 8):
        for k, (x, t) in enumerate(wrd(n)): fill[4 * n - 5 + k].append(('L', x, t))
    for qq in range(1, 4):
        base = 8 * (qq - 1) + (1 if qq == 1 else 0)
        if qq == 1: fill[base] += [('NL', 'AW'), ('X', 's_barrier')]
        for p in range(4):
            R = 32 + 16 * (qq & 1) + 4 * p
            fill[base + p // 2].append(('L', f'ds_read_b128 v[{R}:{R+3}], v4 offset:{p*1024}', f'A{qq}'))
        if qq < 3: fill[base + 2] += [('X', 'v_add_u32 v4, 4096, v4'), ('X', f'v_and_b32 v4, {hex(MEMB + 0x3fff)}, v4')]
        pre[8 * qq].append(('NL', f'A{qq}'))
    k = 0
    for qq in range(4):
        for t in range(2):
            for kp in range(4):
                q.emit(pre[k])
                A = 32 + 16 * (qq & 1) + 4 * kp
                if kp < 3: B = wreg((qq * 3 + kp) * 2 + t)
                else:
                    n = 2 * qq + t; q.need(ltag=f'W{n}'); b = 64 + 8 * t; B = f'v[{b}:{b+7}]'
                e(f'{SMF} v[{16+4*t}:{19+4*t}], v[{A}:{A+3}], {B}, v1')
                q.emit(fill[k]); k += 1
    e('s_add_u32 s42, s32, s50'); e(f's_add_u32 s42, s42, {ST_VM}')
    for r in range(24, 32, 2): e(f'v_mov_b64 v[{r}:{r+1}], 0')
    e('s_nop 1')
    for r in range(4): e(f'v_permlane32_swap_b32 v{16+r}, v{20+r}')
    e('v_pk_add_f32 v[16:17], v[16:17], v[20:21]'); e('v_pk_add_f32 v[18:19], v[18:19], v[22:23]')
    e('v_cvt_pk_bf16_f32 v20, v16, v17'); e('v_cvt_pk_bf16_f32 v21, v18, v19')
    local_store(e, ['buffer_store_dwordx2 v[20:21], v6, s[8:11], s42 offen'])
    stamp(e, 3)
    e(f's_cmp_eq_u32 s31, {NSTEP-1}'); e('s_cbranch_scc1 L_exit')
    e(f'v_mov_b32 v22, {hex(SENT)}'); e(f'v_mov_b32 v23, {hex(SENT)}')
    e('s_add_u32 s42, s25, s50'); e(f's_add_u32 s42, s42, {ST_VM}'); e('s_add_u32 s43, s25, s35'); e('s_add_u32 s44, s25, s46'); e('s_add_u32 s3, s25, s24')
    e('buffer_store_dword v22, v13, s[8:11], s44 offen sc1')
    local_store(e, ['buffer_store_dwordx2 v[22:23], v6, s[8:11], s42 offen', 'buffer_store_dword v22, v13, s[8:11], s43 offen',
                    's_mov_b64 exec, s[20:21]', 'buffer_store_dword v22, off, s[8:11], s3', 's_mov_b64 exec, -1'])
    for n in range(16): e(f'ds_read_b128 v[{64+4*n}:{67+4*n}], v8 offset:{n*1024}')
    for r in range(16, 32, 2): e(f'v_mov_b64 v[{r}:{r+1}], 0')
    e('s_add_u32 s42, s32, s36'); e('s_add_u32 s43, s42, 4096'); e('s_add_u32 s44, s32, s53')
    e('s_waitcnt lgkmcnt(0)')
    stamp(e, 4)
    probe(e, 'v9', 's44', 'f', '0xffff', sleep=OPT['sleepF'])
    for k in range(OPT['dlyF'] // 16): e('s_nop 15')
    if OPT['dlyF'] % 16: e(f's_nop {OPT["dlyF"] % 16}')
    stamp(e, 5)
    OI = [(32 + 4 * ks, 'v0', 's42' if ks < 4 else 's43', (ks & 3) * 1024) for ks in range(8)]
    NA = OPT['ahead']
    for k, it in enumerate(OI[:NA]):
        e(ldx4(*it))
        if OPT['pace'] and k < NA - 1: e(f's_nop {OPT["pace"]}')
    def chk(ks):
        R = 32 + 4 * ks
        return [[f's_waitcnt vmcnt({min(7, ks + NA - 1) - ks + (1 if ks > OPT["f2pos"] else 0)})', f'v_max3_u32 v14, v{R}, v{R+1}, v{R+2}'],
                [f'v_max_u32 v14, v14, v{R+3}', f'v_cmp_eq_u32 vcc, {hex(SENT)}, v14'], [f's_cbranch_vccnz {X}_f{ks}', f'{X}_b{ks}:']]
    def put(l):
        for x in l:
            if x.endswith(':'): e.raw(x)
            else: e(x)
    for l in chk(0): put(l)
    stamp(e, 11)
    e('s_add_u32 s44, s26, s24')
    for ks in range(8):
        R = 32 + 4 * ks
        for t in range(4):
            B = wreg(24 + KREG[ks] * 4 + t) if ks in KREG else f'v[{64+32*(ks>>2)+8*t}:{64+32*(ks>>2)+8*t+7}]'
            e(f'{SMF} v[{16+4*t}:{19+4*t}], v[{R}:{R+3}], {B}, v1')
            if t == 0 and ks + NA < 8: e(ldx4(*OI[ks + NA]))
            if t == 0 and ks == OPT['f2pos']:
                assert ks + NA >= 7
                local_store(e, ['s_mov_b64 exec, s[20:21]', 'buffer_store_dword v1, off, s[8:11], s44', 's_mov_b64 exec, -1'])
            if t > 0 and ks < 7: put(chk(ks + 1)[t - 1])
    stamp(e, 7)
    e('v_mov_b32 v15, 0'); e('v_mov_b32 v15, 0')
    e('s_add_u32 s31, s31, 1'); e('s_add_u32 s42, s26, s46')
    e('v_mov_b32 v15, 0')
    e('s_add_u32 s43, s26, s35'); e('v_mov_b32 v15, 0')
    for c in range(2):
        a = 16 + 8 * c
        for r in range(4): e(f'v_permlane32_swap_b32 v{a+r}, v{a+4+r}')
        e(f'v_pk_add_f32 v[{a}:{a+1}], v[{a}:{a+1}], v[{a+4}:{a+5}]'); e(f'v_pk_add_f32 v[{a+2}:{a+3}], v[{a+2}:{a+3}], v[{a+6}:{a+7}]')
    for c in range(2):
        a = 16 + 8 * c
        for r in (0, 2): e(f'ds_write2_b32 v{11-c}, v{a+r}, v{a+r+1} offset0:{r*40} offset1:{r*40+40}')
    if OPT['f2pos'] == 8: local_store(e, ['s_mov_b64 exec, s[20:21]', 'buffer_store_dword v1, off, s[8:11], s44', 's_mov_b64 exec, -1'])
    stamp(e, 8)
    e('s_waitcnt lgkmcnt(0)')
    stamp(e, 9)
    e('s_barrier')
    stamp(e, 10)
    for w in range(4): e(f'ds_read_b64 v[{36+2*w}:{37+2*w}], v7 offset:{w*1280}')
    if OPT['f2pos'] == 9: local_store(e, ['s_mov_b64 exec, s[20:21]', 'buffer_store_dword v1, off, s[8:11], s44', 's_mov_b64 exec, -1'])
    e('s_waitcnt lgkmcnt(2)')
    e('v_pk_add_f32 v[36:37], v[36:37], v[38:39]')
    e('s_waitcnt lgkmcnt(0)')
    e('v_pk_add_f32 v[40:41], v[40:41], v[42:43]')
    e('v_pk_add_f32 v[36:37], v[36:37], v[40:41]')
    e('v_cvt_pk_bf16_f32 v24, v36, v37')
    if OPT['lfirst']: local_store(e, ['buffer_store_dword v24, v13, s[8:11], s43 offen'])
    e('buffer_store_dword v24, v13, s[8:11], s42 offen sc1')
    if not OPT['lfirst']: local_store(e, ['buffer_store_dword v24, v13, s[8:11], s43 offen'])
    stamp(e, 6)
    e('s_mov_b32 s25, s32'); e('s_mov_b32 s32, s26'); e(f's_add_u32 s26, s26, {STEP_SZ}'); e('s_and_b32 s26, s26, 0xfffff'); e(f's_or_b32 s26, s26, {WS_STEP}')
    stamp_flush(e)
    e(f's_branch {X}_top')
    for ks in range(8):
        e.lab(f'{X}_f{ks}')
        if OPT['stamp']: e('s_add_u32 s99, s99, 1')
        poll(e, OI[ks:min(8, ks + NA)], 'o', issued=True)
        e(f's_branch {X}_b{ks}')
    flush_defer(e)

def gen_chain(e):
    gen_P(e); gen_VO(e)
```

```python
from common import *
from k_bulk import setup_load, P_X, F_K0, tstamp, BOPT
LB = 128 * KB
def dbg_add(e, off, total, go):
    L = e.uniq('DA')
    e('s_cmp_lg_u32 s27, 0'); e(f's_cbranch_scc1 {L}')
    e('v_mov_b32 v18, 1'); e('s_mov_b64 exec, 1')
    e(f'buffer_atomic_add v18, off, s[68:71], 0 offset:{off} sc0 sc1')
    e('s_waitcnt vmcnt(0)')
    e('v_readfirstlane_b32 s3, v18')
    e(f's_cmp_lg_u32 s3, {total-1}'); e(f's_cbranch_scc1 {L}_n')
    e(f'buffer_store_dword v18, off, s[68:71], 0 offset:{go} sc1')
    e.lab(L + '_n')
    e('s_mov_b64 exec, -1')
    e.lab(L)

def gen_start(e):
    D = 32; F = 64
    e('s_bitcmp1_b32 s2, 2'); e('s_cbranch_scc0 ST_misc')
    srd(e, 44, P_X, 4 * MB)
    e('s_lshr_b32 s23, s2, 3'); e('s_lshl_b32 s23, s23, 2'); e('s_and_b32 s3, s2, 3'); e('s_add_u32 s23, s23, s3')
    e('v_lshrrev_b32 v23, 8, v0')
    e('v_bfe_u32 v24, v0, 4, 4')
    e('v_lshlrev_b32 v25, 11, v24')
    e('v_lshl_add_u32 v25, v23, 3, v25')
    e('s_lshl_b32 s3, s23, 15'); e('s_lshl_b32 s4, s27, 9'); e('s_add_u32 s3, s3, s4')
    for kk in range(8):
        e(f'buffer_load_dwordx2 v[{D+4*kk}:{D+4*kk+1}], v25, s[44:47], s3 offen offset:{kk*64}')
        e(f'buffer_load_dwordx2 v[{D+4*kk+2}:{D+4*kk+3}], v25, s[44:47], s3 offen offset:{kk*64+32}')
    e('v_lshlrev_b32 v26, 6, v24'); e(f'v_add_u32 v26, {LB}, v26')
    e('s_lshl_b32 s3, s27, 4'); e('v_lshl_add_u32 v27, v23, 2, v26'); e('v_add_u32 v27, s3, v27')
    for n in range(32):
        if n % 2 == 0: e(f's_waitcnt vmcnt({15 - n // 2})')
        e(f'v_lshlrev_b32 v{F+2*n}, 16, v{D+n}')
        e(f'v_and_b32 v{F+2*n+1}, 0xffff0000, v{D+n}')
    if BOPT['tstamp'] == 2: tstamp(e)
    A = 28
    def tree(src, n):
        e(f'v_pk_add_f32 v[{A}:{A+1}], v[{src}:{src+1}], v[{src+2}:{src+3}]'); e(f'v_pk_add_f32 v[{A+2}:{A+3}], v[{src+4}:{src+5}], v[{src+6}:{src+7}]')
        for k in range(8, n, 2): t = A + (k & 2); e(f'v_pk_add_f32 v[{t}:{t+1}], v[{t}:{t+1}], v[{src+k}:{src+k+1}]')
    def fold(): e(f'v_pk_add_f32 v[{A}:{A+1}], v[{A}:{A+1}], v[{A+2}:{A+3}]'); e(f'v_add_f32 v{A}, v{A}, v{A+1}')
    def finish(off):
        fold()
        e(f'ds_write_b32 v27, v{A} offset:{off}')
        e('s_waitcnt lgkmcnt(0)'); e('s_barrier')
        for q in range(4): e(f'ds_read_b128 v[{D+4*q}:{D+4*q+3}], v26 offset:{off+16*q}')
        e('s_waitcnt lgkmcnt(0)')
        tree(D, 16); fold()
        e(f'v_mul_f32 v{A}, 0x3a800000, v{A}')
    tree(F, 64)
    finish(0)
    e(f'v_mov_b32 v22, v{A}')
    for n in range(0, 64, 2):
        t = A + (n & 2)
        e(f'v_pk_add_f32 v[24:25], v[{F+n}:{F+n+1}], v[22:23] op_sel_hi:[1,0] neg_lo:[0,1] neg_hi:[0,1]')
        if n < 4: e(f'v_pk_mul_f32 v[{t}:{t+1}], v[24:25], v[24:25]')
        else: e(f'v_pk_fma_f32 v[{t}:{t+1}], v[24:25], v[24:25], v[{t}:{t+1}]')
    finish(1024)
    e(f'v_cvt_pk_bf16_f32 v24, v22, v{A}')
    e('v_lshlrev_b32 v22, 16, v24')
    e(f'v_and_b32 v{A}, 0xffff0000, v24')
    e(f'v_add_f32 v{A}, 0x3727c5ac, v{A}')
    e(f'v_cvt_pk_bf16_f32 v{A}, v{A}, v{A}'); e(f'v_lshlrev_b32 v{A}, 16, v{A}')
    e(f'v_sqrt_f32 v{A}, v{A}'); e('s_nop 0')
    e(f'v_cvt_pk_bf16_f32 v{A}, v{A}, v{A}'); e(f'v_lshlrev_b32 v{A}, 16, v{A}')
    e(f'v_rcp_f32 v{A}, v{A}')
    e('s_lshl_b32 s3, s23, 10'); e('s_lshl_b32 s4, s27, 20'); e('s_add_u32 s3, s3, s4')
    for n in range(32):
        e(f'v_pk_add_f32 v[24:25], v[{F+2*n}:{F+2*n+1}], v[22:23] op_sel_hi:[1,0] neg_lo:[0,1] neg_hi:[0,1]')
        e('v_cvt_pk_bf16_f32 v25, v24, v25')
        e('v_lshlrev_b32 v24, 16, v25'); e('v_and_b32 v25, 0xffff0000, v25')
        e(f'v_pk_mul_f32 v[24:25], v[24:25], v[{A}:{A+1}] op_sel_hi:[1,0]')
        e(f'v_cvt_pk_bf16_f32 v{D+n}, v24, v25')
        if n % 4 == 3:
            kk = n // 4
            e(f'buffer_store_dwordx4 v[{D+4*kk}:{D+4*kk+3}], v0, s[8:11], s3 offen sc1')
            e(f's_add_u32 s3, s3, {128*KB}')
    if BOPT['tstamp'] == 2: tstamp(e)
    e('s_waitcnt vmcnt(0)'); e('s_barrier')
    if BOPT['tstamp'] == 2: tstamp(e)
    dbg_add(e, D_XN, 192, D_XGO)
    e('s_branch L_sched')
    e.lab('ST_misc')
    e('s_lshr_b32 s23, s2, 3'); e('s_lshl_b32 s23, s23, 1'); e('s_and_b32 s3, s2, 1'); e('s_add_u32 s23, s23, s3')
    for r in range(16): e(f'v_mov_b32 v{32+r}, {hex(SENT)}')
    e('s_lshl_b32 s5, s27, 10'); e('v_add_u32 v22, s5, v0')
    e('s_cmp_ge_u32 s23, 6'); e('s_cbranch_scc1 ST_fill')
    srd(e, 44, P_X + 2, 16 * KB)
    e('s_mov_b32 s3, 0x13'); e('s_bitcmp1_b32 s3, s23'); e('s_cselect_b32 s46, s46, 0')
    e('v_bfe_u32 v18, v22, 4, 3'); e('v_lshlrev_b32 v23, 11, v18')
    e('v_lshrrev_b32 v18, 9, v22'); e('v_lshl_add_u32 v23, v18, 6, v23')
    e('v_bfe_u32 v18, v22, 8, 1'); e('v_lshl_add_u32 v23, v18, 4, v23')
    e('v_bfe_u32 v18, v22, 7, 1'); e('v_lshl_add_u32 v23, v18, 2, v23')
    e('s_and_b32 s4, s23, 1'); e('s_lshl_b32 s4, s4, 10')
    e('s_cmp_eq_u32 s23, 4'); e('s_cselect_b32 s5, 1024, 0')
    for p in range(4):
        e(f's_add_u32 s3, s4, {(p&1)*512}')
        if p >= 2: e('s_add_u32 s3, s3, s5')
        for a_ in range(4): e(f'buffer_load_dword v{48+4*p+a_}, v23, s[44:47], s3 offen offset:{32*(a_&1) + 8*(a_>>1)}')
    e('s_waitcnt vmcnt(0)')
    for r in range(16):
        e(f'v_cmp_eq_u32 vcc, v{32+r}, v{48+r}'); e('s_nop 1'); e(f'v_cndmask_b32 v{32+r}, v{48+r}, -1, vcc')
    e.lab('ST_fill')
    e('s_lshl_b32 s3, s23, 14'); e(f's_add_u32 s3, s3, {WS_STEP}')
    for p in range(4):
        e(f'buffer_store_dwordx4 v[{32+4*p}:{35+4*p}], v22, s[8:11], s3 offen sc1'); e('s_add_u32 s3, s3, 4096')
    e('v_mov_b32 v19, 0'); e('s_lshl_b32 s3, s23, 8'); e(f's_add_u32 s3, s3, {WS_CNT}')
    e('s_mov_b64 exec, 1'); e('buffer_store_dword v19, off, s[8:11], s3 sc1'); e('buffer_store_dword v19, off, s[8:11], s3 offset:128 sc1'); e('s_mov_b64 exec, -1')
    e('s_waitcnt vmcnt(0)'); e('s_barrier')
    dbg_add(e, D_XN, 192, D_XGO)
    e(f's_cmp_lg_u32 s2, {MISC_WG}'); e('s_cbranch_scc1 L_sched')
    e('s_cmp_lg_u32 s27, 0'); e('s_cbranch_scc1 ST_mw')
    e('s_mov_b64 exec, 1')
    e('s_mov_b32 s23, 0')
    for k in range(-1, 4):
        for par in ((0,) if k < 0 else (0, 1) if k & 1 else (1, 0)):
            e(f's_mov_b32 s3, {hex(WS_STEP + max(k, 0)*STEP_SZ + 240*KB + par*8*KB + (k&1)*4*KB)}')
            e('s_waitcnt vmcnt(0)')
            e('s_memtime s[4:5]'); e('s_waitcnt lgkmcnt(0)')
            e('buffer_store_dword v19, off, s[8:11], s3 sc1')
            e('s_waitcnt vmcnt(0)')
            e('s_memtime s[6:7]'); e('s_waitcnt lgkmcnt(0)')
            if k >= 0:
                e('s_sub_u32 s6, s6, s4'); e('s_min_u32 s6, s6, 3000')
                e('s_add_u32 s23, s23, s6' if par == 0 else 's_sub_u32 s23, s23, s6')
    e('s_cmp_gt_i32 s23, 0'); e('s_cselect_b32 s3, 3, 2')
    e('s_lshl_b32 s23, s23, 2'); e('s_or_b32 s3, s3, s23')
    e('v_mov_b32 v18, s3')
    e(f'buffer_store_dword v18, off, s[68:71], 0 offset:{D_PAR} sc1')
    e('s_mov_b64 exec, -1')
    e.lab('ST_mw')
    e('s_barrier')
    e('s_branch L_sched')
```

```python
from build import *
import heapq
def make_schedule(step_us=2.5, t0=14.0, split={15: 16, 14: 8, 13: 4, 12: 2, 11: 2}, verbose=False, n2=1, n4=4):
    xcds = [x for x in range(8) if x not in XG]
    def speed(x):
        return 20.3 if (x ^ 1) in XG else 23.3
    def dur(t, x):
        u = speed(x)
        if t['t'] in (T_QK, T_VV): return u * (1.0, 0.62, 0.42)[t['nj4']]
        if t['t'] == T_FU: return u * 1.1
        if t['t'] == T_FD: return u * 0.6 * 3.5 + 2
        if t['t'] == T_WO: return 2.4 * t['nk'] + 2.5
        return 1.0 + 1.2 * t['nk']
    cols = [(T_QK, h) for h in range(32)] + [(T_VV, hp) for hp in range(16)]
    pools = {x: [] for x in xcds}
    rows = [(a, 2, hb) for a in range(n2) for hb in range(2)] + [(a, 1, 0) for a in range(n2, n4)] + [(a, 0, 0) for a in range(n4, 16, 2)]
    for ri, (a, nj4, hb) in enumerate(rows):
        for c, (ty, b) in enumerate(cols):
            pools[xcds[c % 6]].append(T(ty, a, b, nj4, urgent=1 if a < 4 else 0, hb=hb))
    for f in range(28):
        for r in range(8): pools[xcds[f % 6]].append(T(T_FU, 2 * r, f))
    shared = [T(T_FD, a, n, 1) for a in range(16) for n in range(4)]
    for a in range(16):
        ns = split.get(a, 1)
        if ns == 1: shared += [T(T_WO, a, n, 1, mode=1, nk=16) for n in range(4)]
        elif a == 15:
            shared += [T(T_WO, a, n, 2, k0=k, nk=1, p=1 + k, hb=hb) for k in range(16) for hb in range(2) for n in range(4)]
            shared += [T(T_FIN, a, u, k0=n, nk=1, p=17) for u in range(16) for n in range(4)]
        else:
            shared += [T(T_WO, a, n, 1, k0=k * 16 // ns, nk=16 // ns, p=1 + k) for k in range(ns) for n in range(4)]
            nf = ns
            shared += [T(T_FIN, a, u * 16 // nf, k0=n, nk=16 // nf, p=1 + ns) for u in range(nf) for n in range(4)]
    fins = {}
    for t in [t for t in shared if t['t'] == T_FIN]: fins.setdefault((t['a'], t['k0']), []).append(t)
    shared = [t for t in shared if t['t'] != T_FIN]
    fu_done = {a: [] for a in range(16)}; y_done = {a: [] for a in range(16)}; fd_started = {a: 0 for a in range(16)}
    kv_done = {a: [] for a in range(16)}
    INF = 1e9
    def ready(t):
        a = t['a']
        if t['t'] == T_FD: return max(fu_done[a]) if len(fu_done[a]) == 28 else INF
        if t['t'] == T_WO:
            if fd_started[a] < 4: return INF
            return t0 + step_us * (4 * (a + 1) + (0.6 if a < 15 else 0))
        if t['t'] == T_FIN: return max(y_done[a]) if len(y_done[a]) == (4 * t['p'] if a < 15 else 132) else INF
        return 0.0
    heap = [(0.0, wg) for wg in BULK]; heapq.heapify(heap)
    lists = {}; end = 0
    while heap and (shared or any(pools.values())):
        now, wg = heapq.heappop(heap); x = wg & 7
        pick = None
        own = pools[x]
        if own and own[0]['t'] != T_FU: pick = own.pop(0); st = now
        if pick is None:
            for i, t in enumerate(shared):
                if ready(t) <= now: pick = shared.pop(i); st = now; break
        if pick is None and own: pick = own.pop(0); st = now
        if pick is None:
            y = max(pools, key=lambda k: len(pools[k]))
            if pools[y]: pick = pools[y].pop(); st = now
        if pick is None:
            cand = [(ready(t), i) for i, t in enumerate(shared)]
            r, i = min(cand)
            if r >= INF:
                heapq.heappush(heap, (now + 1.0, wg)); continue
            pick = shared.pop(i); st = max(now, r)
        fin = st + dur(pick, x); a = pick['a']
        if pick['t'] == T_WO and pick['mode'] == 1: fin = max(fin, max(y_done[a][:4]) + 1.5)
        if pick['t'] == T_FU: fu_done[a].append(fin); fu_done[a + 1].append(fin)
        if pick['t'] in (T_QK, T_VV):
            kv_done[a].append(fin)
            if not pick['nj4']: kv_done[a + 1].append(fin)
        if pick['t'] == T_FD: fd_started[a] += 1
        if pick['t'] == T_FD or (pick['t'] == T_WO and pick['mode'] == 0): y_done[a].append(fin)
        lists.setdefault(wg, []).append(pick)
        if pick['t'] == T_WO and pick['mode'] == 0 and pick['hb'] == 0 and fins.get((a, pick['b'])):
            f = fins[a, pick['b']].pop(); lists[wg].append(f); fin += 1.0 + dur(f, x)
        end = max(end, fin)
        heapq.heappush(heap, (fin, wg))
    assert not any(fins.values())
    if verbose:
        print('sim end', end, 'kv ready', [round(max(kv_done[a])) for a in range(16)], 'fu', [round(max(fu_done[a])) for a in range(16)], 'fd', [round(max(y_done[a][:4])) for a in range(16)])
        print('max list', max(len(l) for l in lists.values()))
    return lists
```

```python
from sched import *
import k_chain, sys
out = 't_mega.s'; kw = {}
for a in sys.argv[1:]:
    k, v = a.split('=')
    if k == 'out': out = v
    elif k in ('step_us', 't0', 'quiet', 'fukey'): kw[k] = float(v)
    elif k in ('n2', 'n4', 'furow', 'qrows', 'lite'): kw[k] = int(v)
    elif k in BOPT: BOPT[k] = int(v)
    else: k_chain.OPT[k] = int(v)
src = build(make_schedule(verbose=True, **kw), k_chain.gen_chain)
open(out, 'w').write(src)
```

```python
import sys
from common import *
from k_ln import gen_start
from k_bulk import *
NAME = 'parallel_sum__memory_aug_recurrent_mem_tr__glu_gated_swiglu__prompt'
TL = 16

def is_chain(wg): return (wg & 7) in XG
BULK = [w for w in range(256) if not is_chain(w)]

def T(ty, a=0, b=0, nj4=0, mode=0, k0=0, nk=1, p=0, urgent=0, hb=0):
    return dict(hb=hb, t=ty, a=a, b=b, nj4=nj4, mode=mode, k0=k0, nk=nk, p=p, urgent=urgent)

def finalize(lists):
    tab = []
    for wg in range(256):
        l = lists.get(wg, [])
        assert len(l) < TL - 1
        row = []
        for k, t in enumerate(l):
            pref = 0
            if k > 0:
                p = l[k - 1]
                if p['t'] != T_FIN and t['t'] in (T_QK, T_VV, T_FU) and p['nj4'] == t['nj4'] and not p['urgent']:
                    pref = 1
            row.append(desc(t['t'], t['a'], t['b'], t['nj4'], pref, t['mode'], t['k0'], t['nk'], t['p'], t['hb']))
        row += [0] * (TL - len(row))
        tab += row
    return tab

def build(lists, chain_gen):
    e = E()
    K = NAME + '_kernel'
    hdr = open('cdna_kernels/' + NAME + '.s.ref').read().split('\n')
    for l in hdr:
        if l.startswith('; Override'): break
        e.raw(l)
    e.raw('; @launch grid=(256,1,1) block=(256,1,1) lds=163840')
    e.raw('.amdgcn_target "amdgcn-amd-amdhsa--gfx950"\n.text')
    e.raw(f'.globl {K}\n.p2align 8\n.type {K},@function\n{K}:')
    e('s_cmp_ge_u32 s2, 256')
    e('s_cbranch_scc1 L_exit')
    load_ptrs(e)
    e('v_lshrrev_b32 v18, 6, v0')
    e('s_mov_b32 s88, s2')
    e('v_readfirstlane_b32 s27, v18')
    e('s_lshr_b32 s28, s27, 1'); e('s_and_b32 s29, s27, 1')
    e('s_getreg_b32 s89, hwreg(HW_REG_XCC_ID, 0, 3)'); e('s_sub_u32 s89, s89, s2'); e('s_and_b32 s89, s89, 7')
    e('s_waitcnt lgkmcnt(0)')
    srd(e, 8, P_WS, WS_SIZE)
    srd(e, 68, P_DBG, 256)
    e('s_or_b32 s3, s2, s27'); e('s_cmp_lg_u32 s3, 0'); e('s_cbranch_scc1 L_role')
    e('s_add_u32 s3, s89, 1'); e('v_mov_b32 v18, s3')
    e('s_mov_b64 exec, 1'); e(f'buffer_store_dword v18, off, s[68:71], 0 offset:{D_ROT} sc1'); e('s_mov_b64 exec, -1')
    e('s_branch L_role')
    e.lab('L_redo')
    e('s_mov_b32 s89, s3')
    e('s_waitcnt vmcnt(0) lgkmcnt(0)'); e('s_barrier')
    e('v_mbcnt_lo_u32_b32 v0, -1, 0'); e('v_mbcnt_hi_u32_b32 v0, -1, v0')
    e.lab('L_role')
    e('s_add_u32 s3, s88, s89'); e('s_and_b32 s3, s3, 7'); e('s_andn2_b32 s2, s88, 7'); e('s_or_b32 s2, s2, s3')
    e('s_getpc_b64 s[38:39]')
    e.lab('PC_0')
    e('s_add_u32 s38, s38, TABLE_0-PC_0'); e('s_addc_u32 s39, s39, 0')
    e(f's_mul_i32 s3, s2, {TL*4}')
    e('s_add_u32 s38, s38, s3'); e('s_addc_u32 s39, s39, 0')
    e('s_load_dword s31, s[38:39], 0')
    e('s_and_b32 s3, s2, 7')
    e('s_lshr_b32 s34, s2, 3')
    e('s_mov_b32 s33, 0')
    e(f's_cmp_eq_u32 s3, {XG[0]}'); e('s_cbranch_scc1 L_chain')
    e('s_mov_b32 s33, 1')
    e(f's_cmp_lg_u32 s3, {XG[1]}'); e('s_cbranch_scc1 L_bulk')
    e.lab('L_chain')
    e('s_waitcnt lgkmcnt(0)')
    e('s_cmp_lt_u32 s34, 16'); e('s_cbranch_scc1 L_chainP')
    e('s_branch L_chainV')
    e.lab('L_bulk')
    bulk_init(e)
    tstamp(e)
    gen_start(e)
    gen_sched(e)
    e.lab('L_abort')
    e.lab('L_exit')
    e('s_endpgm')
    gen_gemm(e, 8)
    gen_gemm(e, 4)
    gen_gemm(e, 2)
    gen_fin(e)
    chain_gen(e)
    e.raw('.p2align 6')
    e.raw('.type TABLE_0,@object')
    e.lab('TABLE_0')
    tab = finalize(lists)
    for i in range(0, len(tab), 16):
        e.raw('.long ' + ','.join(hex(x) for x in tab[i:i+16]))
    e.raw(f'.size TABLE_0, {len(tab)*4}')
    e.raw('.section .rodata,"a"')
    e.raw(kd(K, 512, 102, 256))
    return e.text()
```

```python
MB = 1 << 20
KB = 1 << 10
WS_XN  = 0
WS_QKV = 4 * MB
WS_H   = 52 * MB
WS_O   = 66 * MB
WS_STEP = 82 * MB
STEP_SZ = 256 * KB
ST_PR = 0
ST_PL = 64 * KB
ST_OM = 96 * KB
ST_VM = 160 * KB
ST_FL = 224 * KB
ST_F2 = 228 * KB
ST_F3 = 240 * KB + 1024
WS_CNT = 95 * MB
WS_Y   = 96 * MB
WS_DBG = 224 * MB
WS_SIZE = 256 * MB
SENT = 0xFFBFFFBF
C_KV  = 0
C_FU  = 16
C_O   = 32
C_Y   = 64
NCNT = 128
D_XN = 0
D_CH = 8
D_PAR = 128
D_XGO = 132
D_ROT = 136
import os
XG = tuple(int(c) for c in os.environ.get('XGSEL', '02'))
MISC = [x for x in range(4) if x not in XG]
MISC_WG = 248 + MISC[0]

class E:
    def __init__(s): s.L = []; s.n = 0
    def __call__(s, t):
        for x in t.split('\n'): s.L.append('  ' + x.strip())
    def many(s, l):
        for x in l: s(x)
    def lab(s, t): s.L.append(t + ':')
    def raw(s, t): s.L.append(t)
    def uniq(s, p='L'):
        s.n += 1; return f'{p}_{s.n}'
    def text(s): return '\n'.join(s.L) + '\n'

def kd(name, vgpr, sgpr, accum):
    return f'''.p2align 6
.amdhsa_kernel {name}
  .amdhsa_next_free_vgpr {vgpr}
  .amdhsa_next_free_sgpr {sgpr}
  .amdhsa_accum_offset {accum}
  .amdhsa_group_segment_fixed_size 0
  .amdhsa_kernarg_size 112
  .amdhsa_user_sgpr_count 2
  .amdhsa_user_sgpr_kernarg_segment_ptr 1
  .amdhsa_system_sgpr_workgroup_id_x 1
.end_amdhsa_kernel
'''
def srd(e, d, lo, size):
    e(f's_mov_b32 s{d}, s{lo}'); e(f's_mov_b32 s{d+1}, s{lo+1}')
    e(f's_mov_b32 s{d+2}, {hex(size)}'); e(f's_mov_b32 s{d+3}, 0x20000')

def verify_rot(e, issued=False):
    L = e.uniq('VR')
    e('s_mov_b32 s4, 0')
    if issued: e('v_mov_b32 v18, v31'); e(f's_branch {L}_c')
    e.lab(L)
    e(f'buffer_load_dword v18, off, s[68:71], 0 offset:{D_ROT} sc1')
    e('s_add_u32 s4, s4, 1'); e('s_cmp_gt_u32 s4, 0x10000'); e('s_cbranch_scc1 L_abort')
    e('s_waitcnt vmcnt(0)')
    e.lab(L + '_c')
    e('v_readfirstlane_b32 s3, v18')
    e('s_cmp_eq_u32 s3, 0'); e(f's_cbranch_scc1 {L}')
    e('s_sub_u32 s3, s3, 1'); e('s_and_b32 s3, s3, 7')
    e('s_cmp_lg_u32 s3, s89'); e('s_cbranch_scc1 L_redo')
```

```python
from common import *
T_END, T_QK, T_VV, T_FU, T_FD, T_WO, T_FIN = 0, 1, 2, 3, 4, 5, 6
def desc(t, a=0, b=0, nj4=0, pref=0, mode=0, k0=0, nk=1, p=0, hb=0):
    return t | (nj4 == 1) << 3 | (nj4 == 2) << 6 | hb << 7 | pref << 4 | mode << 5 | a << 8 | b << 12 | k0 << 18 | (nk - 1) << 22 | p << 26
F_A, F_B, F_K0, F_NK, F_P = 0x40008, 0x6000c, 0x40012, 0x40016, 0x5001a
P_X, P_WQ, P_WK, P_WV, P_WO, P_W1, P_W3, P_W2, P_OUT, P_DBG, P_WS = 56, 60, 62, 64, 66, 72, 74, 76, 78, 80, 82
S = 4
RINGM = 0x1ffff
SPIN_MAX = 1 << 16

def acc(NJ, i, j):
    t = i * NJ + j
    return ('v', 32 + 4 * t) if t < 56 else ('a', (t - 56) * 4)
def rr(r, n=4): return f'{r[0]}[{r[1]}:{r[1]+n-1}]'
def wfrag(half, i): return ('a', 32 + half * 16 + i * 4)
def xfrag(NJ, st, j): return ('a', 64 + st * 32 + j * 4)

def load_ptrs(e):
    e('s_load_dwordx4 s[56:59], s[0:1], 0')
    e('s_load_dwordx8 s[60:67], s[0:1], 16')
    e('s_load_dwordx8 s[72:79], s[0:1], 64')
    e('s_load_dwordx4 s[80:83], s[0:1], 96')

def wait_counter(e, offs_sgpr, target, tag, srd_='s[8:11]', slp=8, wg=True, imm=0):
    L = e.uniq('W' + tag)
    if wg: e('s_cmp_lg_u32 s27, 0'); e(f's_cbranch_scc1 {L}_ok')
    e('s_mov_b32 s4, 0')
    e.lab(L)
    e(f'buffer_load_dword v18, off, {srd_}, {offs_sgpr} offset:{imm} sc1')
    e('s_add_u32 s4, s4, 1')
    e(f's_cmp_gt_u32 s4, {SPIN_MAX}')
    e('s_cbranch_scc1 L_abort')
    e('s_waitcnt vmcnt(0)')
    e('v_readfirstlane_b32 s3, v18')
    e(f's_cmp_ge_u32 s3, {target}')
    e(f's_cbranch_scc1 {L}_ok')
    e(f's_sleep {slp}')
    e(f's_branch {L}')
    e.lab(L + '_ok')
    if wg: e('s_barrier')

def signal(e):
    L = e.uniq('SIG')
    e('s_cmp_lg_u32 s27, 0')
    e(f's_cbranch_scc1 {L}')
    e('v_mov_b32 v18, s37')
    e('s_mov_b64 exec, 1')
    e('buffer_atomic_add v18, off, s[8:11], s35 sc1')
    e('s_cmp_eq_u32 s36, 0')
    e(f's_cbranch_scc1 {L}_1')
    e('buffer_atomic_add v18, off, s[8:11], s36 sc1')
    e.lab(L + '_1')
    e('s_mov_b64 exec, -1')
    e.lab(L)
    e('s_mov_b32 s35, 0')

def bulk_init(e):
    e('v_and_b32 v18, 63, v0')
    e('v_lshlrev_b32 v0, 4, v18')
    e('v_lshrrev_b32 v19, 2, v18')
    e('v_and_b32 v20, 7, v19')
    e('v_lshlrev_b32 v19, 8, v19')
    e('v_and_b32 v21, 3, v18')
    e('v_lshl_add_u32 v19, v21, 3, v19')
    e('v_add_u32 v19, 16384, v19')
    e('s_lshl_b32 s3, s29, 2')
    e('v_xor_b32 v20, s3, v20')
    for n in range(4):
        e(f'v_xor_b32 v21, {n}, v20')
        e(f'v_lshl_add_u32 v{2+n}, v21, 5, v19')
    e('v_lshrrev_b32 v19, 4, v18')
    e('s_lshl_b32 s3, s29, 4')
    e('v_add_u32 v16, s3, v19')
    e('v_bfe_u32 v20, v18, 1, 3')
    e('v_xor_b32 v20, v20, v19')
    e('v_and_b32 v21, 1, v18')
    e('v_lshlrev_b32 v21, 4, v21')
    e('v_lshl_add_u32 v17, v20, 5, v21')
    e('s_lshl_b32 s42, s27, 12')
    e('s_add_u32 s42, s42, 16384')
    e('s_mov_b32 s16, s8'); e('s_mov_b32 s17, s9'); e('s_mov_b32 s18, s10'); e('s_mov_b32 s19, 0x20000')
    e('s_mov_b32 s12, s8'); e('s_mov_b32 s13, s9'); e('s_mov_b32 s14, 0'); e('s_mov_b32 s15, 0x20000')
    e('s_mov_b32 s35, 0'); e('s_mov_b32 s87, 0')
    if BOPT['tstamp']:
        e('s_lshl_b32 s86, s2, 14'); e('s_lshl_b32 s3, s27, 10'); e('s_add_u32 s86, s86, s3'); e(f's_add_u32 s86, s86, {WS_DBG}'); e('s_mov_b32 s30, 0')

def w_voffsets(e, rs, vmode):
    e(f'v_mul_u32_u24 v18, {rs}, v16')
    e('v_xor_b32 v20, 0x80, v17')
    if vmode:
        e('v_and_b32 v19, 0x80, v17'); e('v_add_u32 v19, v19, v17')
        e('v_add_u32 v12, v18, v19')
        e('v_and_b32 v19, 0x80, v20'); e('v_add_u32 v20, v19, v20')
    else:
        e('v_add_u32 v12, v18, v17')
    d = 4 * rs - 1024
    e('v_add_u32 v13, v18, v20')
    e(f'v_add_u32 v13, {d}, v13')
    e(f'v_add_u32 v14, {2*d}, v12')
    e(f'v_add_u32 v15, {2*d}, v13')

def setup_load(e, dreg, tag):
    L = 'SL' + tag
    e(f's_bfe_u32 s4, {dreg}, {F_A}')
    e(f's_bfe_u32 s5, {dreg}, {F_B}')
    e(f's_bfe_u32 s20, {dreg}, 0x50007'); e('s_lshl_b32 s20, s20, 12')
    e('s_mov_b32 s18, s10')
    e('s_mov_b32 s40, 32')
    e(f's_and_b32 s3, {dreg}, 7')
    e(f's_cmp_eq_u32 s3, {T_VV}'); e(f's_cbranch_scc1 {L}_v')
    e(f's_cmp_eq_u32 s3, {T_FU}'); e(f's_cbranch_scc1 {L}_fu')
    e(f's_cmp_eq_u32 s3, {T_FD}'); e(f's_cbranch_scc1 {L}_fd')
    e(f's_cmp_eq_u32 s3, {T_WO}'); e(f's_cbranch_scc1 {L}_wo')
    e('s_cmp_eq_u32 s28, 0')
    e(f's_cselect_b32 s12, s{P_WQ}, s{P_WK}'); e(f's_cselect_b32 s13, s{P_WQ+1}, s{P_WK+1}')
    e(f's_mov_b32 s14, {8*MB}'); e(f's_mov_b32 s22, {32*8192}')
    e('s_lshl_b32 s21, s5, 8')
    w_voffsets(e, 8192, 0)
    e(f's_branch {L}_done')
    e.lab(L + '_v')
    e(f's_mov_b32 s12, s{P_WV}'); e(f's_mov_b32 s13, s{P_WV+1}')
    e(f's_mov_b32 s14, {8*MB}'); e(f's_mov_b32 s22, {32*8192}')
    e('s_lshl_b32 s21, s5, 9'); e('s_lshl_b32 s3, s28, 8'); e('s_add_u32 s21, s21, s3')
    w_voffsets(e, 8192, 0)
    e(f's_branch {L}_done')
    e.lab(L + '_fu')
    e('s_cmp_eq_u32 s28, 0')
    e(f's_cselect_b32 s12, s{P_W1}, s{P_W3}'); e(f's_cselect_b32 s13, s{P_W1+1}, s{P_W3+1}')
    e(f's_mov_b32 s14, {7*MB}'); e(f's_mov_b32 s22, {32*7168}')
    e('s_lshl_b32 s21, s5, 8')
    w_voffsets(e, 7168, 0)
    e(f's_branch {L}_done')
    e.lab(L + '_fd')
    e(f's_mov_b32 s12, s{P_W2}'); e(f's_mov_b32 s13, s{P_W2+1}')
    e(f's_mov_b32 s14, {7*MB}'); e(f's_mov_b32 s22, {32*2048}')
    e('s_lshl_b32 s21, s5, 9'); e('s_lshl_b32 s3, s28, 8'); e('s_add_u32 s21, s21, s3')
    e(f's_add_u32 s20, s20, {WS_H}')
    e('s_mov_b32 s40, 112')
    w_voffsets(e, 2048, 0)
    e(f's_branch {L}_done')
    e.lab(L + '_wo')
    e(f's_mov_b32 s12, s{P_WO}'); e(f's_mov_b32 s13, s{P_WO+1}')
    e(f's_mov_b32 s14, {8*MB}'); e(f's_mov_b32 s22, {32*2048}')
    e('s_lshl_b32 s21, s5, 9'); e('s_lshl_b32 s3, s28, 8'); e('s_add_u32 s21, s21, s3')
    e(f's_bfe_u32 s3, {dreg}, {F_K0}')
    e('s_lshl_b32 s4, s3, 19'); e('s_add_u32 s21, s21, s4')
    e('s_lshl_b32 s4, s3, 20'); e('s_add_u32 s20, s20, s4')
    e(f's_add_u32 s20, s20, {WS_O}')
    e(f's_bfe_u32 s40, {dreg}, {F_NK}'); e('s_add_u32 s40, s40, 1'); e('s_lshl_b32 s40, s40, 3')
    w_voffsets(e, 2048, 0)
    e.lab(L + '_done')

BOPT = dict(tstamp=0, wpf=0)
def tstamp(e):
    if not BOPT['tstamp']: return
    e('s_memrealtime s[84:85]'); e('s_waitcnt lgkmcnt(0)')
    e('v_mov_b32 v18, s84'); e('v_mov_b32 v19, s30')
    e('s_mov_b64 exec, 1'); e('buffer_store_dwordx2 v[18:19], off, s[8:11], s86'); e('s_mov_b64 exec, -1')
    e('s_add_u32 s86, s86, 8')

def next_desc(e):
    tstamp(e)
    e('s_mov_b32 s30, s31')
    e('s_add_u32 s38, s38, 4'); e('s_addc_u32 s39, s39, 0')
    e('s_load_dword s31, s[38:39], 0')

def dep_wait(e):
    L = e.uniq('DW')
    e('s_cmp_lg_u32 s87, 0'); e(f's_cbranch_scc1 {L}_x')
    wait_counter(e, '0', 1, 'xn', 's[68:71]', 2, imm=D_XGO)
    e('s_mov_b32 s87, 1')
    e.lab(L + '_x')
    e('s_and_b32 s3, s30, 7')
    e(f's_cmp_lt_u32 s3, {T_FD}'); e(f's_cbranch_scc1 {L}')
    e(f's_bfe_u32 s7, s30, {F_A}')
    e(f's_cmp_eq_u32 s3, {T_FD}'); e(f's_cbranch_scc0 {L}_o')
    e('s_lshl_b32 s7, s7, 7'); e(f's_add_u32 s7, s7, {WS_CNT + C_FU*128}')
    wait_counter(e, 's7', 28, 'dep', slp=8)
    e(f's_branch {L}')
    e.lab(L + '_o')
    e('s_cmp_lg_u32 s27, 0'); e(f's_cbranch_scc1 {L}_b')
    e(f's_bfe_u32 s5, s30, {F_K0}'); e('s_lshl_b32 s5, s5, 8'); e(f's_add_u32 s5, s5, {WS_CNT + C_O*128}')
    e('s_lshr_b32 s3, s40, 2'); e('s_bfm_b64 exec, s3, 0')
    e('v_lshlrev_b32 v19, 3, v0'); e('s_mov_b32 s4, 0')
    e.lab(L + '_p')
    e('buffer_load_dword v18, v19, s[8:11], s5 offen sc1')
    e('s_add_u32 s4, s4, 1'); e(f's_cmp_gt_u32 s4, {SPIN_MAX}'); e('s_cbranch_scc1 L_abort')
    e('s_waitcnt vmcnt(0)')
    e('v_cmp_ge_u32 vcc, s7, v18')
    e(f's_cbranch_vccz {L}_q')
    e('v_cmp_gt_u32 vcc, s7, v18')
    e(f's_cbranch_vccz {L}_r')
    e('s_sleep 64')
    e.lab(L + '_r')
    e('s_sleep 3'); e(f's_branch {L}_p')
    e.lab(L + '_q')
    e('s_mov_b64 exec, -1')
    e.lab(L + '_b')
    e('s_barrier')
    e.lab(L)
    tstamp(e)

def gen_gemm(e, NJ):
    G = f'G{NJ}'
    NX = NJ // 2
    ND = NX + 4
    NM = 4 * NJ
    def dmaX(i): return f'buffer_load_dwordx4 v11, s[16:19], s20 offen offset:{i*1024} sc1 lds'
    def dmaW(i): return f'buffer_load_dwordx4 v{12+i}, s[12:15], s21 offen offset:{i*1024} lds'
    preX = ['s_add_u32 m0, s24, s41']; postX = [f's_add_u32 s20, s20, {128*KB}']
    preW = ['s_add_u32 m0, s24, s42']
    postW = ['s_add_u32 s21, s21, s22', 's_add_u32 s24, s24, 32768', f's_and_b32 s24, s24, {RINGM}']
    def rw(half):
        r = []
        for i in range(4):
            b = wfrag(half, i)[1]
            r += [f'ds_read_b64_tr_b16 a[{b}:{b+1}], v{7+i} offset:{half*8192}', f'ds_read_b64_tr_b16 a[{b+2}:{b+3}], v{7+i} offset:{half*8192+4096}']
        return r
    def rx(st): return [f'ds_read_b128 {rr(xfrag(NJ,st,j))}, v6 offset:{j*1024}' for j in range(NJ)]
    adv = ['s_add_u32 s25, s25, 32768', f's_and_b32 s25, s25, {RINGM}', 'v_add_u32 v6, s25, v1'] + [f'v_add_u32 v{7+i}, s25, v{2+i}' for i in range(4)]
    def rdB(st):
        a = rw(0); b = rx(st); return a[:2] + b + a[2:]
    def phase(half, st, rd, pre, dmas, post, extra, first=False, head=()):
        fill = [[] for _ in range(NM)]
        rpg = {8: 1, 4: 2, 2: 3}[NJ]
        for n, x in enumerate(rd): fill[n // rpg].append(x)
        nr = -(-len(rd) // rpg)
        for n, x in enumerate(extra): fill[min(NM - 1, nr + n // rpg)].append(x)
        if NJ == 8: pos = (18, 22, 26, 30)
        elif NJ == 4: pos = (8, 10, 12, 14) if len(dmas) == 4 else (9, 13)
        else: pos = (3, 4, 5, 6) if len(dmas) == 4 else (5,)
        fill[pos[0] - 1] += pre
        for i, x in enumerate(dmas): fill[pos[i]].append(x)
        fill[NM - 1] += post
        e.many(head)
        k = 0
        for i in range(4):
            for j in range(NJ):
                ac = rr(acc(NJ, half * 4 + i, j))
                e(f'v_mfma_f32_16x16x32_bf16 {ac}, {rr(wfrag(half,i))}, {rr(xfrag(NJ,st,j))}, {"0" if first else ac}')
                e.many(fill[k]); k += 1
    DX = [dmaX(i) for i in range(NX)]; DW = [dmaW(i) for i in range(4)]
    e.lab(G + '_cold')
    e(f's_mul_i32 s41, s27, {NX*1024}')
    e('v_add_u32 v11, s41, v0')
    e(f's_mul_i32 s3, s28, {NJ*1024}')
    e('v_add_u32 v1, s3, v0')
    setup_load(e, 's30', G + 'c')
    e('s_mov_b32 s24, 0'); e('s_mov_b32 s25, 0')
    for t in range(S - 1):
        e.many(preW); e('s_nop 0'); e.many(DW); e.many(postW)
    dep_wait(e)
    for t in range(S):
        e(f's_add_u32 m0, s41, {t*32768}'); e('s_nop 0'); e.many(DX); e.many(postX)
    e('v_mov_b32 v6, v1')
    for i in range(4): e(f'v_mov_b32 v{7+i}, v{2+i}')
    e(f's_waitcnt vmcnt({NX})')
    e('s_barrier')
    e.many(rw(0) + rx(0))
    e.lab(G + '_task')
    e(f's_sub_u32 s32, s40, {S+1}')
    e('s_sub_u32 s33, s40, 1')
    e('s_cmp_lg_u32 s35, 0')
    e('s_cselect_b32 s43, 3, s32')
    bar = [f's_waitcnt lgkmcnt(0) vmcnt({ND*(S-2)})', 's_barrier']
    phase(0, 0, rw(1), preW, DW, postW, adv, first=True, head=['s_waitcnt lgkmcnt(0)'])
    e.many(bar)
    phase(1, 0, rdB(1), preX, DX, postX, [], first=True)
    phase(0, 1, rw(1), preW, DW, postW + ['s_mov_b32 s26, 1'], adv, head=['s_waitcnt lgkmcnt(0)'])
    e.raw('.p2align 6')
    e.lab(G + '_loop')
    e.many(bar)
    phase(1, 1, rdB(0), preX, DX, postX + ['s_cmp_eq_u32 s26, s33'], [])
    e(f's_cbranch_scc1 {G}_epi')
    phase(0, 0, rw(1), preW, DW, postW + ['s_cmp_eq_u32 s26, s43'], adv, head=['s_waitcnt lgkmcnt(0)'])
    e(f's_cbranch_scc1 {G}_event')
    e.lab(G + '_back')
    e.many(bar)
    phase(1, 0, rdB(1), preX, DX, postX, [])
    phase(0, 1, rw(1), preW, DW, postW + ['s_add_u32 s26, s26, 2'], adv, head=['s_waitcnt lgkmcnt(0)'])
    e(f's_branch {G}_loop')
    e.lab(G + '_event')
    e('s_cmp_eq_u32 s26, s32')
    e(f's_cbranch_scc1 {G}_switch')
    signal(e)
    e('s_mov_b32 s43, s32')
    e(f's_branch {G}_back')
    e.lab(G + '_switch')
    e('s_bitcmp1_b32 s31, 4')
    e(f's_cbranch_scc1 {G}_sw1')
    e('s_mov_b32 s14, 0'); e('s_mov_b32 s18, 0')
    e(f's_branch {G}_back')
    e.lab(G + '_sw1')
    setup_load(e, 's31', G + 's')
    e(f's_branch {G}_back')
    e.lab(G + '_epi')
    e(f's_bfe_u32 s4, s30, {F_A}')
    e(f's_bfe_u32 s5, s30, {F_B}')
    e('s_bfe_u32 s6, s30, 0x50007'); e('s_lshl_b32 s6, s6, 2')
    e(f's_mul_i32 s3, s28, {NJ}')
    e('s_add_u32 s6, s6, s3')
    e('s_lshl_b32 s35, s4, 7')
    e(f's_add_u32 s35, s35, {WS_CNT}')
    e('s_mov_b32 s37, 1')
    e('s_and_b32 s3, s30, 7')
    if NJ == 8:
        e(f's_cmp_eq_u32 s3, {T_FU}'); e(f's_cbranch_scc1 {G}_fu')
    else:
        e(f's_cmp_ge_u32 s3, {T_FD}'); e(f's_cbranch_scc1 {G}_fd')
    def pack(m, j):
        a0 = acc(NJ, 2 * m, j); a1 = acc(NJ, 2 * m + 1, j)
        R0 = a0[1]
        if a1[0] == 'a':
            R1 = 20 + 4 * (j & 1)
            for q in range(4): e(f'v_accvgpr_read_b32 v{R1+q}, a{a1[1]+q}')
        else: R1 = a1[1]
        e(f'v_cvt_pk_bf16_f32 v{R0}, v{R0}, v{R0+1}')
        e(f'v_cvt_pk_bf16_f32 v{R0+1}, v{R0+2}, v{R0+3}')
        e(f'v_cvt_pk_bf16_f32 v{R0+2}, v{R1}, v{R1+1}')
        e(f'v_cvt_pk_bf16_f32 v{R0+3}, v{R1+2}, v{R1+3}')
        return R0
    def sig2(base):
        e(f's_add_u32 s35, s35, {base*128}')
        if NJ == 8: e('s_add_u32 s36, s35, 128')
        else: e('s_mov_b32 s36, 0')
    sig2(C_KV)
    if NJ > 2: e('s_mov_b32 s37, 2')
    e('s_lshr_b32 s6, s6, 1'); e(f's_mul_i32 s6, s6, {24*KB}')
    e(f's_mul_i32 s5, s5, {1536*KB}'); e('s_add_u32 s6, s6, s5')
    e(f's_add_u32 s5, s5, {16*KB}')
    e(f's_cmp_eq_u32 s3, {T_VV}')
    e('s_cselect_b32 s5, s5, 0')
    e(f's_mov_b32 s7, {8*KB}'); e(f's_cmov_b32 s7, {1536*KB}')
    e('s_add_u32 s6, s6, s5')
    e('s_lshl_b32 s3, s29, 11'); e('s_add_u32 s6, s6, s3')
    e(f's_add_u32 s6, s6, {WS_QKV}')
    for m in range(4):
        if m == 2: e('s_add_u32 s6, s6, s7')
        for j in range(NJ):
            R = pack(m, j)
            e(f's_add_u32 s3, s6, {(j>>1)*24*KB + (j&1)*4096}')
            e(f'buffer_store_dwordx4 v[{R}:{R+3}], v0, s[8:11], s3 offen offset:{(m&1)*1024} sc1')
    e.lab(G + '_done')
    e('s_bitcmp1_b32 s31, 4')
    e('s_cbranch_scc0 L_drain')
    next_desc(e)
    e(f's_branch {G}_task')
    if NJ == 8:
        e.lab(G + '_fu')
        sig2(C_FU)
        e('s_lshl_b32 s5, s5, 2'); e('s_lshl_b32 s3, s29, 1'); e('s_add_u32 s5, s5, s3')
        e('s_lshl_b32 s5, s5, 17'); e('s_lshl_b32 s6, s6, 10'); e('s_add_u32 s6, s6, s5')
        e(f's_add_u32 s6, s6, {WS_H}')
        e('s_mov_b32 s7, 0xbfb8aa3b')
        for m in range(2):
            for j in range(NJ):
                for ii in range(2):
                    i = 2 * m + ii
                    g = acc(NJ, i, j)[1]; ua = acc(NJ, i + 4, j)
                    if ua[0] == 'a':
                        u = 28
                        for q in range(4): e(f'v_accvgpr_read_b32 v{u+q}, a{ua[1]+q}')
                    else: u = ua[1]
                    T = 20 + 4 * ii
                    for q in range(4): e(f'v_mul_f32 v{T+q}, s7, v{g+q}')
                    for q in range(4): e(f'v_exp_f32 v{T+q}, v{T+q}')
                    for q in range(0, 4, 2): e(f'v_pk_mul_f32 v[{g+q}:{g+q+1}], v[{g+q}:{g+q+1}], v[{u+q}:{u+q+1}]')
                    for q in range(4): e(f'v_add_f32 v{T+q}, 1.0, v{T+q}')
                    for q in range(4): e(f'v_rcp_f32 v{T+q}, v{T+q}')
                for ii in range(2):
                    g = acc(NJ, 2 * m + ii, j)[1]; T = 20 + 4 * ii
                    for q in range(0, 4, 2): e(f'v_pk_mul_f32 v[{g+q}:{g+q+1}], v[{g+q}:{g+q+1}], v[{T+q}:{T+q+1}]')
                R = pack(m, j)
                if j % 4 == 0: e(f's_add_u32 s3, s6, {m*128*KB + j*1024}')
                e(f'buffer_store_dwordx4 v[{R}:{R+3}], v0, s[8:11], s3 offen offset:{(j&3)*1024} sc1')
        e(f's_branch {G}_done')
    else:
        e.lab(G + '_fd')
        e('s_lshl_b32 s35, s4, 2'); e('s_add_u32 s35, s35, s5'); e('s_lshl_b32 s35, s35, 7'); e(f's_add_u32 s35, s35, {WS_CNT + C_Y*128}')
        e('s_mov_b32 s36, 0'); e(f's_mov_b32 s37, {NJ//2}')
        e('s_lshl_b32 s6, s6, 15')
        e('s_lshl_b32 s5, s5, 9'); e('s_add_u32 s6, s6, s5')
        e('s_lshl_b32 s5, s29, 7'); e('s_add_u32 s6, s6, s5')
        e('v_lshrrev_b32 v20, 4, v0')
        e('v_and_b32 v21, 15, v20'); e('v_lshlrev_b32 v21, 11, v21')
        e('v_bfe_u32 v22, v20, 4, 1'); e('v_lshl_add_u32 v21, v22, 5, v21')
        e('v_lshrrev_b32 v22, 5, v20'); e('v_lshl_add_u32 v21, v22, 4, v21')
        srd(e, 44, P_X, 4 * MB); srd(e, 48, P_WS, WS_SIZE)
        e('s_mov_b32 s7, s6')
        e(f's_bfe_u32 s5, s30, {F_P}'); e('s_lshl_b32 s5, s5, 22'); e(f's_add_u32 s5, s5, {WS_Y}')
        e(f's_cmp_eq_u32 s3, {T_FD}'); e(f's_cbranch_scc1 {G}_fd2')
        e('s_mov_b32 s46, 0')
        e('s_bitcmp1_b32 s30, 5'); e(f's_cbranch_scc0 {G}_fd2')
        wait_counter(e, 's35', 2, 'y0')
        srd(e, 44, P_WS, WS_SIZE); srd(e, 48, P_OUT, 4 * MB)
        e(f's_add_u32 s7, s6, {WS_Y}'); e('s_mov_b32 s5, 0')
        e.lab(G + '_fd2')
        e('s_add_u32 s6, s6, s5')
        for j in range(NJ):
            e(f's_add_u32 s3, s7, {j*32768}')
            for ip in range(4):
                Y = 160 + 4 * (j * 4 + ip)
                e(f'buffer_load_dwordx4 v[{Y}:{Y+3}], v21, s[44:47], s3 offen offset:{(ip>>1)*256+(ip&1)*64} sc1')
        for j in range(NJ):
            for ip in range(4):
                R0 = acc(NJ, 2 * ip, j)[1]; R1 = acc(NJ, 2 * ip + 1, j)[1]
                for q in range(4): e(f'v_permlane16_swap_b32 v{R0+q}, v{R1+q}')
        for j in range(NJ):
            e(f's_add_u32 s3, s6, {j*32768}')
            e(f's_waitcnt vmcnt({4*NJ-4})')
            for ip in range(4):
                R0 = acc(NJ, 2 * ip, j)[1]; R1 = acc(NJ, 2 * ip + 1, j)[1]; Y = 160 + 4 * (j * 4 + ip)
                for q in range(4):
                    R = (R0, R0 + 2, R1, R1 + 2)[q]
                    e(f'v_lshlrev_b32 v22, 16, v{Y+q}'); e(f'v_and_b32 v23, 0xffff0000, v{Y+q}')
                    e(f'v_pk_add_f32 v[22:23], v[22:23], v[{R}:{R+1}]')
                    e(f'v_cvt_pk_bf16_f32 v{Y+q}, v22, v23')
                e(f'buffer_store_dwordx4 v[{Y}:{Y+3}], v21, s[48:51], s3 offen offset:{(ip>>1)*256+(ip&1)*64} sc1')
        e(f's_branch {G}_done')

def gen_fin(e):
    e.lab('L_fin')
    e(f's_bfe_u32 s4, s30, {F_A}'); e(f's_bfe_u32 s5, s30, {F_B}'); e(f's_bfe_u32 s33, s30, {F_K0}')
    e('s_lshl_b32 s6, s4, 18'); e('s_lshl_b32 s5, s5, 14'); e('s_add_u32 s6, s6, s5')
    e('s_lshl_b32 s5, s27, 12'); e('s_add_u32 s6, s6, s5'); e('s_lshl_b32 s5, s33, 9'); e('s_add_u32 s6, s6, s5')
    e('v_and_b32 v20, 0x200, v0'); e('v_mul_u32_u24 v20, 3, v20'); e('v_add_u32 v20, v20, v0')
    e(f's_bfe_u32 s40, s30, {F_P}')
    e('s_lshl_b32 s7, s4, 2'); e('s_add_u32 s7, s7, s33'); e('s_lshl_b32 s7, s7, 7'); e(f's_add_u32 s7, s7, {WS_CNT + C_Y*128}')
    e('s_lshl_b32 s41, s40, 1')
    wait_counter(e, 's7', 's41', 'fin', slp=2)
    srd(e, 48, P_OUT, 4 * MB)
    e(f's_bfe_u32 s26, s30, {F_NK}')
    e.lab('FIN_u')
    e(f's_add_u32 s7, s6, {WS_Y}')
    for k in range(17):
        e(f's_cmp_gt_u32 s40, {k}'); e('s_cselect_b32 s18, s10, 0')
        e(f'buffer_load_dwordx4 v[{64+4*k}:{67+4*k}], v20, s[16:19], s7 offen sc1')
        e(f's_add_u32 s7, s7, {4*MB}')
    for k in range(17):
        e(f's_waitcnt vmcnt({16-k})')
        for d in range(4):
            R = 64 + 4 * k + d
            if k == 0: e(f'v_lshlrev_b32 v{32+2*d}, 16, v{R}'); e(f'v_and_b32 v{33+2*d}, 0xffff0000, v{R}')
            else:
                e(f'v_lshlrev_b32 v22, 16, v{R}'); e(f'v_and_b32 v23, 0xffff0000, v{R}')
                e(f'v_pk_add_f32 v[{32+2*d}:{33+2*d}], v[{32+2*d}:{33+2*d}], v[22:23]')
    for d in range(4): e(f'v_cvt_pk_bf16_f32 v{40+d}, v{32+2*d}, v{33+2*d}')
    e('buffer_store_dwordx4 v[40:43], v20, s[48:51], s6 offen')
    e(f's_add_u32 s6, s6, {16*KB}')
    e('s_sub_u32 s26, s26, 1'); e('s_cbranch_scc0 FIN_u')
    e('s_branch L_sched')

def gen_sched(e):
    e.lab('L_drain')
    e('s_waitcnt vmcnt(0) lgkmcnt(0)')
    e('s_barrier')
    signal(e)
    e.lab('L_sched')
    e('s_waitcnt lgkmcnt(0)')
    next_desc(e)
    e('s_and_b32 s3, s30, 7')
    e(f's_cmp_eq_u32 s3, {T_END}'); e('s_cbranch_scc1 L_exit')
    e(f's_cmp_eq_u32 s3, {T_FIN}'); e('s_cbranch_scc1 L_fin')
    e('s_bitcmp1_b32 s30, 3')
    e('s_cbranch_scc1 G4_cold')
    e('s_bitcmp1_b32 s30, 6')
    e('s_cbranch_scc1 G2_cold')
    e('s_branch G8_cold')
```

```python
from common import *
from k_bulk import w_voffsets, wait_counter, P_X, P_WQ, P_WK, P_WV, P_WO, SPIN_MAX
MEMB = 128 * KB
KVB = 144 * KB
MB_ = MEMB + 4096
NSTEP = 64
SMF = 'v_smfmac_f32_16x16x64_bf16'
MF = 'v_mfma_f32_16x16x32_bf16'
MF16 = 'v_mfma_f32_16x16x16_bf16'
CSC = 0x3e0293ee
OPT = dict(stamp=0, sleepL=0, sleepF=0, vmpos=61, flagpos=6, rfirst=0, f3pos=7, oend=0, wnt=0, par=-1, fs=2, pp=4, dlyL=6, dlyR=8, dlyF=0, f2pos=9, lfirst=1, ahead=6, pace=8, st2=0)

class Seq:
    def __init__(s, e): s.e = e; s.l = []; s.v = []; s.ld = 0; s.vd = 0
    def L(s, ins, tag=None): s.e(ins); s.l.append(tag)
    def V(s, ins, tag=None): s.e(ins); s.v.append(tag)
    def need(s, ltag=None, vtag=None):
        w = []
        if ltag is not None:
            i = len(s.l) - s.l[::-1].index(ltag)
            if i > s.ld: n = min(15, len(s.l) - i); w.append(f'lgkmcnt({n})'); s.ld = len(s.l) - n
        if vtag is not None:
            i = len(s.v) - s.v[::-1].index(vtag)
            if i > s.vd: n = min(63, len(s.v) - i); w.append(f'vmcnt({n})'); s.vd = len(s.v) - n
        if w: s.e('s_waitcnt ' + ' '.join(w))
    def emit(s, items):
        for it in items:
            if it[0] == 'L': s.L(it[1], it[2])
            elif it[0] == 'V': s.V(it[1], it[2] if len(it) > 2 else None)
            elif it[0] == 'NL': s.need(ltag=it[1])
            elif it[0] == 'NV': s.need(vtag=it[1])
            elif it[0] == 'LAB': s.e.lab(it[1])
            else: s.e(it[1])

def wreg(rb): return f'a[{8*rb}:{8*rb+7}]' if rb < 32 else f'v[{128+8*(rb-32)}:{128+8*(rb-32)+7}]'
def wreg2(rb, o): return (f'a[{8*rb+o}:{8*rb+o+1}]' if rb < 32 else f'v[{128+8*(rb-32)+o}:{128+8*(rb-32)+o+1}]')

SREG = [84, 86, 88, 90, 92, 94, 96, 56, 58, 60, 62, 64, 66]
def stamp_ins(slot):
    r = SREG[slot]
    return f's_memrealtime s[{r}:{r+1}]' if OPT['stamp'] == 2 else f's_memtime s[{r}:{r+1}]'
def stamp(e, slot):
    if OPT['stamp']: e(stamp_ins(slot))
def stamp_flush(e):
    if not OPT['stamp']: return
    e('s_waitcnt lgkmcnt(0)')
    for k, r in enumerate(SREG + [99]): e(f'v_writelane_b32 v21, s{r}, {k}')
    e('v_lshrrev_b32 v20, 2, v0')
    e('s_mov_b64 exec, 0x3fff')
    e('buffer_store_dword v21, v20, s[8:11], s98 offen')
    e('s_mov_b64 exec, -1')
    e('s_add_u32 s98, s98, 256')

def ldx4(r, vo, so, imm): return f'buffer_load_dwordx4 v[{r}:{r+3}], {vo}, s[8:11], {so} offen offset:{imm} sc1'

def check(e, regs):
    if len(regs) == 4:
        e(f'v_max3_u32 v14, v{regs[0]}, v{regs[1]}, v{regs[2]}'); e(f'v_max_u32 v14, v14, v{regs[3]}')
    else:
        e(f'v_max3_u32 v14, v{regs[0]}, v{regs[1]}, v{regs[2]}')
        e(f'v_max3_u32 v15, v{regs[3]}, v{regs[4]}, v{regs[5]}')
        i = 6; t = 14
        while i + 1 < len(regs):
            e(f'v_max3_u32 v{t}, v{t}, v{regs[i]}, v{regs[i+1]}'); i += 2; t = 29 - t
        e('v_max_u32 v14, v14, v15')
    e(f'v_cmp_eq_u32 vcc, {hex(SENT)}, v14')

DEFER = []
def poll(e, items, tag, sleep=0, issued=False, mid=(), first=0, cnt=False):
    L = e.uniq('P' + tag)
    if not issued:
        for it in items: e(ldx4(*it))
    e(f's_waitcnt vmcnt({first})')
    e.lab(L)
    check(e, [it[0] + k for it in items for k in range(4)])
    e.many(mid)
    e(f's_cbranch_vccnz {L}_re')
    r = [f'{L}_re:', 's_add_u32 s40, s40, 1', f's_cmp_gt_u32 s40, {SPIN_MAX}', 's_cbranch_scc1 L_abort']
    if sleep: r.append(f's_sleep {sleep}')
    if cnt and OPT['stamp']: r.append(f's_add_u32 s99, s99, {(0, 0x10000, 0x1000000, 1)[cnt]}')
    r += ['s_mov_b64 exec, vcc'] + [ldx4(*it) for it in items] + ['s_mov_b64 exec, -1', 's_waitcnt vmcnt(0)', f's_branch {L}']
    DEFER.append(r)
def flush_defer(e):
    for r in DEFER:
        e.raw(r[0])
        for x in r[1:]:
            if x.endswith(':'): e.raw(x)
            else: e(x)
    DEFER.clear()

LOC = [1]
def local_store(e, ins):
    for x in ins: e(x + (' sc1' if x.startswith('buffer') and not LOC[0] else ''))

def common_init(e):
    e('s_and_b32 s30, s34, 15'); e('s_lshl_b32 s3, s33, 4'); e('s_add_u32 s30, s30, s3')
    e('v_and_b32 v30, 63, v0')
    e('v_lshlrev_b32 v0, 4, v30')
    e('v_lshrrev_b32 v19, 4, v30')
    e('s_lshl_b32 s3, s29, 4')
    e('v_add_u32 v16, s3, v19')
    e('v_bfe_u32 v20, v30, 1, 3'); e('v_xor_b32 v20, v20, v19')
    e('v_and_b32 v21, 1, v30'); e('v_lshlrev_b32 v21, 4, v21')
    e('v_lshl_add_u32 v17, v20, 5, v21')
    e('s_mov_b32 s15, 0x20000'); e(f's_mov_b32 s14, {8*MB}')
    e('v_lshrrev_b32 v29, 2, v30'); e('v_and_b32 v28, 7, v29'); e('v_lshlrev_b32 v29, 8, v29')
    e('v_and_b32 v21, 3, v30'); e('v_lshl_add_u32 v29, v21, 3, v29')
    e('s_lshl_b32 s41, s27, 12')

ROTLD = f'buffer_load_dword v31, off, s[68:71], 0 offset:{D_ROT} sc1'
def census(e):
    verify_rot(e, issued=True)
    e('s_getreg_b32 s47, hwreg(HW_REG_XCC_ID, 0, 3)'); e('s_lshl_b32 s47, s47, 3')
    e('s_lshl_b64 s[4:5], 1, s47')
    e('v_mov_b32 v18, s4'); e('v_mov_b32 v19, s5'); e('s_lshl_b32 s3, s33, 3')
    e('s_cmp_eq_u32 s27, 0'); e('s_cselect_b32 s4, 1, 0'); e('s_mov_b32 s5, 0')
    e('s_mov_b64 exec, s[4:5]')
    e(f'buffer_atomic_add_x2 v[18:19], off, s[68:71], s3 offset:{D_CH} sc1')
    e('s_mov_b64 exec, -1')

def common_regs(e):
    e('v_and_b32 v18, 8, v30'); e('v_cmp_eq_u32 vcc, 0, v18')
    e('v_mov_b32 v1, 0xeeee'); e('v_mov_b32 v18, 0x4444')
    e('v_cndmask_b32 v1, v1, v18, vcc')
    e(f's_add_u32 s3, s41, {MEMB}'); e('v_add_u32 v5, s3, v0')
    e('s_mov_b32 s51, 0x3f80'); e('s_mov_b32 s52, 0x3f800000')
    e('s_lshl_b32 s53, s33, 11'); e(f's_add_u32 s53, s53, {ST_FL}')
    e('s_cmp_eq_u32 s27, 3'); e('s_cselect_b32 s20, 1, 0'); e('s_mov_b32 s21, 0')
    e('s_mov_b32 s31, 0')
    e(f's_mov_b32 s32, {WS_STEP}'); e(f's_mov_b32 s25, {WS_STEP + 3*STEP_SZ}'); e(f's_mov_b32 s26, {WS_STEP + STEP_SZ}')
    e('s_lshl_b32 s3, s33, 14'); e('s_add_u32 s48, s3, s41'); e(f's_xor_b32 s49, s48, {16*KB}')
    e('s_and_b32 s3, s49, 0x6000'); e('s_add_u32 s49, s49, s3')
    e(f's_add_u32 s48, s48, {ST_PL}')
    e('s_lshl_b32 s50, s30, 11')
    e('s_lshl_b32 s22, s33, 11'); e(f's_add_u32 s22, s22, {ST_F2}')
    if OPT['stamp']:
        e('s_lshl_b32 s98, s2, 14'); e('s_lshl_b32 s3, s27, 6'); e('s_add_u32 s98, s98, s3'); e(f's_add_u32 s98, s98, {WS_DBG}'); e('s_mov_b32 s99, 0')

def handshake(e, code0, code1):
    L = e.uniq('HS')
    e('s_getpc_b64 s[4:5]')
    e.lab(L + '_pc')
    e(f's_add_u32 s4, s4, {code0}-{L}_pc'); e('s_addc_u32 s5, s5, 0')
    e('v_lshlrev_b32 v18, 2, v0'); e('v_add_u32 v18, s41, v18')
    e(f'v_min_u32 v18, {code1}-{code0}-4, v18')
    e('global_load_dword v19, v18, s[4:5]')
    e('s_mov_b32 s40, 0'); e('s_lshl_b32 s7, s33, 3')
    e.lab(L)
    e(f'buffer_load_dwordx2 v[20:21], off, s[68:71], s7 offset:{D_CH} sc1')
    e(f'buffer_load_dwordx2 v[22:23], off, s[68:71], 0 offset:{D_PAR} sc1')
    e('s_add_u32 s40, s40, 1'); e(f's_cmp_gt_u32 s40, {SPIN_MAX}'); e('s_cbranch_scc1 L_abort')
    e('s_waitcnt vmcnt(0)')
    e('v_readfirstlane_b32 s4, v20'); e('v_readfirstlane_b32 s5, v21'); e('v_readfirstlane_b32 s6, v22'); e('v_readfirstlane_b32 s3, v23')
    e('s_cmp_eq_u32 s3, 0'); e(f's_cbranch_scc1 {L}_s')
    e('s_cmp_eq_u32 s6, 0'); e(f's_cbranch_scc1 {L}_s')
    e('s_add_u32 s3, s4, s5'); e('s_mul_i32 s3, s3, 0x01010101'); e('s_lshr_b32 s3, s3, 24')
    e('s_cmp_eq_u32 s3, 32'); e(f's_cbranch_scc1 {L}_ok')
    e.lab(L + '_s')
    e('s_sleep 4'); e(f's_branch {L}')
    e.lab(L + '_ok')
    e('s_lshr_b64 s[4:5], s[4:5], s47'); e('s_and_b32 s4, s4, 0xff')
    e('s_cmp_eq_u32 s4, 32'); e('s_cselect_b32 s37, 1, 0')
    e('s_and_b32 s6, s6, 1'); e('s_lshl_b32 s6, s6, 13')
    if OPT['par'] >= 0: e(f's_mov_b32 s6, {OPT["par"]*8192}')
    e('s_add_u32 s49, s49, s6')
    e('s_xor_b32 s45, s33, 1'); e('s_lshl_b32 s45, s45, 7'); e('s_add_u32 s45, s45, s6'); e(f's_add_u32 s45, s45, {ST_F3}'); e('s_sub_u32 s45, s45, s22')

def probe(e, vaddr, so, tag, mask=None, sleep=0):
    L = e.uniq('Q' + tag)
    e('s_cmp_lg_u32 s27, 3'); e(f's_cbranch_scc1 {L}_w')
    if mask is not None: e(f's_mov_b64 exec, {mask}')
    if OPT['pp']:
        N = OPT['pp']; regs = [14, 32, 33, 34, 35, 36][:N]
        for r in regs[:-1]:
            e(f'buffer_load_dword v{r}, {vaddr}, s[8:11], {so} offen sc1'); e(f's_nop {min(15, 60 // N)}')
        e.lab(L)
        for k in range(N):
            e(f'buffer_load_dword v{regs[k-1]}, {vaddr}, s[8:11], {so} offen sc1')
            e(f's_waitcnt vmcnt({N-1})')
            e(f'v_cmp_eq_u32 vcc, {hex(SENT)}, v{regs[k]}')
            e(f's_cbranch_vccz {L}_ok')
        e('s_add_u32 s40, s40, 1'); e(f's_cmp_gt_u32 s40, {SPIN_MAX}'); e('s_cbranch_scc1 L_abort')
        e(f's_branch {L}')
        e.lab(L + '_ok')
    else:
        e.lab(L)
        if sleep: e(f's_sleep {sleep}')
        e(f'buffer_load_dword v14, {vaddr}, s[8:11], {so} offen sc1')
        e('s_add_u32 s40, s40, 1'); e(f's_cmp_gt_u32 s40, {SPIN_MAX}'); e('s_cbranch_scc1 L_abort')
        e('s_waitcnt vmcnt(0)')
        e(f'v_cmp_eq_u32 vcc, {hex(SENT)}, v14')
        e(f's_cbranch_vccnz {L}')
    if mask is not None: e('s_mov_b64 exec, -1')
    e.lab(L + '_w')
    e('s_barrier')

def gather_mem(e, q, extra=()):
    e('s_add_u32 s42, s32, s48'); e('s_add_u32 s43, s32, s49')
    e('v_lshrrev_b32 v15, 2, v0' if OPT['fs'] == 2 else f'v_lshlrev_b32 v15, {OPT["fs"]-4}, v0')
    e('s_add_u32 s3, s32, s22')
    if OPT['f3pos'] >= 0: e('v_writelane_b32 v15, s45, 16')
    stamp(e, 0)
    probe(e, 'v15', 's3', 'l', '0x1ffff' if OPT['f3pos'] >= 0 else '0xffff', sleep=OPT['sleepL'])
    for k in range(OPT['dlyL'] // 16): e('s_nop 15')
    if OPT['dlyL'] % 16: e(f's_nop {OPT["dlyL"] % 16}')
    stamp(e, 1)
    if OPT['rfirst']:
        R = [(96 + 4 * p, 'v0', 's43', p * 1024) for p in range(4)]
        Lc = [(48 + 4 * p, 'v0', 's42', p * 1024) for p in range(4)]
        for it in R: e(ldx4(*it))
        if OPT['rfirst'] == 1: e('s_waitcnt vmcnt(3)')
        first, second, c1, c2 = R, Lc, 1, 2
    else:
        Lc = [(96 + 4 * p, 'v0', 's42', p * 1024) for p in range(4)]
        R = [(48 + 4 * p, 'v0', 's43', p * 1024) for p in range(4)]
        for it in Lc: e(ldx4(*it))
        first, second, c1, c2 = Lc, R, 2, 1
    if OPT['rfirst'] != 1:
        for k in range(OPT['dlyR'] // 16): e('s_nop 15')
        if OPT['dlyR'] % 16: e(f's_nop {OPT["dlyR"] % 16}')
    for it in second: e(ldx4(*it))
    nx = len(extra)
    G = e.uniq('GA')
    poll(e, first, 'a', issued=True, first=4, cnt=c1)
    unp = []
    for d in range(16): unp += [f'v_lshlrev_b32 v{80+2*d}, 16, v{96+d}', f'v_and_b32 v{81+2*d}, 0xffff0000, v{96+d}']
    e.many(unp)
    e.many(extra)
    e.lab(G + '_u')
    e.raw('.p2align 3')
    def cv(p):
        for k in range(4): e(f'v_cvt_pk_bf16_f32 v{32+4*p+k}, v{80+8*p+2*k}, v{81+8*p+2*k}')
        q.L(f'ds_write_b128 v5, v[{32+4*p}:{35+4*p}] offset:{p*1024}', 'AW')
    for p in range(4):
        e(f's_waitcnt vmcnt({3 - p + nx})'); e('s_nop 0')
        if p == 3: stamp(e, 2)
        for k in range(4):
            d = 4 * p + k
            e(f'v_dot2_f32_bf16 v{80+2*d}, v{48+d}, s51, v{80+2*d}'); e(f'v_dot2_f32_bf16 v{81+2*d}, v{48+d}, s52, v{81+2*d}')
        R = 48 + 4 * p
        e(f'v_max3_u32 v14, v{R}, v{R+1}, v{R+1 if p == 0 else 14}'); e(f'v_max3_u32 v14, v{R+2}, v{R+3}, v14')
        if p == 3: e(f'v_cmp_eq_u32 vcc, {hex(SENT)}, v14')
        cv(p)
    e(f's_cbranch_vccnz {G}_re')
    e2 = E(); e2.n = e.n + 1000
    if OPT['stamp']: e2(f's_add_u32 s99, s99, {(0, 0x10000, 0x1000000)[c2]}')
    for it in first: e2(ldx4(*it))
    poll(e2, second, 'b', issued=True)
    e2.many(unp)
    e2(f's_branch {G}_u')
    DEFER.append([f'{G}_re:'] + [x for x in e2.L])

def softmax(e, pv, nt, D, hook=None, out=None):
    e('v_max3_f32 v21, v21, v16, v17'); e('v_max3_f32 v20, v20, v18, v19'); e('v_max_f32 v20, v20, v21')
    def cross(op):
        r = []
        for sw in ('v_permlane32_swap_b32', 'v_permlane16_swap_b32'):
            r += ['v_mov_b32 v21, v20', 's_nop 1', f'{sw} v20, v21', f'{op} v20, v20, v21']
        return r
    e.many(cross('v_max_f32'))
    if hook: hook(3)
    S = [24, 25, 26, 27, 28, 29, 30, 31, 16, 17, 18, 19]
    for r in S[::2]: e(f'v_pk_add_f32 v[{r}:{r+1}], v[{r}:{r+1}], v[20:21] op_sel_hi:[1,0] neg_lo:[0,1] neg_hi:[0,1]')
    for r in S[::2]: e(f'v_pk_mul_f32 v[{r}:{r+1}], v[{r}:{r+1}], s[100:101]')
    if hook: hook(4)
    for r in S: e(f'v_exp_f32 v{r}, v{r}')
    if hook: hook(5)
    e('v_pk_add_f32 v[20:21], v[24:25], v[26:27]'); e('v_pk_add_f32 v[22:23], v[28:29], v[30:31]')
    for d in range(4): e(f'v_cvt_pk_bf16_f32 v{24+d}, v{24+2*d}, v{25+2*d}')
    e('v_pk_add_f32 v[20:21], v[20:21], v[16:17]'); e('v_pk_add_f32 v[22:23], v[22:23], v[18:19]')
    for d in range(2): e(f'v_cvt_pk_bf16_f32 v{16+d}, v{16+2*d}, v{17+2*d}')
    rest = ['v_pk_add_f32 v[20:21], v[20:21], v[22:23]', 'v_add_f32 v20, v20, v21'] + cross('v_add_f32') + ['v_rcp_f32 v20, v20']
    k = 0
    for i, m in enumerate(pv):
        e(m)
        if hook and i == 0: hook(6)
        if hook and i == 2: hook(7)
        if i < len(pv) - 1 and k < 2: e(rest[k]); k += 1
    e.many(rest[k:])
    e('s_nop 0')
    for r in range(D, D + 4 * nt, 2): e(f'v_pk_mul_f32 v[{r}:{r+1}], v[{r}:{r+1}], v[20:21] op_sel_hi:[1,0]')
    for pr in range(nt // 2):
        for d in range(4): e(f'v_cvt_pk_bf16_f32 v{(D+8*pr if out is None else out+4*pr)+d}, v{D+8*pr+2*d}, v{D+8*pr+2*d+1}')

def gen_P(e):
    e.lab('L_chainP')
    common_init(e)
    e('s_cmp_eq_u32 s28, 0')
    e(f's_cselect_b32 s12, s{P_WQ}, s{P_WK}'); e(f's_cselect_b32 s13, s{P_WQ+1}, s{P_WK+1}')
    w_voffsets(e, 8192, 0)
    e('s_lshl_b32 s21, s30, 8')
    e('s_lshl_b32 s3, s27, 1'); e('v_xor_b32 v18, s3, v28')
    e('s_lshl_b32 s3, s27, 15'); e('v_add_u32 v19, s3, v29')
    e('v_lshl_add_u32 v2, v18, 5, v19'); e('v_xor_b32 v3, 32, v2')
    def load(n):
        tau, hf = n >> 1, n & 1
        for Q in range(4):
            e(f's_add_u32 m0, s41, {Q*32768 + hf*16384}')
            e(f's_add_u32 s20, s21, {((4*Q+tau)*64 + 32*hf)*8192}')
            for i in range(4): e(f'buffer_load_dwordx4 v{12+i}, s[12:15], s20 offen offset:{i*1024}{OPT["wnt"]*" nt"} lds')
    rot = lambda r: [f'v_add_u32 v{r}, 0x8000, v{r}', f'v_and_b32 v{r}, 0x1ffff, v{r}']
    load(0); load(1)
    for n in range(6):
        tau, hf = n >> 1, n & 1
        e('s_waitcnt vmcnt(16)')
        if n == 1: census(e)
        e('s_barrier')
        for q in range(4):
            for tl in range(4):
                for u in range(2):
                    e(f'ds_read_b64_tr_b16 {wreg2((q*3+tau)*4+tl, 4*hf+2*u)}, v{2+(tl&1)} offset:{hf*16384+(tl>>1)*8192+u*4096}')
            e.many(rot(2) + rot(3))
        e('s_waitcnt lgkmcnt(0)'); e('s_barrier')
        if n == 0: e(ROTLD)
        load(n + 2)
    e('s_waitcnt vmcnt(0)'); e('s_barrier')
    e('s_lshl_b32 s3, s27, 15'); e('v_add_u32 v4, s3, v0')
    for hf in range(2):
        for q in range(4):
            for tl in range(4):
                for u in range(2):
                    R = 64 + 4 * (4 * q + tl) + 2 * u
                    e(f'ds_read_b64_tr_b16 v[{R}:{R+1}], v{2+(tl&1)} offset:{hf*16384+(tl>>1)*8192+u*4096}')
            e.many(rot(2) + rot(3))
        e('s_waitcnt lgkmcnt(0)'); e('s_barrier')
        for n in range(16): e(f'ds_write_b128 v4, v[{64+4*n}:{67+4*n}] offset:{hf*16384+n*1024}')
        e('s_waitcnt lgkmcnt(0)')
    e('v_mov_b32 v2, v4')
    common_regs(e)
    e('v_lshrrev_b32 v18, 5, v30'); e('v_lshlrev_b32 v6, 9, v18')
    e('v_and_b32 v18, 15, v30'); e('v_lshl_add_u32 v6, v18, 5, v6')
    e('v_bfe_u32 v18, v30, 4, 1'); e('v_lshl_add_u32 v6, v18, 3, v6')
    e('s_lshl_b32 s3, s27, 10'); e(f's_add_u32 s3, s3, {MB_}'); e('v_add_u32 v6, s3, v6')
    e('v_lshlrev_b32 v7, 3, v30'); e(f'v_add_u32 v7, {MB_}, v7')
    e(f'v_add_u32 v8, {KVB}, v0')
    e('v_and_b32 v18, 3, v30'); e('v_lshlrev_b32 v9, 8, v18')
    e('v_lshrrev_b32 v18, 2, v30'); e('v_lshl_add_u32 v9, v18, 4, v9')
    e('s_lshl_b32 s3, s27, 10'); e(f's_add_u32 s3, s3, {KVB + 8192}'); e('v_add_u32 v9, s3, v9')
    e('v_xor_b32 v3, 0x400, v9')
    e('v_and_b32 v18, 31, v30'); e('v_lshlrev_b32 v10, 6, v18')
    e('s_lshl_b32 s3, s27, 4'); e('v_add_u32 v10, s3, v10')
    e('v_xor_b32 v13, 16, v10')
    e('v_and_b32 v18, 7, v30'); e('v_lshlrev_b32 v11, 4, v18')
    e('v_lshrrev_b32 v18, 4, v30'); e('v_lshl_add_u32 v11, v18, 7, v11')
    e('s_lshl_b32 s3, s27, 9'); e('v_add_u32 v11, s3, v11')
    e('s_lshl_b32 s3, s34, 4'); e('s_add_u32 s53, s53, s3'); e('s_lshl_b32 s3, s27, 2'); e('s_add_u32 s53, s53, s3'); e('s_mov_b32 s20, 1')
    for r in range(4): e(f'v_mov_b32 v{108+r}, {hex(SENT)}')
    def slots(sc):
        for k in range(4):
            e(f's_add_u32 s3, s50, {WS_STEP + k*STEP_SZ + ST_OM}'); e(f's_add_u32 s4, s53, {WS_STEP + k*STEP_SZ}')
            e(f'buffer_store_dwordx4 v[108:111], v11, s[8:11], s3 offen{sc}')
            e('s_mov_b64 exec, s[20:21]'); e(f'buffer_store_dword v108, off, s[8:11], s4{sc}'); e('s_mov_b64 exec, -1')
    handshake(e, 'CP1_top', 'CP0_top')
    e('s_cmp_eq_u32 s37, 0'); e('s_cbranch_scc1 CP_nl')
    for k in range(4):
        e(f's_add_u32 s3, s50, {WS_STEP + k*STEP_SZ + ST_OM}'); e(f's_add_u32 s4, s53, {WS_STEP + k*STEP_SZ}')
        e('buffer_load_dword v18, v11, s[8:11], s3 offen sc1'); e('buffer_load_dword v18, off, s[8:11], s4 sc1')
    e('s_waitcnt vmcnt(0)')
    slots('')
    e.lab('CP_nl')
    e('s_lshl_b32 s3, s29, 4')
    e('v_and_b32 v18, 15, v30'); e('v_add_u32 v18, s3, v18')
    e('v_lshrrev_b32 v19, 4, v30'); e('v_lshlrev_b32 v19, 2, v19'); e('v_sub_u32 v18, v18, v19')
    for T in range(2):
        for r in range(4):
            m = 68 + 2 * (4 * T + r)
            e(f'v_cmp_le_i32 s[{m}:{m+1}], {16*T+r}, v18')
    e(f's_mul_i32 s35, s30, {1536*KB}'); e(f's_add_u32 s35, s35, {WS_QKV}')
    e('s_lshl_b32 s36, s30, 2'); e('s_add_u32 s36, s36, s27'); e('s_lshl_b32 s36, s36, 17')
    e('s_lshl_b32 s3, s29, 10'); e('s_add_u32 s36, s36, s3')
    e(f's_mov_b32 s100, {hex(CSC)}'); e(f's_mov_b32 s101, {hex(CSC)}')
    e(f's_add_u32 s46, s41, {KVB}')
    def prefetch(nxt):
        g = [['s_mov_b32 m0, s46', 's_add_u32 s5, s35, s41', f's_add_u32 s5, s5, {8192 + nxt*24*KB}']]
        g += [[f'buffer_load_dwordx4 v0, s[8:11], s5 offen offset:{i*1024} sc1 lds'] for i in range(4)]
        g += [['s_lshr_b32 s5, s41, 1', 's_add_u32 s5, s5, s35', f's_add_u32 s5, s5, {nxt*24*KB}', 'v_lshlrev_b32 v15, 3, v0'],
              ['s_mov_b64 exec, 0xffff', 'buffer_load_dword v14, v15, s[8:11], s5 offen sc1', 's_mov_b64 exec, -1'],
              [f's_add_u32 s5, s31, {nxt+1}', 's_lshr_b32 s5, s5, 2', 's_lshl_b32 s5, s5, 7', f's_add_u32 s5, s5, {WS_CNT + C_KV*128}'],
              ['buffer_load_dword v12, off, s[8:11], s5 sc1']]
        return g
    e(f's_mov_b32 s7, {WS_CNT + C_KV*128}')
    wait_counter(e, 's7', 96, 'kv0', slp=4)
    for g in prefetch(0): e.many(g)
    e('s_mov_b32 s16, s8'); e('s_mov_b32 s17, s9'); e('s_mov_b32 s18, 0'); e('s_mov_b32 s19, 0x20000'); e('s_mov_b32 s38, 0'); e('s_mov_b32 s39, 0')
    e('s_cmp_eq_u32 s27, 0'); e('s_cselect_b32 s23, 4, -1')
    e('s_cmp_eq_u32 s37, 0'); e('s_cbranch_scc1 CP0_top')
    for loc in (1, 0):
        LOC[0] = loc
        P_loop(e, f'CP{loc}', prefetch)

def P_loop(e, X, prefetch):
    e.raw('.p2align 6')
    e.lab(X + '_top')
    e('s_mov_b32 s40, 0')
    q = Seq(e)
    def wrd(n):
        B = 64 + 8 * (n & 1)
        return [(f'ds_read_b128 v[{B+4*hf}:{B+4*hf+3}], v2 offset:{hf*16384+n*1024}', f'W{n}') for hf in range(2)]
    for n in range(2):
        for x, t in wrd(n): q.L(x, t)
    for r in range(16, 32, 2): e(f'v_mov_b64 v[{r}:{r+1}], 0')
    e(f'v_add_u32 v4, 4096, v5'); e(f'v_and_b32 v4, {hex(MEMB + 0x3fff)}, v4')
    e('s_add_u32 s44, s32, s50'); e(f's_add_u32 s54, s44, {ST_OM}'); e(f's_add_u32 s44, s44, {ST_VM}')
    e('s_add_u32 s55, s32, s53')
    e('s_lshl_b32 s24, s29, 12'); e('s_add_u32 s24, s24, s35')
    OST = [f'buffer_store_dwordx4 v[{112+4*pr}:{115+4*pr}], v0, s[16:19], s{38+pr} offen sc1' for pr in range(2)]
    QL = [ldx4(112 + 4 * ks, 'v0', 's24', ks * 1024) for ks in range(4)]
    gather_mem(e, q)
    fill = [[] for _ in range(64)]; pre = [[] for _ in range(64)]
    fill[0].append(('V', OST[0])); fill[1].append(('V', OST[1]))
    for n in range(2, 16):
        for k, (x, t) in enumerate(wrd(n)): fill[4 * n - 5 + k].append(('L', x, t))
    for qq in range(1, 4):
        base = 16 * (qq - 1)
        if qq == 1: fill[2] += [('NL', 'AW'), ('X', 's_barrier')]
        for p in range(4):
            R = 32 + 16 * (qq & 1) + 4 * p
            fill[base + ((2, 2, 5, 6) if qq == 1 else (1, 2, 5, 6))[p]].append(('L', f'ds_read_b128 v[{R}:{R+3}], v4 offset:{p*1024}', f'A{qq}'))
        if qq < 3: fill[base + 9] += [('X', 'v_add_u32 v4, 4096, v4')]; fill[base + 10] += [('X', f'v_and_b32 v4, {hex(MEMB + 0x3fff)}, v4')]
        pre[16 * qq].append(('NL', f'A{qq}'))
    pre[48] += [('X', 's_barrier')]
    fill[39] += [('X', 'v_lshlrev_b32 v4, 22, v0')]; fill[40] += [('X', 'v_ashrrev_i32 v4, 8, v4')]; fill[43] += [('X', 'v_xor_b32 v4, -1, v4')]; fill[44] += [('X', 'v_and_b32 v4, 0xff800000, v4')]
    vp = [13, 14, 29, 30, 41, 42, 45, 46]
    for n in range(4):
        for t in range(2):
            R = 80 + 4 * n + 2 * t
            fill[vp[2 * n + t]].append(('L', f'ds_read_b64_tr_b16 v[{R}:{R+1}], {"v9" if n < 2 else "v3"} offset:{t*4096+(n&1)*8}', 'VT'))
    for ks in range(4): fill[(49, 50, 53, 54)[ks]].append(('L', f'ds_read_b128 v[{32+4*ks}:{35+4*ks}], v8 offset:{ks*1024}', 'K0'))
    VM = [(96, 'v10', 's44', 0), (100, 'v13', 's44', 0)]
    def post(a, d, off, tag):
        return [('X', f'v_permlane32_swap_b32 v{a+r}, v{a+4+r}') for r in range(4)] + \
               [('X', f'v_pk_add_f32 v[{a}:{a+1}], v[{a}:{a+1}], v[{a+4}:{a+5}]'), ('X', f'v_pk_add_f32 v[{a+2}:{a+3}], v[{a+2}:{a+3}], v[{a+6}:{a+7}]'),
                ('X', f'v_cvt_pk_bf16_f32 v{d}, v{a}, v{a+1}'), ('X', f'v_cvt_pk_bf16_f32 v{d+1}, v{a+2}, v{a+3}'),
                ('L', f'ds_write_b64 v6, v[{d}:{d+1}] offset:{off}', tag)]
    if OPT['stamp'] and not OPT['st2']:
        pre[0].insert(0, ('X', stamp_ins(7))); fill[2].append(('X', stamp_ins(8)))
        pre[16].append(('X', stamp_ins(9))); pre[32].append(('X', stamp_ins(10))); pre[48].append(('X', stamp_ins(11))); fill[63].append(('X', stamp_ins(12)))
    pq = post(16, 20, 0, 'MQ')
    fill[58].append(('X', 's_nop 1'))
    for k, it in enumerate(pq): fill[(59, 59, 60, 60, 61, 61, 62, 62, 62)[k]].append(it)
    k = 0
    for qq in range(4):
        for tl in range(4):
            for kp in range(4):
                q.emit(pre[k])
                A = 32 + 16 * (qq & 1) + 4 * kp
                if kp < 3: B = wreg((qq * 3 + kp) * 4 + tl)
                else:
                    n = 4 * qq + tl; q.need(ltag=f'W{n}'); b = 64 + 8 * (n & 1); B = f'v[{b}:{b+7}]'
                e(f'{SMF} v[{16+4*tl}:{19+4*tl}], v[{A}:{A+3}], {B}, v1')
                q.emit(fill[k]); k += 1
    for ks in range(4): q.L(f'ds_read_b128 v[{64+4*ks}:{67+4*ks}], v8 offset:{ks*1024+4096}', 'K1')
    minit = [f'v_mov_b32 v{16+r}, v4' for r in range(4)]
    e.many(minit)
    q.emit(post(24, 22, 16, 'MK'))
    for it in VM: e(ldx4(*it))
    q.need(ltag='MK')
    e('s_barrier')
    for ks in range(4):
        for u in range(2): q.L(f'ds_read_b64_tr_b16 v[{48+4*ks+2*u}:{49+4*ks+2*u}], v7 offset:{ks*1024+u*512}', f'X{ks}')
    def mf(D, A, B, ks, z=True): e(f'{MF} v[{D}:{D+3}], v[{A+4*ks}:{A+4*ks+3}], v[{B+4*ks}:{B+4*ks+3}], {"0" if ks == 0 and z else f"v[{D}:{D+3}]"}')
    def flag(pos):
        if OPT['st2'] and pos >= 1: stamp(e, min(12, 6 + pos))
        if OPT['flagpos'] == pos: local_store(e, ['s_mov_b64 exec, s[20:21]', 'buffer_store_dword v1, off, s[8:11], s55', 's_mov_b64 exec, -1'])
    stamp(e, 3)
    for ks in range(4):
        q.need(ltag=f'X{ks}'); mf(24, 32, 48, ks)
        mf(28, 64, 48, ks)
    flag(0)
    for ks in range(4):
        mf(16, 48, 48, ks, False)
        if ks == 1: flag(1)
    xmax = ['v_max3_f32 v20, v24, v25, v26', 'v_max3_f32 v21, v27, v28, v29', 'v_max3_f32 v20, v20, v30, v31']
    poll(e, VM, 'vm', issued=True, mid=xmax, cnt=3)
    e(f's_cmp_eq_u32 s31, {NSTEP-1}'); e(f's_cbranch_scc1 {X}_last')
    def pvl(nt, D):
        return [f'{MF} v[{D+4*n}:{D+4*n+3}], v[{80+4*n}:{83+4*n}], v[24:27], 0' for n in range(nt)] + \
               [f'{MF16} v[{D+4*n}:{D+4*n+3}], v[{96+2*n}:{97+2*n}], v[16:17], v[{D+4*n}:{D+4*n+3}]' for n in range(nt)]
    softmax(e, pvl(2, 104), 2, 104, flag)
    e('s_mov_b32 exec_lo, 0x00ff00ff'); e('s_mov_b32 exec_hi, 0x00ff00ff')
    local_store(e, ['buffer_store_dwordx4 v[104:107], v11, s[8:11], s54 offen'])
    stamp(e, 4)
    e('s_barrier')
    e('s_mov_b64 exec, -1'); e.many(QL); e('s_mov_b32 exec_lo, 0x00ff00ff'); e('s_mov_b32 exec_hi, 0x00ff00ff')
    for r in range(4): e(f'v_mov_b32 v{108+r}, {hex(SENT)}')
    e('s_add_u32 s3, s25, s50'); e(f's_add_u32 s3, s3, {ST_OM}'); e('s_add_u32 s4, s25, s53')
    local_store(e, ['buffer_store_dwordx4 v[108:111], v11, s[8:11], s3 offen', 's_mov_b64 exec, s[20:21]', 'buffer_store_dword v108, off, s[8:11], s4'])
    e('s_mov_b64 exec, -1')
    e('s_cmp_lg_u32 s31, s23'); e(f's_cbranch_scc1 {X}_ns')
    e('s_add_u32 s23, s23, 4'); e('s_lshr_b32 s3, s31, 2'); e('v_mov_b32 v15, s3'); e('s_lshl_b32 s3, s30, 7'); e(f's_add_u32 s3, s3, {WS_CNT + C_O*128}')
    e('s_mov_b64 exec, 1'); e('buffer_store_dword v15, off, s[8:11], s3 sc1'); e('s_mov_b64 exec, -1')
    e.lab(X + '_ns')
    e('v_readfirstlane_b32 s3, v12')
    e('s_nop 0')
    e('s_cmp_ge_u32 s3, 96'); e(f's_cbranch_scc1 {X}_rdy')
    e('s_add_u32 s7, s31, 1'); e('s_lshr_b32 s7, s7, 2'); e('s_lshl_b32 s7, s7, 7'); e(f's_add_u32 s7, s7, {WS_CNT + C_KV*128}')
    wait_counter(e, 's7', 96, 'kv', wg=False)
    e.lab(X + '_rdy')
    def xscores(pf, wait):
        e.many(minit)
        e('v_mov_b32 v22, 0xff800000')
        for ee in range(8): e(f'v_cndmask_b32 v{24+ee}, v22, 0, s[{68+2*ee}:{69+2*ee}]')
        e(f's_waitcnt vmcnt({wait})'); e('s_nop 0')
        pf = list(pf)
        for D, A, ks in [(d, a_, ks) for ks in range(4) for d, a_ in ((24, 32), (28, 64))] + [(16, 48, ks) for ks in range(4)]:
            mf(D, A, 112, ks, False)
            if pf: e.many(pf.pop(0))
    xscores(prefetch(1), 2)
    e(f's_branch {X}_x')
    e.lab(X + '_last')
    e.many(QL)
    xscores([], 0)
    e.lab(X + '_x')
    for k in range(5): e('v_mov_b32 v15, 0')
    e.many(xmax)
    softmax(e, pvl(4, 32), 4, 32, out=112)
    e(f's_add_u32 s38, s36, {WS_O}'); e(f's_xor_b32 s39, s36, {128*KB}'); e(f's_add_u32 s39, s39, {WS_O}')
    e('s_mov_b32 s18, s10')
    e('s_add_u32 s36, s36, 2048')
    e('s_add_u32 s31, s31, 1'); e('s_mov_b32 s25, s32'); e('s_mov_b32 s32, s26'); e(f's_add_u32 s26, s26, {STEP_SZ}'); e('s_and_b32 s26, s26, 0xfffff'); e(f's_or_b32 s26, s26, {WS_STEP}'); e(f's_add_u32 s35, s35, {24*KB}')
    stamp(e, 5)
    stamp_flush(e)
    e(f's_cmp_lt_u32 s31, {NSTEP}'); e(f's_cbranch_scc1 {X}_top')
    e.many(OST)
    e('s_waitcnt vmcnt(0)'); e('s_barrier')
    e('s_cmp_lg_u32 s27, 0'); e('s_cbranch_scc1 L_exit')
    e('s_lshl_b32 s3, s30, 7'); e(f's_add_u32 s3, s3, {WS_CNT + C_O*128}')
    e('v_mov_b32 v18, 16'); e('s_mov_b64 exec, 1'); e('buffer_store_dword v18, off, s[8:11], s3 sc1')
    e('s_endpgm')
    flush_defer(e)

def gen_VO(e):
    e.lab('L_chainV')
    common_init(e)
    w_voffsets(e, 8192, 0)
    e(f's_mov_b32 s12, s{P_WV}'); e(f's_mov_b32 s13, s{P_WV+1}')
    e(f's_mov_b32 s16, s{P_WO}'); e(f's_mov_b32 s17, s{P_WO+1}'); e(f's_mov_b32 s18, {8*MB}'); e('s_mov_b32 s19, 0x20000')
    e('s_lshl_b32 s21, s30, 8'); e('s_lshl_b32 s3, s28, 18'); e('s_add_u32 s21, s21, s3')
    e('s_lshl_b32 s22, s33, 22'); e('s_lshl_b32 s3, s27, 20'); e('s_add_u32 s22, s22, s3')
    e('s_and_b32 s3, s34, 15'); e('s_lshl_b32 s3, s3, 7'); e('s_add_u32 s22, s22, s3')
    e('s_lshl_b32 s3, s27, 1'); e('v_xor_b32 v18, s3, v28')
    e('s_lshl_b32 s3, s27, 14'); e('v_add_u32 v19, s3, v29')
    e('v_lshl_add_u32 v2, v18, 5, v19'); e('v_xor_b32 v3, 32, v2')
    e('v_lshrrev_b32 v18, 5, v30'); e('v_lshlrev_b32 v22, 15, v18')
    e('v_bfe_u32 v18, v30, 4, 1'); e('v_lshl_add_u32 v22, v18, 13, v22')
    e('v_bfe_u32 v18, v30, 3, 1'); e('v_lshl_add_u32 v22, v18, 11, v22')
    e('v_bfe_u32 v18, v30, 1, 2'); e('v_lshrrev_b32 v19, 4, v30'); e('v_xor_b32 v18, v18, v19'); e('v_lshl_add_u32 v22, v18, 5, v22')
    e('v_and_b32 v18, 1, v30'); e('v_lshl_add_u32 v22, v18, 4, v22')
    e('v_lshrrev_b32 v18, 2, v30'); e('v_lshlrev_b32 v8, 7, v18')
    e('v_bfe_u32 v18, v30, 3, 2'); e('v_lshl_add_u32 v8, v18, 5, v8')
    e('v_and_b32 v18, 3, v30'); e('v_lshl_add_u32 v8, v18, 3, v8')
    e('s_lshl_b32 s23, s27, 14'); e('s_add_u32 s23, s23, 65536'); e('v_add_u32 v8, s23, v8')
    def loadV(tau):
        for Q in range(4):
            e(f's_add_u32 m0, s41, {Q*16384}')
            e(f's_add_u32 s20, s21, {(4*Q+tau)*64*8192}')
            for i in range(4): e(f'buffer_load_dwordx4 v{12+i}, s[12:15], s20 offen offset:{i*1024}{OPT["wnt"]*" nt"} lds')
    RND = ((0, 1), (2, 4), (5, 6), (3, 7))
    KREG = {0: 0, 1: 1, 2: 2, 4: 3, 5: 4, 6: 5}
    def loadO(n):
        for sl, ks in enumerate(RND[n]):
            for i in range(8):
                e(f's_add_u32 m0, s23, {sl*8192 + i*1024}')
                e(f's_add_u32 s20, s22, {(64*ks + 32*(i>>2) + 8*(i&1) + 2*((i>>1)&1))*2048}')
                e(f'buffer_load_dwordx4 v22, s[16:19], s20 offen{OPT["wnt"]*" nt"} lds')
    def ord_(sl, dst):
        r = []
        for n in range(4):
            r.append(('X', f'v_xor_b32 v18, {n<<5}, v8'))
            for x in range(2):
                for u in range(2): r.append(('L', f'ds_read_b64_tr_b16 {dst(n, 4*x+2*u)}, v18 offset:{sl*8192+x*4096+u*2048}', 'O'))
        return r
    rot = lambda r: [f'v_add_u32 v{r}, 0x4000, v{r}', f'v_and_b32 v{r}, 0xffff, v{r}']
    loadV(0); loadO(0)
    for n in range(3):
        e('s_waitcnt vmcnt(16)'); e('s_barrier')
        for q in range(4):
            for t in range(2):
                for hf in range(2):
                    for u in range(2):
                        e(f'ds_read_b64_tr_b16 {wreg2((q*3+n)*2+t, 4*hf+2*u)}, v{2+t} offset:{hf*8192+u*4096}')
            e.many(rot(2) + rot(3))
        e('s_waitcnt lgkmcnt(0)'); e('s_barrier')
        if n == 0: e(ROTLD)
        loadV(n + 1)
        e('s_waitcnt vmcnt(16)')
        if n == 0: census(e)
        for sl, ks in enumerate(RND[n]):
            for it in ord_(sl, lambda t, o: wreg2(24 + KREG[ks] * 4 + t, o)): e(it[1])
        e('s_waitcnt lgkmcnt(0)')
        loadO(n + 1)
    e('s_waitcnt vmcnt(0)'); e('s_barrier')
    for q in range(4):
        for t in range(2):
            for hf in range(2):
                for u in range(2):
                    R = 64 + 8 * (2 * q + t) + 4 * hf + 2 * u
                    e(f'ds_read_b64_tr_b16 v[{R}:{R+1}], v{2+t} offset:{hf*8192+u*4096}')
        e.many(rot(2) + rot(3))
    e('s_waitcnt lgkmcnt(0)'); e('s_barrier')
    e('s_lshl_b32 s3, s27, 14'); e('v_add_u32 v2, s3, v0')
    for n in range(16): e(f'ds_write_b128 v2, v[{64+4*n}:{67+4*n}] offset:{n*1024}')
    e('s_waitcnt lgkmcnt(0)')
    for sl in range(2):
        for it in ord_(sl, lambda t, o: f'v[{64+32*sl+8*t+o}:{64+32*sl+8*t+o+1}]'): e(it[1])
    e('s_waitcnt lgkmcnt(0)')
    e('v_add_u32 v8, s23, v0')
    for n in range(16): e(f'ds_write_b128 v8, v[{64+4*n}:{67+4*n}] offset:{n*1024}')
    e('s_waitcnt lgkmcnt(0)')
    common_regs(e)
    e('s_barrier')
    e('v_and_b32 v18, 31, v30'); e('v_lshlrev_b32 v6, 6, v18')
    e('v_lshrrev_b32 v18, 5, v30'); e('v_lshl_add_u32 v6, v18, 3, v6')
    e('s_lshl_b32 s3, s27, 4'); e('v_add_u32 v6, s3, v6')
    e('v_bfe_u32 v18, v30, 3, 1'); e('v_lshlrev_b32 v11, 6, v18')
    for bit, sh in ((1, 5), (2, 4), (5, 3), (0, 2)):
        e(f'v_bfe_u32 v18, v30, {bit}, 1'); e(f'v_lshl_add_u32 v11, v18, {sh}, v11')
    e('v_bfe_u32 v18, v30, 4, 1'); e('v_mul_u32_u24 v18, 640, v18'); e('v_add_u32 v11, v11, v18')
    e('s_mul_i32 s3, s27, 1280'); e(f's_add_u32 s3, s3, {KVB}'); e('v_add_u32 v11, s3, v11')
    e('v_add_u32 v10, 5120, v11')
    e('v_bfe_u32 v18, v30, 2, 3'); e('v_mul_u32_u24 v7, 160, v18')
    e('v_lshrrev_b32 v18, 5, v30'); e('v_lshl_add_u32 v7, v18, 5, v7')
    e('v_and_b32 v18, 3, v30'); e('v_lshl_add_u32 v7, v18, 3, v7')
    e('s_mul_i32 s3, s28, 5120'); e('s_lshl_b32 s4, s29, 6'); e('s_add_u32 s3, s3, s4'); e(f's_add_u32 s3, s3, {KVB}'); e('v_add_u32 v7, s3, v7')
    e('s_lshl_b32 s35, s30, 10')
    e('s_lshl_b32 s3, s27, 8'); e('v_lshlrev_b32 v13, 2, v30'); e('v_add_u32 v13, s3, v13')
    e('s_and_b32 s3, s35, 0x6000'); e('s_add_u32 s46, s35, s3'); e(f's_add_u32 s35, s35, {ST_PL}')
    e('v_lshlrev_b32 v9, 2, v30')
    e('v_lshlrev_b32 v12, 7, v30')
    e('s_lshl_b32 s36, s33, 15'); e('s_lshl_b32 s3, s27, 13'); e('s_add_u32 s36, s36, s3'); e(f's_add_u32 s36, s36, {ST_OM}')
    e('s_and_b32 s3, s34, 15'); e(f's_lshl_b32 s3, s3, {OPT["fs"]}'); e('s_add_u32 s24, s22, s3')
    e(f'v_mov_b32 v24, {hex(SENT)}'); e(f'v_mov_b32 v25, {hex(SENT)}')
    handshake(e, 'CV1_top', 'CV0_top')
    e('s_add_u32 s46, s46, s6')
    e('s_lshl_b32 s47, s33, 7'); e('s_add_u32 s47, s47, s6'); e(f's_add_u32 s47, s47, {ST_F3}')
    e('s_cmp_eq_u32 s34, 16'); e('s_cselect_b32 s38, s20, 0'); e('s_mov_b32 s39, 0')
    e(f's_add_u32 s3, s47, {WS_STEP}')
    e('s_mov_b64 exec, s[38:39]'); e('buffer_store_dword v1, off, s[8:11], s3 sc1'); e('s_mov_b64 exec, -1')
    e(f's_add_u32 s3, s24, {WS_STEP}')
    e('s_mov_b64 exec, s[20:21]'); e('buffer_store_dword v1, off, s[8:11], s3 sc1'); e('s_mov_b64 exec, -1')
    e('s_cmp_eq_u32 s37, 0'); e('s_cbranch_scc1 CV0_top')
    for k in range(4):
        R = WS_STEP + k * STEP_SZ
        e(f's_add_u32 s3, s50, {R + ST_VM}'); e('buffer_load_dword v18, v6, s[8:11], s3 offen sc1')
        e(f's_add_u32 s3, s35, {R}'); e('buffer_load_dword v18, v13, s[8:11], s3 offen sc1')
        e(f's_add_u32 s3, s24, {R}'); e('buffer_load_dword v18, off, s[8:11], s3 sc1')
    e('s_waitcnt vmcnt(0)')
    for k in range(4):
        R = WS_STEP + k * STEP_SZ
        e(f's_add_u32 s3, s50, {R + ST_VM}'); e('buffer_store_dwordx2 v[24:25], v6, s[8:11], s3 offen')
        if k:
            e(f's_add_u32 s3, s35, {R}'); e('buffer_store_dword v24, v13, s[8:11], s3 offen')
            e(f's_add_u32 s3, s24, {R}')
            e('s_mov_b64 exec, s[20:21]'); e('buffer_store_dword v24, off, s[8:11], s3'); e('s_mov_b64 exec, -1')
    for loc in (1, 0):
        LOC[0] = loc
        V_loop(e, f'CV{loc}', KREG)

def V_loop(e, X, KREG):
    e.raw('.p2align 6')
    e.lab(X + '_top')
    e('s_mov_b32 s40, 0')
    q = Seq(e)
    def wrd(n):
        B = 64 + 8 * (n & 1)
        return [(f'ds_read_b128 v[{B+4*hf}:{B+4*hf+3}], v2 offset:{n*2048+hf*1024}', f'W{n}') for hf in range(2)]
    for n in range(2):
        for x, t in wrd(n): q.L(x, t)
    for r in range(16, 24, 2): e(f'v_mov_b64 v[{r}:{r+1}], 0')
    e(f'v_add_u32 v4, 4096, v5'); e(f'v_and_b32 v4, {hex(MEMB + 0x3fff)}, v4')
    gather_mem(e, q)
    fill = [[] for _ in range(32)]; pre = [[] for _ in range(32)]
    for n in range(2, 8):
        for k, (x, t) in enumerate(wrd(n)): fill[4 * n - 5 + k].append(('L', x, t))
    for qq in range(1, 4):
        base = 8 * (qq - 1) + (1 if qq == 1 else 0)
        if qq == 1: fill[base] += [('NL', 'AW'), ('X', 's_barrier')]
        for p in range(4):
            R = 32 + 16 * (qq & 1) + 4 * p
            fill[base + p // 2].append(('L', f'ds_read_b128 v[{R}:{R+3}], v4 offset:{p*1024}', f'A{qq}'))
        if qq < 3: fill[base + 2] += [('X', 'v_add_u32 v4, 4096, v4'), ('X', f'v_and_b32 v4, {hex(MEMB + 0x3fff)}, v4')]
        pre[8 * qq].append(('NL', f'A{qq}'))
    k = 0
    for qq in range(4):
        for t in range(2):
            for kp in range(4):
                q.emit(pre[k])
                A = 32 + 16 * (qq & 1) + 4 * kp
                if kp < 3: B = wreg((qq * 3 + kp) * 2 + t)
                else:
                    n = 2 * qq + t; q.need(ltag=f'W{n}'); b = 64 + 8 * t; B = f'v[{b}:{b+7}]'
                e(f'{SMF} v[{16+4*t}:{19+4*t}], v[{A}:{A+3}], {B}, v1')
                q.emit(fill[k]); k += 1
    e('s_add_u32 s42, s32, s50'); e(f's_add_u32 s42, s42, {ST_VM}')
    for r in range(24, 32, 2): e(f'v_mov_b64 v[{r}:{r+1}], 0')
    e('s_nop 1')
    for r in range(4): e(f'v_permlane32_swap_b32 v{16+r}, v{20+r}')
    e('v_pk_add_f32 v[16:17], v[16:17], v[20:21]'); e('v_pk_add_f32 v[18:19], v[18:19], v[22:23]')
    e('v_cvt_pk_bf16_f32 v20, v16, v17'); e('v_cvt_pk_bf16_f32 v21, v18, v19')
    local_store(e, ['buffer_store_dwordx2 v[20:21], v6, s[8:11], s42 offen'])
    stamp(e, 3)
    e(f's_cmp_eq_u32 s31, {NSTEP-1}'); e('s_cbranch_scc1 L_exit')
    e(f'v_mov_b32 v22, {hex(SENT)}'); e(f'v_mov_b32 v23, {hex(SENT)}')
    e('s_add_u32 s42, s25, s50'); e(f's_add_u32 s42, s42, {ST_VM}'); e('s_add_u32 s43, s25, s35'); e('s_add_u32 s44, s25, s46'); e('s_add_u32 s3, s25, s24')
    e('buffer_store_dword v22, v13, s[8:11], s44 offen sc1')
    e('s_add_u32 s44, s25, s47'); e('s_mov_b64 exec, s[38:39]'); e('buffer_store_dword v22, off, s[8:11], s44 sc1'); e('s_mov_b64 exec, -1')
    local_store(e, ['buffer_store_dwordx2 v[22:23], v6, s[8:11], s42 offen', 'buffer_store_dword v22, v13, s[8:11], s43 offen',
                    's_mov_b64 exec, s[20:21]', 'buffer_store_dword v22, off, s[8:11], s3', 's_mov_b64 exec, -1'])
    for n in range(16): e(f'ds_read_b128 v[{64+4*n}:{67+4*n}], v8 offset:{n*1024}')
    for r in range(16, 32, 2): e(f'v_mov_b64 v[{r}:{r+1}], 0')
    e('s_add_u32 s42, s32, s36'); e('s_add_u32 s43, s42, 4096'); e('s_add_u32 s44, s32, s53')
    e('s_waitcnt lgkmcnt(0)')
    stamp(e, 4)
    probe(e, 'v9', 's44', 'f', None, sleep=OPT['sleepF'])
    for k in range(OPT['dlyF'] // 16): e('s_nop 15')
    if OPT['dlyF'] % 16: e(f's_nop {OPT["dlyF"] % 16}')
    stamp(e, 5)
    OI = [(32 + 4 * ks, 'v0', 's42' if ks < 4 else 's43', (ks & 3) * 1024) for ks in range(8)]
    NA = OPT['ahead']
    if OPT['f3pos'] == 8:
        e('s_add_u32 s3, s26, s47'); e('s_mov_b64 exec, s[38:39]'); e('buffer_store_dword v1, off, s[8:11], s3 sc1'); e('s_mov_b64 exec, -1')
    for k, it in enumerate(OI[:NA]):
        e(ldx4(*it))
        if OPT['pace'] and k < NA - 1: e(f's_nop {OPT["pace"]}')
    def chk(ks):
        R = 32 + 4 * ks
        return [[f's_waitcnt vmcnt({min(7, ks + NA - 1) - ks + (1 if ks > OPT["f2pos"] else 0)})', f'v_max3_u32 v14, v{R}, v{R+1}, v{R+2}'],
                [f'v_max_u32 v14, v14, v{R+3}', f'v_cmp_eq_u32 vcc, {hex(SENT)}, v14'], [f's_cbranch_vccnz {X}_f{ks}', f'{X}_b{ks}:']]
    def put(l):
        for x in l:
            if x.endswith(':'): e.raw(x)
            else: e(x)
    for l in chk(0): put(l)
    stamp(e, 11)
    e('s_add_u32 s44, s26, s24')
    for ks in range(8):
        R = 32 + 4 * ks
        for t in range(4):
            B = wreg(24 + KREG[ks] * 4 + t) if ks in KREG else f'v[{64+32*(ks>>2)+8*t}:{64+32*(ks>>2)+8*t+7}]'
            e(f'{SMF} v[{16+4*t}:{19+4*t}], v[{R}:{R+3}], {B}, v1')
            if t == 0 and ks + NA < 8: e(ldx4(*OI[ks + NA]))
            if t == 0 and ks == OPT['f2pos']:
                assert ks + NA >= 7
                local_store(e, ['s_mov_b64 exec, s[20:21]', 'buffer_store_dword v1, off, s[8:11], s44', 's_mov_b64 exec, -1'])
            if t == 0 and ks == OPT['f3pos']:
                e('s_add_u32 s3, s26, s47'); e('s_mov_b64 exec, s[38:39]'); e('buffer_store_dword v1, off, s[8:11], s3 sc1'); e('s_mov_b64 exec, -1')
            if t > 0 and ks < 7: put(chk(ks + 1)[t - 1])
    stamp(e, 7)
    e('v_mov_b32 v15, 0'); e('v_mov_b32 v15, 0')
    e('s_add_u32 s31, s31, 1'); e('s_add_u32 s42, s26, s46')
    e('v_mov_b32 v15, 0')
    e('s_add_u32 s43, s26, s35'); e('v_mov_b32 v15, 0')
    for c in range(2):
        a = 16 + 8 * c
        for r in range(4): e(f'v_permlane32_swap_b32 v{a+r}, v{a+4+r}')
        e(f'v_pk_add_f32 v[{a}:{a+1}], v[{a}:{a+1}], v[{a+4}:{a+5}]'); e(f'v_pk_add_f32 v[{a+2}:{a+3}], v[{a+2}:{a+3}], v[{a+6}:{a+7}]')
    for c in range(2):
        a = 16 + 8 * c
        for r in (0, 2): e(f'ds_write2_b32 v{11-c}, v{a+r}, v{a+r+1} offset0:{r*40} offset1:{r*40+40}')
    if OPT['f2pos'] == 8: local_store(e, ['s_mov_b64 exec, s[20:21]', 'buffer_store_dword v1, off, s[8:11], s44', 's_mov_b64 exec, -1'])
    stamp(e, 8)
    e('s_waitcnt lgkmcnt(0)')
    stamp(e, 9)
    e('s_barrier')
    stamp(e, 10)
    for w in range(4): e(f'ds_read_b64 v[{36+2*w}:{37+2*w}], v7 offset:{w*1280}')
    if OPT['f2pos'] == 9: local_store(e, ['s_mov_b64 exec, s[20:21]', 'buffer_store_dword v1, off, s[8:11], s44', 's_mov_b64 exec, -1'])
    e('s_waitcnt lgkmcnt(2)')
    e('v_pk_add_f32 v[36:37], v[36:37], v[38:39]')
    e('s_waitcnt lgkmcnt(0)')
    e('v_pk_add_f32 v[40:41], v[40:41], v[42:43]')
    e('v_pk_add_f32 v[36:37], v[36:37], v[40:41]')
    e('v_cvt_pk_bf16_f32 v24, v36, v37')
    if OPT['lfirst']: local_store(e, ['buffer_store_dword v24, v13, s[8:11], s43 offen'])
    e('buffer_store_dword v24, v13, s[8:11], s42 offen sc1')
    if not OPT['lfirst']: local_store(e, ['buffer_store_dword v24, v13, s[8:11], s43 offen'])
    stamp(e, 6)
    e('s_mov_b32 s25, s32'); e('s_mov_b32 s32, s26'); e(f's_add_u32 s26, s26, {STEP_SZ}'); e('s_and_b32 s26, s26, 0xfffff'); e(f's_or_b32 s26, s26, {WS_STEP}')
    stamp_flush(e)
    e(f's_branch {X}_top')
    for ks in range(8):
        e.lab(f'{X}_f{ks}')
        if OPT['stamp']: e('s_add_u32 s99, s99, 1')
        poll(e, OI[ks:min(8, ks + NA)], 'o', issued=True)
        e(f's_branch {X}_b{ks}')
    flush_defer(e)

def gen_chain(e):
    gen_P(e); gen_VO(e)
```

```python
from common import *
from k_bulk import setup_load, P_WQ, P_WK, P_WV, P_X, F_K0, tstamp, BOPT
LB = 128 * KB
def dbg_add(e, off, total, go):
    L = e.uniq('DA')
    e('s_cmp_lg_u32 s27, 0'); e(f's_cbranch_scc1 {L}')
    e('v_mov_b32 v18, 1'); e('s_mov_b64 exec, 1')
    e(f'buffer_atomic_add v18, off, s[68:71], 0 offset:{off} sc0 sc1')
    e('s_waitcnt vmcnt(0)')
    e('v_readfirstlane_b32 s3, v18')
    e(f's_cmp_lg_u32 s3, {total-1}'); e(f's_cbranch_scc1 {L}_n')
    e(f'buffer_store_dword v18, off, s[68:71], 0 offset:{go} sc1')
    e.lab(L + '_n')
    e('s_mov_b64 exec, -1')
    e.lab(L)

def gen_start(e):
    D = 32; F = 64
    e('s_bitcmp1_b32 s2, 2'); e('s_cbranch_scc0 ST_misc')
    srd(e, 44, P_X, 4 * MB)
    e('s_lshr_b32 s23, s2, 3'); e('s_lshl_b32 s23, s23, 2'); e('s_and_b32 s3, s2, 3'); e('s_add_u32 s23, s23, s3')
    e('v_lshrrev_b32 v23, 8, v0')
    e('v_bfe_u32 v24, v0, 4, 4')
    e('v_lshlrev_b32 v25, 11, v24')
    e('v_lshl_add_u32 v25, v23, 3, v25')
    e('s_lshl_b32 s3, s23, 15'); e('s_lshl_b32 s4, s27, 9'); e('s_add_u32 s3, s3, s4')
    for kk in range(8):
        e(f'buffer_load_dwordx2 v[{D+4*kk}:{D+4*kk+1}], v25, s[44:47], s3 offen offset:{kk*64}')
        e(f'buffer_load_dwordx2 v[{D+4*kk+2}:{D+4*kk+3}], v25, s[44:47], s3 offen offset:{kk*64+32}')
    verify_rot(e)
    e('v_lshlrev_b32 v26, 6, v24'); e(f'v_add_u32 v26, {LB}, v26')
    e('s_lshl_b32 s3, s27, 4'); e('v_lshl_add_u32 v27, v23, 2, v26'); e('v_add_u32 v27, s3, v27')
    for n in range(32):
        if n % 2 == 0: e(f's_waitcnt vmcnt({15 - n // 2})')
        e(f'v_lshlrev_b32 v{F+2*n}, 16, v{D+n}')
        e(f'v_and_b32 v{F+2*n+1}, 0xffff0000, v{D+n}')
    if BOPT['tstamp'] == 2: tstamp(e)
    A = 28
    def tree(src, n):
        e(f'v_pk_add_f32 v[{A}:{A+1}], v[{src}:{src+1}], v[{src+2}:{src+3}]'); e(f'v_pk_add_f32 v[{A+2}:{A+3}], v[{src+4}:{src+5}], v[{src+6}:{src+7}]')
        for k in range(8, n, 2): t = A + (k & 2); e(f'v_pk_add_f32 v[{t}:{t+1}], v[{t}:{t+1}], v[{src+k}:{src+k+1}]')
    def fold(): e(f'v_pk_add_f32 v[{A}:{A+1}], v[{A}:{A+1}], v[{A+2}:{A+3}]'); e(f'v_add_f32 v{A}, v{A}, v{A+1}')
    def finish(off):
        fold()
        e(f'ds_write_b32 v27, v{A} offset:{off}')
        e('s_waitcnt lgkmcnt(0)'); e('s_barrier')
        for q in range(4): e(f'ds_read_b128 v[{D+4*q}:{D+4*q+3}], v26 offset:{off+16*q}')
        e('s_waitcnt lgkmcnt(0)')
        tree(D, 16); fold()
        e(f'v_mul_f32 v{A}, 0x3a800000, v{A}')
    tree(F, 64)
    finish(0)
    e(f'v_mov_b32 v22, v{A}')
    for n in range(0, 64, 2):
        t = A + (n & 2)
        e(f'v_pk_add_f32 v[24:25], v[{F+n}:{F+n+1}], v[22:23] op_sel_hi:[1,0] neg_lo:[0,1] neg_hi:[0,1]')
        if n < 4: e(f'v_pk_mul_f32 v[{t}:{t+1}], v[24:25], v[24:25]')
        else: e(f'v_pk_fma_f32 v[{t}:{t+1}], v[24:25], v[24:25], v[{t}:{t+1}]')
    finish(1024)
    e(f'v_cvt_pk_bf16_f32 v24, v22, v{A}')
    e('v_lshlrev_b32 v22, 16, v24')
    e(f'v_and_b32 v{A}, 0xffff0000, v24')
    e(f'v_add_f32 v{A}, 0x3727c5ac, v{A}')
    e(f'v_cvt_pk_bf16_f32 v{A}, v{A}, v{A}'); e(f'v_lshlrev_b32 v{A}, 16, v{A}')
    e(f'v_sqrt_f32 v{A}, v{A}'); e('s_nop 0')
    e(f'v_cvt_pk_bf16_f32 v{A}, v{A}, v{A}'); e(f'v_lshlrev_b32 v{A}, 16, v{A}')
    e(f'v_rcp_f32 v{A}, v{A}')
    e('s_lshl_b32 s3, s23, 10'); e('s_lshl_b32 s4, s27, 20'); e('s_add_u32 s3, s3, s4')
    for n in range(32):
        e(f'v_pk_add_f32 v[24:25], v[{F+2*n}:{F+2*n+1}], v[22:23] op_sel_hi:[1,0] neg_lo:[0,1] neg_hi:[0,1]')
        e('v_cvt_pk_bf16_f32 v25, v24, v25')
        e('v_lshlrev_b32 v24, 16, v25'); e('v_and_b32 v25, 0xffff0000, v25')
        e(f'v_pk_mul_f32 v[24:25], v[24:25], v[{A}:{A+1}] op_sel_hi:[1,0]')
        e(f'v_cvt_pk_bf16_f32 v{D+n}, v24, v25')
        if n % 4 == 3:
            kk = n // 4
            e(f'buffer_store_dwordx4 v[{D+4*kk}:{D+4*kk+3}], v0, s[8:11], s3 offen sc1')
            e(f's_add_u32 s3, s3, {128*KB}')
    if BOPT['tstamp'] == 2: tstamp(e)
    e('s_waitcnt vmcnt(0)'); e('s_barrier')
    if BOPT['tstamp'] == 2: tstamp(e)
    dbg_add(e, D_XN, 192, D_XGO)
    e('s_branch L_sched')
    e.lab('ST_misc')
    verify_rot(e)
    e('s_lshr_b32 s23, s2, 3'); e('s_lshl_b32 s23, s23, 1'); e('s_and_b32 s3, s2, 7'); e(f's_cmp_eq_u32 s3, {MISC[1]}'); e('s_addc_u32 s23, s23, 0')
    for r in range(16): e(f'v_mov_b32 v{32+r}, {hex(SENT)}')
    e('s_lshl_b32 s5, s27, 10'); e('v_add_u32 v22, s5, v0')
    e('s_cmp_ge_u32 s23, 6'); e('s_cbranch_scc1 ST_fill')
    srd(e, 44, P_X + 2, 16 * KB)
    e('s_mov_b32 s3, 0x13'); e('s_bitcmp1_b32 s3, s23'); e('s_cselect_b32 s46, s46, 0')
    e('v_bfe_u32 v18, v22, 4, 3'); e('v_lshlrev_b32 v23, 11, v18')
    e('v_lshrrev_b32 v18, 9, v22'); e('v_lshl_add_u32 v23, v18, 6, v23')
    e('v_bfe_u32 v18, v22, 8, 1'); e('v_lshl_add_u32 v23, v18, 4, v23')
    e('v_bfe_u32 v18, v22, 7, 1'); e('v_lshl_add_u32 v23, v18, 2, v23')
    e('s_and_b32 s4, s23, 1'); e('s_lshl_b32 s4, s4, 10')
    e('s_cmp_eq_u32 s23, 4'); e('s_cselect_b32 s5, 1024, 0')
    for p in range(4):
        e(f's_add_u32 s3, s4, {(p&1)*512}')
        if p >= 2: e('s_add_u32 s3, s3, s5')
        for a_ in range(4): e(f'buffer_load_dword v{48+4*p+a_}, v23, s[44:47], s3 offen offset:{32*(a_&1) + 8*(a_>>1)}')
    e('s_waitcnt vmcnt(0)')
    for r in range(16):
        e(f'v_cmp_eq_u32 vcc, v{32+r}, v{48+r}'); e('s_nop 1'); e(f'v_cndmask_b32 v{32+r}, v{48+r}, -1, vcc')
    e.lab('ST_fill')
    e('s_lshl_b32 s3, s23, 14'); e(f's_add_u32 s3, s3, {WS_STEP}')
    for p in range(4):
        e(f'buffer_store_dwordx4 v[{32+4*p}:{35+4*p}], v22, s[8:11], s3 offen sc1'); e('s_add_u32 s3, s3, 4096')
    e('v_mov_b32 v19, 0'); e('s_lshl_b32 s3, s23, 8'); e(f's_add_u32 s3, s3, {WS_CNT}')
    e('v_lshrrev_b32 v18, 2, v0'); e('buffer_store_dword v19, v18, s[8:11], s3 offen sc1')
    e('s_waitcnt vmcnt(0)'); e('s_barrier')
    dbg_add(e, D_XN, 192, D_XGO)
    e(f's_cmp_eq_u32 s2, {MISC_WG}'); e('s_cbranch_scc1 ST_cal')
    if BOPT['wpf']:
        e('v_lshlrev_b32 v18, 3, v0')
        e('s_lshl_b32 s3, s23, 2'); e('s_add_u32 s3, s3, s27'); e('s_lshl_b32 s3, s3, 1')
        e('s_and_b32 s4, s3, 127'); e('s_lshr_b32 s3, s3, 7'); e('s_lshl_b32 s3, s3, 8'); e('s_add_u32 s3, s3, s4'); e('s_add_u32 s3, s3, 128')
        e('s_lshl_b32 s3, s3, 13'); e('s_add_u32 s4, s3, 8192')
        for P in (P_WQ, P_WK, P_WV):
            srd(e, 44, P, 8 * MB)
            e('buffer_load_dword v200, v18, s[44:47], s3 offen'); e('buffer_load_dword v200, v18, s[44:47], s4 offen')
    e('s_branch L_sched')
    e.lab('ST_cal')
    e('s_cmp_lg_u32 s27, 0'); e('s_cbranch_scc1 ST_mw')
    e('s_mov_b64 exec, 1')
    e('s_mov_b32 s23, 0')
    for k in range(-1, 4):
        for par in ((0,) if k < 0 else (0, 1) if k & 1 else (1, 0)):
            e(f's_mov_b32 s3, {hex(WS_STEP + ST_PR + max(k, 0)*STEP_SZ + 240*KB + par*8*KB + (k&1)*4*KB)}')
            e('s_waitcnt vmcnt(0)')
            e('s_memtime s[4:5]'); e('s_waitcnt lgkmcnt(0)')
            e('buffer_store_dword v19, off, s[8:11], s3 sc1')
            e('s_waitcnt vmcnt(0)')
            e('s_memtime s[6:7]'); e('s_waitcnt lgkmcnt(0)')
            if k >= 0:
                e('s_sub_u32 s6, s6, s4'); e('s_min_u32 s6, s6, 3000')
                e('s_add_u32 s23, s23, s6' if par == 0 else 's_sub_u32 s23, s23, s6')
    e('s_cmp_gt_i32 s23, 0'); e('s_cselect_b32 s3, 3, 2')
    e('s_lshl_b32 s23, s23, 2'); e('s_or_b32 s3, s3, s23')
    e('v_mov_b32 v18, s3')
    e(f'buffer_store_dword v18, off, s[68:71], 0 offset:{D_PAR} sc1')
    e('s_mov_b64 exec, -1')
    e.lab('ST_mw')
    e('s_barrier')
    e('s_branch L_sched')
```

```python
import sys
from common import *
from k_ln import gen_start
from k_bulk import *
NAME = 'parallel_sum__memory_aug_recurrent_mem_tr__glu_gated_swiglu__prompt'
TL = 16

def is_chain(wg): return (wg & 7) in XG
BULK = [w for w in range(256) if not is_chain(w)]

def T(ty, a=0, b=0, nj4=0, mode=0, k0=0, nk=1, p=0, urgent=0, hb=0):
    return dict(hb=hb, t=ty, a=a, b=b, nj4=nj4, mode=mode, k0=k0, nk=nk, p=p, urgent=urgent)

def finalize(lists):
    tab = []
    for wg in range(256):
        l = lists.get(wg, [])
        assert len(l) < TL - 1
        row = []
        for k, t in enumerate(l):
            pref = 0
            if k > 0:
                p = l[k - 1]
                if p['t'] != T_FIN and t['t'] in (T_QK, T_VV, T_FU) and p['nj4'] == t['nj4'] != 2 and not p['urgent']:
                    pref = 1
            row.append(desc(t['t'], t['a'], t['b'], t['nj4'], pref, t['mode'], t['k0'], t['nk'], t['p'], t['hb']))
        row += [0] * (TL - len(row))
        tab += row
    return tab

def build(lists, chain_gen):
    e = E()
    K = NAME + '_kernel'
    hdr = open('cdna_kernels/' + NAME + '.s.ref').read().split('\n')
    for l in hdr:
        if l.startswith('; Override'): break
        e.raw(l)
    e.raw('; @launch grid=(256,1,1) block=(256,1,1) lds=163840')
    e.raw('.amdgcn_target "amdgcn-amd-amdhsa--gfx950"\n.text')
    e.raw(f'.globl {K}\n.p2align 8\n.type {K},@function\n{K}:')
    e('s_cmp_ge_u32 s2, 256')
    e('s_cbranch_scc1 L_exit')
    load_ptrs(e)
    e('v_lshrrev_b32 v18, 6, v0')
    e('s_mov_b32 s88, s2')
    e('v_readfirstlane_b32 s27, v18')
    e('s_lshr_b32 s28, s27, 1'); e('s_and_b32 s29, s27, 1')
    e('s_getreg_b32 s89, hwreg(HW_REG_XCC_ID, 0, 3)'); e('s_sub_u32 s89, s89, s2'); e('s_and_b32 s89, s89, 7')
    e('s_waitcnt lgkmcnt(0)')
    srd(e, 8, P_WS, WS_SIZE)
    srd(e, 68, P_DBG, 256)
    e('s_or_b32 s3, s2, s27'); e('s_cmp_lg_u32 s3, 0'); e('s_cbranch_scc1 L_role')
    e('s_add_u32 s3, s89, 1'); e('v_mov_b32 v18, s3')
    e('s_mov_b64 exec, 1'); e(f'buffer_store_dword v18, off, s[68:71], 0 offset:{D_ROT} sc1'); e('s_mov_b64 exec, -1')
    e('s_branch L_role')
    e.lab('L_redo')
    e('s_mov_b32 s89, s3')
    e('s_waitcnt vmcnt(0) lgkmcnt(0)'); e('s_barrier')
    e('v_mbcnt_lo_u32_b32 v0, -1, 0'); e('v_mbcnt_hi_u32_b32 v0, -1, v0')
    e.lab('L_role')
    e('s_add_u32 s3, s88, s89'); e('s_and_b32 s3, s3, 7'); e('s_andn2_b32 s2, s88, 7'); e('s_or_b32 s2, s2, s3')
    e('s_getpc_b64 s[38:39]')
    e.lab('PC_0')
    if BOPT['cw']:
        e('v_and_b32 v18, 63, v0'); e('v_lshlrev_b32 v18, 7, v18')
        e('s_bfe_u32 s3, s88, 0x10003'); e('s_lshl_b32 s3, s3, 2'); e('s_add_u32 s3, s3, s27'); e('s_lshl_b32 s3, s3, 13')
        e('v_add_u32 v18, s3, v18'); e('v_min_u32 v18, TABLE_0-PC_0, v18')
        e('global_load_dword v255, v18, s[38:39]')
    e('s_add_u32 s38, s38, TABLE_0-PC_0'); e('s_addc_u32 s39, s39, 0')
    e(f's_mul_i32 s3, s2, {TL*4}')
    e('s_add_u32 s38, s38, s3'); e('s_addc_u32 s39, s39, 0')
    e('s_load_dword s31, s[38:39], 0')
    e('s_and_b32 s3, s2, 7')
    e('s_lshr_b32 s34, s2, 3')
    e('s_mov_b32 s33, 0')
    e(f's_cmp_eq_u32 s3, {XG[0]}'); e('s_cbranch_scc1 L_chain')
    e('s_mov_b32 s33, 1')
    e(f's_cmp_lg_u32 s3, {XG[1]}'); e('s_cbranch_scc1 L_bulk')
    e.lab('L_chain')
    e('s_waitcnt lgkmcnt(0)')
    e('s_cmp_lt_u32 s34, 16'); e('s_cbranch_scc1 L_chainP')
    e('s_branch L_chainV')
    e.lab('L_bulk')
    bulk_init(e)
    tstamp(e)
    gen_start(e)
    gen_sched(e)
    e.lab('L_abort')
    e.lab('L_exit')
    e('s_endpgm')
    gen_gemm(e, 8)
    gen_gemm(e, 4)
    gen_gemm(e, 2)
    gen_fin(e)
    chain_gen(e)
    if BOPT['al']:
        from align import align_pass
        print('align', align_pass(e.L, 'CP1_top', 'CP0_top', BOPT['al']), align_pass(e.L, 'CV1_top', 'CV0_top', BOPT['al']))
    e.raw('.p2align 6')
    e.raw('.type TABLE_0,@object')
    e.lab('TABLE_0')
    tab = finalize(lists)
    for i in range(0, len(tab), 16):
        e.raw('.long ' + ','.join(hex(x) for x in tab[i:i+16]))
    e.raw(f'.size TABLE_0, {len(tab)*4}')
    e.raw('.section .rodata,"a"')
    e.raw(kd(K, 512, 102, 256))
    return e.text()
```

```python
MB = 1 << 20
KB = 1 << 10
WS_XN  = 0
WS_QKV = 4 * MB
WS_H   = 52 * MB
WS_O   = 66 * MB
WS_STEP = 82 * MB
STEP_SZ = 256 * KB
ST_PR = 0
ST_PL = 64 * KB
ST_OM = 96 * KB
ST_VM = 160 * KB
ST_FL = 224 * KB
ST_F2 = 228 * KB
ST_F3 = 240 * KB + 1024
WS_CNT = 95 * MB
WS_Y   = 96 * MB
WS_DBG = 224 * MB
WS_SIZE = 256 * MB
SENT = 0xFFBFFFBF
C_KV  = 0
C_FU  = 16
C_O   = 32
C_Y   = 64
NCNT = 128
D_XN = 0
D_XN0 = 140
D_XGO0 = 140
D_CH = 8
D_PAR = 128
D_XGO = 132
D_ROT = 136
import os
XG = tuple(int(c) for c in os.environ.get('XGSEL', '13'))
MISC = [x for x in range(4) if x not in XG]
MISC_WG = 248 + MISC[0]

class E:
    def __init__(s): s.L = []; s.n = 0
    def __call__(s, t):
        for x in t.split('\n'): s.L.append('  ' + x.strip())
    def many(s, l):
        for x in l: s(x)
    def lab(s, t): s.L.append(t + ':')
    def raw(s, t): s.L.append(t)
    def uniq(s, p='L'):
        s.n += 1; return f'{p}_{s.n}'
    def text(s): return '\n'.join(s.L) + '\n'

def kd(name, vgpr, sgpr, accum):
    return f'''.p2align 6
.amdhsa_kernel {name}
  .amdhsa_next_free_vgpr {vgpr}
  .amdhsa_next_free_sgpr {sgpr}
  .amdhsa_accum_offset {accum}
  .amdhsa_group_segment_fixed_size 0
  .amdhsa_kernarg_size 112
  .amdhsa_user_sgpr_count 2
  .amdhsa_user_sgpr_kernarg_segment_ptr 1
  .amdhsa_system_sgpr_workgroup_id_x 1
.end_amdhsa_kernel
'''
def srd(e, d, lo, size):
    e(f's_mov_b32 s{d}, s{lo}'); e(f's_mov_b32 s{d+1}, s{lo+1}')
    e(f's_mov_b32 s{d+2}, {hex(size)}'); e(f's_mov_b32 s{d+3}, 0x20000')

def verify_rot(e, issued=False, reg=31):
    L = e.uniq('VR')
    e('s_mov_b32 s4, 0')
    if issued: e(f'v_mov_b32 v18, v{reg}'); e(f's_branch {L}_c')
    e.lab(L)
    e('s_sleep 4')
    e(f'buffer_load_dword v18, off, s[68:71], 0 offset:{D_ROT} sc1')
    e('s_add_u32 s4, s4, 1'); e('s_cmp_gt_u32 s4, 0x10000'); e('s_cbranch_scc1 L_abort')
    e('s_waitcnt vmcnt(0)')
    e.lab(L + '_c')
    e('v_readfirstlane_b32 s3, v18')
    e('s_cmp_eq_u32 s3, 0'); e(f's_cbranch_scc1 {L}')
    e('s_sub_u32 s3, s3, 1'); e('s_and_b32 s3, s3, 7')
    e('s_cmp_lg_u32 s3, s89'); e('s_cbranch_scc1 L_redo')
```

```python
from common import *
T_END, T_QK, T_VV, T_FU, T_FD, T_WO, T_FIN = 0, 1, 2, 3, 4, 5, 6
def desc(t, a=0, b=0, nj4=0, pref=0, mode=0, k0=0, nk=1, p=0, hb=0):
    return t | (nj4 == 1) << 3 | (nj4 == 2) << 6 | hb << 7 | pref << 4 | mode << 5 | a << 8 | b << 12 | k0 << 18 | (nk - 1) << 22 | p << 26
F_A, F_B, F_K0, F_NK, F_P = 0x40008, 0x6000c, 0x40012, 0x40016, 0x5001a
P_X, P_WQ, P_WK, P_WV, P_WO, P_W1, P_W3, P_W2, P_OUT, P_DBG, P_WS = 56, 60, 62, 64, 66, 72, 74, 76, 78, 80, 82
S = 4
RINGM = 0x1ffff
SPIN_MAX = 1 << 16

def acc(NJ, i, j):
    t = i * NJ + j
    return ('v', 32 + 4 * t) if t < 56 else ('a', (t - 56) * 4)
def rr(r, n=4): return f'{r[0]}[{r[1]}:{r[1]+n-1}]'
def wfrag(half, i): return ('a', 32 + half * 16 + i * 4)
def xfrag(NJ, st, j): return ('a', 64 + st * 32 + j * 4)

def load_ptrs(e):
    e('s_load_dwordx4 s[56:59], s[0:1], 0')
    e('s_load_dwordx8 s[60:67], s[0:1], 16')
    e('s_load_dwordx8 s[72:79], s[0:1], 64')
    e('s_load_dwordx4 s[80:83], s[0:1], 96')

def wait_counter(e, offs_sgpr, target, tag, srd_='s[8:11]', slp=8, wg=True, imm=0):
    L = e.uniq('W' + tag)
    if wg: e('s_cmp_lg_u32 s27, 0'); e(f's_cbranch_scc1 {L}_ok')
    e('s_mov_b32 s4, 0')
    e.lab(L)
    e(f'buffer_load_dword v18, off, {srd_}, {offs_sgpr} offset:{imm} sc1')
    e('s_add_u32 s4, s4, 1')
    e(f's_cmp_gt_u32 s4, {SPIN_MAX}')
    e('s_cbranch_scc1 L_abort')
    e('s_waitcnt vmcnt(0)')
    e('v_readfirstlane_b32 s3, v18')
    e(f's_cmp_ge_u32 s3, {target}')
    e(f's_cbranch_scc1 {L}_ok')
    e(f's_sleep {slp}')
    e(f's_branch {L}')
    e.lab(L + '_ok')
    if wg: e('s_barrier')

def signal(e):
    L = e.uniq('SIG')
    e('s_cmp_lg_u32 s27, 0')
    e(f's_cbranch_scc1 {L}')
    e('v_mov_b32 v18, s37')
    e('s_mov_b64 exec, 1')
    e('buffer_atomic_add v18, off, s[8:11], s35 sc1')
    e('s_cmp_eq_u32 s36, 0')
    e(f's_cbranch_scc1 {L}_1')
    e('buffer_atomic_add v18, off, s[8:11], s36 sc1')
    e.lab(L + '_1')
    e('s_mov_b64 exec, -1')
    e.lab(L)
    e('s_mov_b32 s35, 0')

def bulk_init(e):
    e('v_and_b32 v18, 63, v0')
    e('v_lshlrev_b32 v0, 4, v18')
    e('v_lshrrev_b32 v19, 2, v18')
    e('v_and_b32 v20, 7, v19')
    e('v_lshlrev_b32 v19, 8, v19')
    e('v_and_b32 v21, 3, v18')
    e('v_lshl_add_u32 v19, v21, 3, v19')
    e('s_lshl_b32 s3, s29, 2')
    e('v_xor_b32 v20, s3, v20')
    for n in range(4):
        e(f'v_xor_b32 v21, {n}, v20')
        e(f'v_lshl_add_u32 v{2+n}, v21, 5, v19')
    e('v_lshrrev_b32 v19, 4, v18')
    e('s_lshl_b32 s3, s29, 4')
    e('v_add_u32 v16, s3, v19')
    e('v_bfe_u32 v20, v18, 1, 3')
    e('v_xor_b32 v20, v20, v19')
    e('v_and_b32 v21, 1, v18')
    e('v_lshlrev_b32 v21, 4, v21')
    e('v_lshl_add_u32 v17, v20, 5, v21')
    e('s_mov_b32 s16, s8'); e('s_mov_b32 s17, s9'); e('s_mov_b32 s18, s10'); e('s_mov_b32 s19, 0x20000')
    e('s_mov_b32 s12, s8'); e('s_mov_b32 s13, s9'); e('s_mov_b32 s14, 0'); e('s_mov_b32 s15, 0x20000')
    e('s_mov_b32 s35, 0'); e('s_mov_b32 s87, 0')
    if BOPT['tstamp']:
        e('s_lshl_b32 s86, s2, 14'); e('s_lshl_b32 s3, s27, 10'); e('s_add_u32 s86, s86, s3'); e(f's_add_u32 s86, s86, {WS_DBG}'); e('s_mov_b32 s30, 0')

def w_voffsets(e, rs, vmode):
    e(f'v_mul_u32_u24 v18, {rs}, v16')
    e('v_xor_b32 v20, 0x80, v17')
    if vmode:
        e('v_and_b32 v19, 0x80, v17'); e('v_add_u32 v19, v19, v17')
        e('v_add_u32 v12, v18, v19')
        e('v_and_b32 v19, 0x80, v20'); e('v_add_u32 v20, v19, v20')
    else:
        e('v_add_u32 v12, v18, v17')
    d = 4 * rs - 1024
    e('v_add_u32 v13, v18, v20')
    e(f'v_add_u32 v13, {d}, v13')
    e(f'v_add_u32 v14, {2*d}, v12')
    e(f'v_add_u32 v15, {2*d}, v13')

def setup_load(e, dreg, tag):
    L = 'SL' + tag
    e(f's_bfe_u32 s4, {dreg}, {F_A}')
    e(f's_bfe_u32 s5, {dreg}, {F_B}')
    e(f's_bfe_u32 s20, {dreg}, 0x50007'); e('s_lshl_b32 s20, s20, 12')
    e('s_mov_b32 s18, s10')
    e('s_mov_b32 s40, 32')
    e(f's_and_b32 s3, {dreg}, 7')
    e(f's_cmp_eq_u32 s3, {T_VV}'); e(f's_cbranch_scc1 {L}_v')
    e(f's_cmp_eq_u32 s3, {T_FU}'); e(f's_cbranch_scc1 {L}_fu')
    e(f's_cmp_eq_u32 s3, {T_FD}'); e(f's_cbranch_scc1 {L}_fd')
    e(f's_cmp_eq_u32 s3, {T_WO}'); e(f's_cbranch_scc1 {L}_wo')
    e('s_cmp_eq_u32 s28, 0')
    e(f's_cselect_b32 s12, s{P_WQ}, s{P_WK}'); e(f's_cselect_b32 s13, s{P_WQ+1}, s{P_WK+1}')
    e(f's_mov_b32 s14, {8*MB}'); e(f's_mov_b32 s22, {32*8192}')
    e('s_lshl_b32 s21, s5, 8')
    w_voffsets(e, 8192, 0)
    e(f's_branch {L}_done')
    e.lab(L + '_v')
    e(f's_mov_b32 s12, s{P_WV}'); e(f's_mov_b32 s13, s{P_WV+1}')
    e(f's_mov_b32 s14, {8*MB}'); e(f's_mov_b32 s22, {32*8192}')
    e('s_lshl_b32 s21, s5, 9'); e('s_lshl_b32 s3, s28, 8'); e('s_add_u32 s21, s21, s3')
    w_voffsets(e, 8192, 0)
    e(f's_branch {L}_done')
    e.lab(L + '_fu')
    e('s_cmp_eq_u32 s28, 0')
    e(f's_cselect_b32 s12, s{P_W1}, s{P_W3}'); e(f's_cselect_b32 s13, s{P_W1+1}, s{P_W3+1}')
    e(f's_mov_b32 s14, {7*MB}'); e(f's_mov_b32 s22, {32*7168}')
    e('s_lshl_b32 s21, s5, 8')
    w_voffsets(e, 7168, 0)
    e(f's_branch {L}_done')
    e.lab(L + '_fd')
    e(f's_mov_b32 s12, s{P_W2}'); e(f's_mov_b32 s13, s{P_W2+1}')
    e(f's_mov_b32 s14, {7*MB}'); e(f's_mov_b32 s22, {32*2048}')
    e('s_lshl_b32 s21, s5, 9'); e('s_lshl_b32 s3, s28, 8'); e('s_add_u32 s21, s21, s3')
    e(f's_add_u32 s20, s20, {WS_H}')
    e('s_mov_b32 s40, 112')
    w_voffsets(e, 2048, 0)
    e(f's_branch {L}_done')
    e.lab(L + '_wo')
    e(f's_mov_b32 s12, s{P_WO}'); e(f's_mov_b32 s13, s{P_WO+1}')
    e(f's_mov_b32 s14, {8*MB}'); e(f's_mov_b32 s22, {32*2048}')
    e('s_lshl_b32 s21, s5, 9'); e('s_lshl_b32 s3, s28, 8'); e('s_add_u32 s21, s21, s3')
    e(f's_bfe_u32 s3, {dreg}, {F_K0}')
    e('s_lshl_b32 s4, s3, 19'); e('s_add_u32 s21, s21, s4')
    e('s_lshl_b32 s4, s3, 20'); e('s_add_u32 s20, s20, s4')
    e(f's_add_u32 s20, s20, {WS_O}')
    e(f's_bfe_u32 s40, {dreg}, {F_NK}'); e('s_add_u32 s40, s40, 1'); e('s_lshl_b32 s40, s40, 3')
    w_voffsets(e, 2048, 0)
    e.lab(L + '_done')

BOPT = dict(tstamp=0, wpf=0, deep=1, cw=1, go0=1)
def tstamp(e):
    if not BOPT['tstamp']: return
    e('s_memrealtime s[84:85]'); e('s_waitcnt lgkmcnt(0)')
    e('v_mov_b32 v18, s84'); e('v_mov_b32 v19, s30')
    e('s_mov_b64 exec, 1'); e('buffer_store_dwordx2 v[18:19], off, s[8:11], s86'); e('s_mov_b64 exec, -1')
    e('s_add_u32 s86, s86, 8')

def next_desc(e):
    tstamp(e)
    e('s_mov_b32 s30, s31')
    e('s_add_u32 s38, s38, 4'); e('s_addc_u32 s39, s39, 0')
    e('s_load_dword s31, s[38:39], 0')

def dep_wait(e):
    L = e.uniq('DW')
    e('s_cmp_lg_u32 s87, 0'); e(f's_cbranch_scc1 {L}_x')
    if BOPT['go0']:
        e('s_and_b32 s3, s30, 0xf47'); e(f's_cmp_gt_u32 s3, {0x40 + T_VV}'); e(f's_cbranch_scc1 {L}_all')
        e('s_bitcmp1_b32 s30, 6'); e(f's_cbranch_scc0 {L}_all')
        wait_counter(e, '0', 1, 'x0', 's[68:71]', 1, imm=D_XGO0)
        e(f's_branch {L}')
        e.lab(L + '_all')
    wait_counter(e, '0', 1, 'xn', 's[68:71]', 2, imm=D_XGO)
    e('s_mov_b32 s87, 1')
    e.lab(L + '_x')
    e('s_and_b32 s3, s30, 7')
    e(f's_cmp_lt_u32 s3, {T_FD}'); e(f's_cbranch_scc1 {L}')
    e(f's_bfe_u32 s7, s30, {F_A}')
    e(f's_cmp_eq_u32 s3, {T_FD}'); e(f's_cbranch_scc0 {L}_o')
    e('s_lshl_b32 s7, s7, 7'); e(f's_add_u32 s7, s7, {WS_CNT + C_FU*128}')
    wait_counter(e, 's7', 28, 'dep', slp=8)
    e(f's_branch {L}')
    e.lab(L + '_o')
    e('s_cmp_lg_u32 s27, 0'); e(f's_cbranch_scc1 {L}_b')
    e(f's_bfe_u32 s5, s30, {F_K0}'); e('s_lshl_b32 s5, s5, 8'); e(f's_add_u32 s5, s5, {WS_CNT + C_O*128}')
    e('s_lshr_b32 s3, s40, 2'); e('s_bfm_b64 exec, s3, 0')
    e('v_lshlrev_b32 v19, 3, v0'); e('s_mov_b32 s4, 0')
    e.lab(L + '_p')
    e('buffer_load_dword v18, v19, s[8:11], s5 offen sc1')
    e('s_add_u32 s4, s4, 1'); e(f's_cmp_gt_u32 s4, {SPIN_MAX}'); e('s_cbranch_scc1 L_abort')
    e('s_waitcnt vmcnt(0)')
    e('v_cmp_ge_u32 vcc, s7, v18')
    e(f's_cbranch_vccz {L}_q')
    e('v_cmp_gt_u32 vcc, s7, v18')
    e(f's_cbranch_vccz {L}_r')
    e('s_sleep 64')
    e.lab(L + '_r')
    e('s_sleep 3'); e(f's_branch {L}_p')
    e.lab(L + '_q')
    e('s_mov_b64 exec, -1')
    e.lab(L + '_b')
    e('s_barrier')
    e.lab(L)
    tstamp(e)

def gen_gemm(e, NJ):
    G = f'G{NJ}'
    S = 8 if (NJ == 2 and BOPT['deep']) else 4
    SL = 20480 if S == 8 else 32768
    WOFF = 4096 if S == 8 else 16384
    def wrap(r): return [f's_add_u32 {r}, {r}, {SL}', f's_and_b32 {r}, {r}, {RINGM}'] if S == 4 else [f's_add_u32 {r}, {r}, {SL}', f's_cmp_eq_u32 {r}, {S*SL}', f's_cselect_b32 {r}, 0, {r}']
    NX = NJ // 2
    ND = NX + 4
    NM = 4 * NJ
    def dmaX(i): return f'buffer_load_dwordx4 v11, s[16:19], s20 offen offset:{i*1024} sc1 lds'
    def dmaW(i): return f'buffer_load_dwordx4 v{12+i}, s[12:15], s21 offen offset:{i*1024} lds'
    preX = ['s_add_u32 m0, s24, s41']; postX = [f's_add_u32 s20, s20, {128*KB}']
    preW = ['s_add_u32 m0, s24, s42']
    postW = ['s_add_u32 s21, s21, s22'] + wrap('s24')
    def rw(half):
        r = []
        for i in range(4):
            b = wfrag(half, i)[1]
            r += [f'ds_read_b64_tr_b16 a[{b}:{b+1}], v{7+i} offset:{WOFF+half*8192}', f'ds_read_b64_tr_b16 a[{b+2}:{b+3}], v{7+i} offset:{WOFF+half*8192+4096}']
        return r
    def rx(st): return [f'ds_read_b128 {rr(xfrag(NJ,st,j))}, v6 offset:{j*1024}' for j in range(NJ)]
    adv = ['\n'.join(wrap('s25')), 'v_add_u32 v6, s25, v1'] + [f'v_add_u32 v{7+i}, s25, v{2+i}' for i in range(4)]
    def rdB(st):
        a = rw(0); b = rx(st); return a[:2] + b + a[2:]
    def phase(half, st, rd, pre, dmas, post, extra, first=False, head=()):
        fill = [[] for _ in range(NM)]
        rpg = {8: 1, 4: 2, 2: 3}[NJ]
        for n, x in enumerate(rd): fill[n // rpg].append(x)
        nr = -(-len(rd) // rpg)
        for n, x in enumerate(extra): fill[min(NM - 1, nr + n // rpg)].append(x)
        if NJ == 8: pos = (18, 22, 26, 30)
        elif NJ == 4: pos = (8, 10, 12, 14) if len(dmas) == 4 else (9, 13)
        else: pos = (3, 4, 5, 6) if len(dmas) == 4 else (5,)
        fill[pos[0] - 1] += pre
        for i, x in enumerate(dmas): fill[pos[i]].append(x)
        fill[NM - 1] += post
        e.many(head)
        k = 0
        for i in range(4):
            for j in range(NJ):
                ac = rr(acc(NJ, half * 4 + i, j))
                e(f'v_mfma_f32_16x16x32_bf16 {ac}, {rr(wfrag(half,i))}, {rr(xfrag(NJ,st,j))}, {"0" if first else ac}')
                e.many(fill[k]); k += 1
    DX = [dmaX(i) for i in range(NX)]; DW = [dmaW(i) for i in range(4)]
    e.lab(G + '_cold')
    e(f's_mul_i32 s41, s27, {NX*1024}')
    e('s_lshl_b32 s42, s27, 12'); e(f's_add_u32 s42, s42, {WOFF}')
    e('v_add_u32 v11, s41, v0')
    e(f's_mul_i32 s3, s28, {NJ*1024}')
    e('v_add_u32 v1, s3, v0')
    setup_load(e, 's30', G + 'c')
    e('s_mov_b32 s24, 0'); e('s_mov_b32 s25, 0')
    for t in range(S - 1):
        e.many(preW); e('s_nop 0'); e.many(DW); e.many(postW)
    dep_wait(e)
    for t in range(S):
        e(f's_add_u32 m0, s41, {t*SL}'); e('s_nop 0'); e.many(DX); e.many(postX)
    e('v_mov_b32 v6, v1')
    for i in range(4): e(f'v_mov_b32 v{7+i}, v{2+i}')
    e(f's_waitcnt vmcnt({NX})')
    e('s_barrier')
    e.many(rw(0) + rx(0))
    e.lab(G + '_task')
    e(f's_sub_u32 s32, s40, {S+1}')
    e('s_sub_u32 s33, s40, 1')
    e('s_cmp_lg_u32 s35, 0')
    e('s_cselect_b32 s43, 3, s32')
    bar = [f's_waitcnt lgkmcnt(0) vmcnt({ND*(S-2)})', 's_barrier']
    phase(0, 0, rw(1), preW, DW, postW, adv, first=True, head=['s_waitcnt lgkmcnt(0)'])
    if S == 8: e('s_cmp_eq_u32 s40, 8'); e('s_cselect_b32 s14, 0, s14'); e('s_cselect_b32 s18, 0, s18')
    e.many(bar)
    phase(1, 0, rdB(1), preX, DX, postX, [], first=True)
    phase(0, 1, rw(1), preW, DW, postW + ['s_mov_b32 s26, 1'], adv, head=['s_waitcnt lgkmcnt(0)'])
    e.raw('.p2align 6')
    e.lab(G + '_loop')
    e.many(bar)
    phase(1, 1, rdB(0), preX, DX, postX + ['s_cmp_eq_u32 s26, s33'], [])
    e(f's_cbranch_scc1 {G}_epi')
    phase(0, 0, rw(1), preW, DW, postW + ['s_cmp_eq_u32 s26, s43'], adv, head=['s_waitcnt lgkmcnt(0)'])
    e(f's_cbranch_scc1 {G}_event')
    e.lab(G + '_back')
    e.many(bar)
    phase(1, 0, rdB(1), preX, DX, postX, [])
    phase(0, 1, rw(1), preW, DW, postW + ['s_add_u32 s26, s26, 2'], adv, head=['s_waitcnt lgkmcnt(0)'])
    e(f's_branch {G}_loop')
    e.lab(G + '_event')
    e('s_cmp_eq_u32 s26, s32')
    e(f's_cbranch_scc1 {G}_switch')
    signal(e)
    e('s_mov_b32 s43, s32')
    e(f's_branch {G}_back')
    e.lab(G + '_switch')
    e('s_bitcmp1_b32 s31, 4')
    e(f's_cbranch_scc1 {G}_sw1')
    e('s_mov_b32 s14, 0'); e('s_mov_b32 s18, 0')
    e(f's_branch {G}_back')
    e.lab(G + '_sw1')
    setup_load(e, 's31', G + 's')
    e(f's_branch {G}_back')
    e.lab(G + '_epi')
    e(f's_bfe_u32 s4, s30, {F_A}')
    e(f's_bfe_u32 s5, s30, {F_B}')
    e('s_bfe_u32 s6, s30, 0x50007'); e('s_lshl_b32 s6, s6, 2')
    e(f's_mul_i32 s3, s28, {NJ}')
    e('s_add_u32 s6, s6, s3')
    e('s_lshl_b32 s35, s4, 7')
    e(f's_add_u32 s35, s35, {WS_CNT}')
    e('s_mov_b32 s37, 1')
    e('s_and_b32 s3, s30, 7')
    if NJ == 8:
        e(f's_cmp_eq_u32 s3, {T_FU}'); e(f's_cbranch_scc1 {G}_fu')
    else:
        e(f's_cmp_ge_u32 s3, {T_FD}'); e(f's_cbranch_scc1 {G}_fd')
    def pack(m, j):
        a0 = acc(NJ, 2 * m, j); a1 = acc(NJ, 2 * m + 1, j)
        R0 = a0[1]
        if a1[0] == 'a':
            R1 = 20 + 4 * (j & 1)
            for q in range(4): e(f'v_accvgpr_read_b32 v{R1+q}, a{a1[1]+q}')
        else: R1 = a1[1]
        e(f'v_cvt_pk_bf16_f32 v{R0}, v{R0}, v{R0+1}')
        e(f'v_cvt_pk_bf16_f32 v{R0+1}, v{R0+2}, v{R0+3}')
        e(f'v_cvt_pk_bf16_f32 v{R0+2}, v{R1}, v{R1+1}')
        e(f'v_cvt_pk_bf16_f32 v{R0+3}, v{R1+2}, v{R1+3}')
        return R0
    def sig2(base):
        e(f's_add_u32 s35, s35, {base*128}')
        if NJ == 8: e('s_add_u32 s36, s35, 128')
        else: e('s_mov_b32 s36, 0')
    sig2(C_KV)
    if NJ > 2: e('s_mov_b32 s37, 2')
    e('s_lshr_b32 s6, s6, 1'); e(f's_mul_i32 s6, s6, {24*KB}')
    e(f's_mul_i32 s5, s5, {1536*KB}'); e('s_add_u32 s6, s6, s5')
    e(f's_add_u32 s5, s5, {16*KB}')
    e(f's_cmp_eq_u32 s3, {T_VV}')
    e('s_cselect_b32 s5, s5, 0')
    e(f's_mov_b32 s7, {8*KB}'); e(f's_cmov_b32 s7, {1536*KB}')
    e('s_add_u32 s6, s6, s5')
    e('s_lshl_b32 s3, s29, 11'); e('s_add_u32 s6, s6, s3')
    e(f's_add_u32 s6, s6, {WS_QKV}')
    for m in range(4):
        if m == 2: e('s_add_u32 s6, s6, s7')
        for j in range(NJ):
            R = pack(m, j)
            e(f's_add_u32 s3, s6, {(j>>1)*24*KB + (j&1)*4096}')
            e(f'buffer_store_dwordx4 v[{R}:{R+3}], v0, s[8:11], s3 offen offset:{(m&1)*1024} sc1')
    e.lab(G + '_done')
    e('s_bitcmp1_b32 s31, 4')
    e('s_cbranch_scc0 L_drain')
    next_desc(e)
    e(f's_branch {G}_task')
    if NJ == 8:
        e.lab(G + '_fu')
        sig2(C_FU)
        e('s_lshl_b32 s5, s5, 2'); e('s_lshl_b32 s3, s29, 1'); e('s_add_u32 s5, s5, s3')
        e('s_lshl_b32 s5, s5, 17'); e('s_lshl_b32 s6, s6, 10'); e('s_add_u32 s6, s6, s5')
        e(f's_add_u32 s6, s6, {WS_H}')
        e('s_mov_b32 s7, 0xbfb8aa3b')
        for m in range(2):
            for j in range(NJ):
                for ii in range(2):
                    i = 2 * m + ii
                    g = acc(NJ, i, j)[1]; ua = acc(NJ, i + 4, j)
                    if ua[0] == 'a':
                        u = 28
                        for q in range(4): e(f'v_accvgpr_read_b32 v{u+q}, a{ua[1]+q}')
                    else: u = ua[1]
                    T = 20 + 4 * ii
                    for q in range(4): e(f'v_mul_f32 v{T+q}, s7, v{g+q}')
                    for q in range(4): e(f'v_exp_f32 v{T+q}, v{T+q}')
                    for q in range(0, 4, 2): e(f'v_pk_mul_f32 v[{g+q}:{g+q+1}], v[{g+q}:{g+q+1}], v[{u+q}:{u+q+1}]')
                    for q in range(4): e(f'v_add_f32 v{T+q}, 1.0, v{T+q}')
                    for q in range(4): e(f'v_rcp_f32 v{T+q}, v{T+q}')
                for ii in range(2):
                    g = acc(NJ, 2 * m + ii, j)[1]; T = 20 + 4 * ii
                    for q in range(0, 4, 2): e(f'v_pk_mul_f32 v[{g+q}:{g+q+1}], v[{g+q}:{g+q+1}], v[{T+q}:{T+q+1}]')
                R = pack(m, j)
                if j % 4 == 0: e(f's_add_u32 s3, s6, {m*128*KB + j*1024}')
                e(f'buffer_store_dwordx4 v[{R}:{R+3}], v0, s[8:11], s3 offen offset:{(j&3)*1024} sc1')
        e(f's_branch {G}_done')
    else:
        e.lab(G + '_fd')
        e('s_lshl_b32 s35, s4, 2'); e('s_add_u32 s35, s35, s5'); e('s_lshl_b32 s35, s35, 7'); e(f's_add_u32 s35, s35, {WS_CNT + C_Y*128}')
        e('s_mov_b32 s36, 0'); e(f's_mov_b32 s37, {NJ//2}')
        e('s_lshl_b32 s6, s6, 15')
        e('s_lshl_b32 s5, s5, 9'); e('s_add_u32 s6, s6, s5')
        e('s_lshl_b32 s5, s29, 7'); e('s_add_u32 s6, s6, s5')
        e('v_lshrrev_b32 v20, 4, v0')
        e('v_and_b32 v21, 15, v20'); e('v_lshlrev_b32 v21, 11, v21')
        e('v_bfe_u32 v22, v20, 4, 1'); e('v_lshl_add_u32 v21, v22, 5, v21')
        e('v_lshrrev_b32 v22, 5, v20'); e('v_lshl_add_u32 v21, v22, 4, v21')
        srd(e, 44, P_X, 4 * MB); srd(e, 48, P_WS, WS_SIZE)
        e('s_mov_b32 s7, s6')
        e(f's_bfe_u32 s5, s30, {F_P}'); e('s_lshl_b32 s5, s5, 22'); e(f's_add_u32 s5, s5, {WS_Y}')
        e(f's_cmp_eq_u32 s3, {T_FD}'); e(f's_cbranch_scc1 {G}_fd2')
        e('s_mov_b32 s46, 0')
        e('s_bitcmp1_b32 s30, 5'); e(f's_cbranch_scc0 {G}_fd2')
        wait_counter(e, 's35', 2, 'y0')
        srd(e, 44, P_WS, WS_SIZE); srd(e, 48, P_OUT, 4 * MB)
        e(f's_add_u32 s7, s6, {WS_Y}'); e('s_mov_b32 s5, 0')
        e.lab(G + '_fd2')
        e('s_add_u32 s6, s6, s5')
        for j in range(NJ):
            e(f's_add_u32 s3, s7, {j*32768}')
            for ip in range(4):
                Y = 160 + 4 * (j * 4 + ip)
                e(f'buffer_load_dwordx4 v[{Y}:{Y+3}], v21, s[44:47], s3 offen offset:{(ip>>1)*256+(ip&1)*64} sc1')
        for j in range(NJ):
            for ip in range(4):
                R0 = acc(NJ, 2 * ip, j)[1]; R1 = acc(NJ, 2 * ip + 1, j)[1]
                for q in range(4): e(f'v_permlane16_swap_b32 v{R0+q}, v{R1+q}')
        for j in range(NJ):
            e(f's_add_u32 s3, s6, {j*32768}')
            e(f's_waitcnt vmcnt({4*NJ-4})')
            for ip in range(4):
                R0 = acc(NJ, 2 * ip, j)[1]; R1 = acc(NJ, 2 * ip + 1, j)[1]; Y = 160 + 4 * (j * 4 + ip)
                for q in range(4):
                    R = (R0, R0 + 2, R1, R1 + 2)[q]
                    e(f'v_lshlrev_b32 v22, 16, v{Y+q}'); e(f'v_and_b32 v23, 0xffff0000, v{Y+q}')
                    e(f'v_pk_add_f32 v[22:23], v[22:23], v[{R}:{R+1}]')
                    e(f'v_cvt_pk_bf16_f32 v{Y+q}, v22, v23')
                e(f'buffer_store_dwordx4 v[{Y}:{Y+3}], v21, s[48:51], s3 offen offset:{(ip>>1)*256+(ip&1)*64} sc1')
        e(f's_branch {G}_done')

def gen_fin(e):
    e.lab('L_fin')
    e(f's_bfe_u32 s4, s30, {F_A}'); e(f's_bfe_u32 s5, s30, {F_B}'); e(f's_bfe_u32 s33, s30, {F_K0}')
    e('s_lshl_b32 s6, s4, 18'); e('s_lshl_b32 s5, s5, 14'); e('s_add_u32 s6, s6, s5')
    e('s_lshl_b32 s5, s27, 12'); e('s_add_u32 s6, s6, s5'); e('s_lshl_b32 s5, s33, 9'); e('s_add_u32 s6, s6, s5')
    e('v_and_b32 v20, 0x200, v0'); e('v_mul_u32_u24 v20, 3, v20'); e('v_add_u32 v20, v20, v0')
    e(f's_bfe_u32 s40, s30, {F_P}')
    e('s_lshl_b32 s7, s4, 2'); e('s_add_u32 s7, s7, s33'); e('s_lshl_b32 s7, s7, 7'); e(f's_add_u32 s7, s7, {WS_CNT + C_Y*128}')
    e('s_lshl_b32 s41, s40, 1')
    wait_counter(e, 's7', 's41', 'fin', slp=2)
    srd(e, 48, P_OUT, 4 * MB)
    e(f's_bfe_u32 s26, s30, {F_NK}')
    e.lab('FIN_u')
    e(f's_add_u32 s7, s6, {WS_Y}')
    for k in range(17):
        e(f's_cmp_gt_u32 s40, {k}'); e('s_cselect_b32 s18, s10, 0')
        e(f'buffer_load_dwordx4 v[{64+4*k}:{67+4*k}], v20, s[16:19], s7 offen sc1')
        e(f's_add_u32 s7, s7, {4*MB}')
    for k in range(17):
        e(f's_waitcnt vmcnt({16-k})')
        for d in range(4):
            R = 64 + 4 * k + d
            if k == 0: e(f'v_lshlrev_b32 v{32+2*d}, 16, v{R}'); e(f'v_and_b32 v{33+2*d}, 0xffff0000, v{R}')
            else:
                e(f'v_lshlrev_b32 v22, 16, v{R}'); e(f'v_and_b32 v23, 0xffff0000, v{R}')
                e(f'v_pk_add_f32 v[{32+2*d}:{33+2*d}], v[{32+2*d}:{33+2*d}], v[22:23]')
    for d in range(4): e(f'v_cvt_pk_bf16_f32 v{40+d}, v{32+2*d}, v{33+2*d}')
    e('buffer_store_dwordx4 v[40:43], v20, s[48:51], s6 offen')
    e(f's_add_u32 s6, s6, {16*KB}')
    e('s_sub_u32 s26, s26, 1'); e('s_cbranch_scc0 FIN_u')
    e('s_branch L_sched')

def gen_sched(e):
    e.lab('L_drain')
    e('s_waitcnt vmcnt(0) lgkmcnt(0)')
    e('s_barrier')
    signal(e)
    e.lab('L_sched')
    e('s_waitcnt lgkmcnt(0)')
    next_desc(e)
    e('s_and_b32 s3, s30, 7')
    e(f's_cmp_eq_u32 s3, {T_END}'); e('s_cbranch_scc1 L_exit')
    e(f's_cmp_eq_u32 s3, {T_FIN}'); e('s_cbranch_scc1 L_fin')
    e('s_bitcmp1_b32 s30, 3')
    e('s_cbranch_scc1 G4_cold')
    e('s_bitcmp1_b32 s30, 6')
    e('s_cbranch_scc1 G2_cold')
    e('s_branch G8_cold')
```

```python
from common import *
from k_bulk import w_voffsets, wait_counter, P_X, P_WQ, P_WK, P_WV, P_WO, SPIN_MAX
MEMB = 128 * KB
KVB = 144 * KB
MB_ = MEMB + 4096
NSTEP = 64
SMF = 'v_smfmac_f32_16x16x64_bf16'
MF = 'v_mfma_f32_16x16x32_bf16'
MF16 = 'v_mfma_f32_16x16x16_bf16'
CSC = 0x3e0293ee
OPT = dict(stamp=0, sleepL=0, sleepF=0, vmpos=61, flagpos=6, rfirst=0, vwarm=0, vm2=0, p2=0, vdir=48, qlds=0, lgap=8, vmlate=1, rpf=48, warm1=0, warm2=0, f3pos=5, oend=0, wnt=0, par=-1, fs=2, pp=4, dlyL=16, dlyR=32, dlyF=0, f2pos=8, lfirst=1, ahead=6, pace=8, st2=0)

class Seq:
    def __init__(s, e): s.e = e; s.l = []; s.v = []; s.ld = 0; s.vd = 0
    def L(s, ins, tag=None): s.e(ins); s.l.append(tag)
    def V(s, ins, tag=None): s.e(ins); s.v.append(tag)
    def need(s, ltag=None, vtag=None):
        w = []
        if ltag is not None:
            i = len(s.l) - s.l[::-1].index(ltag)
            if i > s.ld: n = min(15, len(s.l) - i); w.append(f'lgkmcnt({n})'); s.ld = len(s.l) - n
        if vtag is not None:
            i = len(s.v) - s.v[::-1].index(vtag)
            if i > s.vd: n = min(63, len(s.v) - i); w.append(f'vmcnt({n})'); s.vd = len(s.v) - n
        if w: s.e('s_waitcnt ' + ' '.join(w))
    def emit(s, items):
        for it in items:
            if it[0] == 'L': s.L(it[1], it[2])
            elif it[0] == 'V': s.V(it[1], it[2] if len(it) > 2 else None)
            elif it[0] == 'NL': s.need(ltag=it[1])
            elif it[0] == 'NV': s.need(vtag=it[1])
            elif it[0] == 'LAB': s.e.lab(it[1])
            else: s.e(it[1])

def wreg(rb): return f'a[{8*rb}:{8*rb+7}]' if rb < 32 else f'v[{128+8*(rb-32)}:{128+8*(rb-32)+7}]'
def wreg2(rb, o): return (f'a[{8*rb+o}:{8*rb+o+1}]' if rb < 32 else f'v[{128+8*(rb-32)+o}:{128+8*(rb-32)+o+1}]')

SREG = [84, 86, 88, 90, 92, 94, 96, 56, 58, 60, 62, 64, 66]
def stamp_ins(slot):
    r = SREG[slot]
    return f's_memrealtime s[{r}:{r+1}]' if OPT['stamp'] == 2 else f's_memtime s[{r}:{r+1}]'
def stamp(e, slot):
    if OPT['stamp'] in (1, 2): e(stamp_ins(slot))
def stamp_flush(e):
    if OPT['stamp'] not in (1, 2): return
    e('s_waitcnt lgkmcnt(0)')
    for k, r in enumerate(SREG + [99]): e(f'v_writelane_b32 v21, s{r}, {k}')
    e('v_lshrrev_b32 v20, 2, v0')
    e('s_mov_b64 exec, 0x3fff')
    e('buffer_store_dword v21, v20, s[8:11], s98 offen')
    e('s_mov_b64 exec, -1')
    e('s_add_u32 s98, s98, 256')

def ldx4(r, vo, so, imm): return f'buffer_load_dwordx4 v[{r}:{r+3}], {vo}, s[8:11], {so} offen offset:{imm} sc1'

def check(e, regs):
    if len(regs) == 4:
        e(f'v_max3_u32 v14, v{regs[0]}, v{regs[1]}, v{regs[2]}'); e(f'v_max_u32 v14, v14, v{regs[3]}')
    else:
        e(f'v_max3_u32 v14, v{regs[0]}, v{regs[1]}, v{regs[2]}')
        e(f'v_max3_u32 v15, v{regs[3]}, v{regs[4]}, v{regs[5]}')
        i = 6; t = 14
        while i + 1 < len(regs):
            e(f'v_max3_u32 v{t}, v{t}, v{regs[i]}, v{regs[i+1]}'); i += 2; t = 29 - t
        e('v_max_u32 v14, v14, v15')
    e(f'v_cmp_eq_u32 vcc, {hex(SENT)}, v14')

DEFER = []
def poll(e, items, tag, sleep=0, issued=False, mid=(), first=0, cnt=False):
    L = e.uniq('P' + tag)
    if not issued:
        for it in items: e(ldx4(*it))
    e(f's_waitcnt vmcnt({first})')
    e.lab(L)
    check(e, [it[0] + k for it in items for k in range(4)])
    e.many(mid)
    e(f's_cbranch_vccnz {L}_re')
    r = [f'{L}_re:', 's_add_u32 s40, s40, 1', f's_cmp_gt_u32 s40, {SPIN_MAX}', 's_cbranch_scc1 L_abort']
    if sleep: r.append(f's_sleep {sleep}')
    if cnt and OPT['stamp']: r.append(f's_add_u32 s99, s99, {(0, 0x10000, 0x1000000, 1)[cnt]}')
    r += ['s_mov_b64 exec, vcc'] + [ldx4(*it) for it in items] + ['s_mov_b64 exec, -1', 's_waitcnt vmcnt(0)', f's_branch {L}']
    DEFER.append(r)
def flush_defer(e):
    for r in DEFER:
        e.raw(r[0])
        for x in r[1:]:
            if x.endswith(':'): e.raw(x)
            else: e(x)
    DEFER.clear()

LOC = [1]
def local_store(e, ins):
    for x in ins: e(x + (' sc1' if x.startswith('buffer') and not LOC[0] else ''))

def common_init(e):
    e('s_and_b32 s30, s34, 15'); e('s_lshl_b32 s3, s33, 4'); e('s_add_u32 s30, s30, s3')
    e('v_and_b32 v30, 63, v0')
    e('v_lshlrev_b32 v0, 4, v30')
    e('v_lshrrev_b32 v19, 4, v30')
    e('s_lshl_b32 s3, s29, 4')
    e('v_add_u32 v16, s3, v19')
    e('v_bfe_u32 v20, v30, 1, 3'); e('v_xor_b32 v20, v20, v19')
    e('v_and_b32 v21, 1, v30'); e('v_lshlrev_b32 v21, 4, v21')
    e('v_lshl_add_u32 v17, v20, 5, v21')
    e('s_mov_b32 s15, 0x20000'); e(f's_mov_b32 s14, {8*MB}')
    e('v_lshrrev_b32 v29, 2, v30'); e('v_and_b32 v28, 7, v29'); e('v_lshlrev_b32 v29, 8, v29')
    e('v_and_b32 v21, 3, v30'); e('v_lshl_add_u32 v29, v21, 3, v29')
    e('s_lshl_b32 s41, s27, 12')

ROTLD = f'buffer_load_dword v31, off, s[68:71], 0 offset:{D_ROT} sc1'
def census(e):
    verify_rot(e, issued=True)
    e('s_getreg_b32 s47, hwreg(HW_REG_XCC_ID, 0, 3)'); e('s_lshl_b32 s47, s47, 3')
    e('s_lshl_b64 s[4:5], 1, s47')
    e('v_mov_b32 v18, s4'); e('v_mov_b32 v19, s5'); e('s_lshl_b32 s3, s33, 3')
    e('s_cmp_eq_u32 s27, 0'); e('s_cselect_b32 s4, 1, 0'); e('s_mov_b32 s5, 0')
    e('s_mov_b64 exec, s[4:5]')
    e(f'buffer_atomic_add_x2 v[18:19], off, s[68:71], s3 offset:{D_CH} sc1')
    e('s_mov_b64 exec, -1')

def common_regs(e):
    e('v_and_b32 v18, 8, v30'); e('v_cmp_eq_u32 vcc, 0, v18')
    e('v_mov_b32 v1, 0xeeee'); e('v_mov_b32 v18, 0x4444')
    e('v_cndmask_b32 v1, v1, v18, vcc')
    e(f's_add_u32 s3, s41, {MEMB}'); e('v_add_u32 v5, s3, v0')
    e('s_mov_b32 s51, 0x3f80'); e('s_mov_b32 s52, 0x3f800000')
    e('s_lshl_b32 s53, s33, 11'); e(f's_add_u32 s53, s53, {ST_FL}')
    e('s_cmp_eq_u32 s27, 3'); e('s_cselect_b32 s20, 1, 0'); e('s_mov_b32 s21, 0')
    e('s_mov_b32 s31, 0')
    e(f's_mov_b32 s32, {WS_STEP}'); e(f's_mov_b32 s25, {WS_STEP + 3*STEP_SZ}'); e(f's_mov_b32 s26, {WS_STEP + STEP_SZ}')
    e('s_lshl_b32 s3, s33, 14'); e('s_add_u32 s48, s3, s41'); e(f's_xor_b32 s49, s48, {16*KB}')
    e('s_and_b32 s3, s49, 0x6000'); e('s_add_u32 s49, s49, s3')
    e(f's_add_u32 s48, s48, {ST_PL}')
    e('s_lshl_b32 s50, s30, 11')
    e('s_lshl_b32 s22, s33, 11'); e(f's_add_u32 s22, s22, {ST_F2}')
    if OPT['stamp']:
        e('s_lshl_b32 s98, s2, 14'); e('s_lshl_b32 s3, s27, 6'); e('s_add_u32 s98, s98, s3'); e(f's_add_u32 s98, s98, {WS_DBG}'); e('s_mov_b32 s99, 0')

def handshake(e, code0, code1):
    L = e.uniq('HS')
    e('s_getpc_b64 s[4:5]')
    e.lab(L + '_pc')
    e(f's_add_u32 s4, s4, {code0}-{L}_pc'); e('s_addc_u32 s5, s5, 0')
    e('v_lshlrev_b32 v18, 2, v0'); e('v_add_u32 v18, s41, v18')
    e(f'v_min_u32 v18, {code1}-{code0}-4, v18')
    e('global_load_dword v19, v18, s[4:5]')
    e('s_mov_b32 s40, 0'); e('s_lshl_b32 s7, s33, 3')
    e.lab(L)
    e(f'buffer_load_dwordx2 v[20:21], off, s[68:71], s7 offset:{D_CH} sc1')
    e(f'buffer_load_dwordx2 v[22:23], off, s[68:71], 0 offset:{D_PAR} sc1')
    e('s_add_u32 s40, s40, 1'); e(f's_cmp_gt_u32 s40, {SPIN_MAX}'); e('s_cbranch_scc1 L_abort')
    e('s_waitcnt vmcnt(0)')
    e('v_readfirstlane_b32 s4, v20'); e('v_readfirstlane_b32 s5, v21'); e('v_readfirstlane_b32 s6, v22'); e('v_readfirstlane_b32 s3, v23')
    e('s_cmp_eq_u32 s3, 0'); e(f's_cbranch_scc1 {L}_s')
    e('s_cmp_eq_u32 s6, 0'); e(f's_cbranch_scc1 {L}_s')
    e('s_add_u32 s3, s4, s5'); e('s_mul_i32 s3, s3, 0x01010101'); e('s_lshr_b32 s3, s3, 24')
    e('s_cmp_eq_u32 s3, 32'); e(f's_cbranch_scc1 {L}_ok')
    e.lab(L + '_s')
    e('s_sleep 4'); e(f's_branch {L}')
    e.lab(L + '_ok')
    e('s_lshr_b64 s[4:5], s[4:5], s47'); e('s_and_b32 s4, s4, 0xff')
    e('s_cmp_eq_u32 s4, 32'); e('s_cselect_b32 s37, 1, 0')
    e('s_and_b32 s6, s6, 1'); e('s_lshl_b32 s6, s6, 13')
    if OPT['par'] >= 0: e(f's_mov_b32 s6, {OPT["par"]*8192}')
    e('s_add_u32 s49, s49, s6')
    e('s_xor_b32 s45, s33, 1'); e('s_lshl_b32 s45, s45, 7'); e('s_add_u32 s45, s45, s6'); e(f's_add_u32 s45, s45, {ST_F3}'); e('s_sub_u32 s45, s45, s22')

def probe(e, vaddr, so, tag, mask=None, sleep=0):
    L = e.uniq('Q' + tag)
    e('s_cmp_lg_u32 s27, 3'); e(f's_cbranch_scc1 {L}_w')
    if mask is not None: e(f's_mov_b64 exec, {mask}')
    if OPT['pp']:
        N = OPT['pp']; regs = [14, 32, 33, 34, 35, 36][:N]
        for r in regs[:-1]:
            e(f'buffer_load_dword v{r}, {vaddr}, s[8:11], {so} offen sc1'); e(f's_nop {min(15, 60 // N)}')
        e.lab(L)
        for k in range(N):
            e(f'buffer_load_dword v{regs[k-1]}, {vaddr}, s[8:11], {so} offen sc1')
            e(f's_waitcnt vmcnt({N-1})')
            e(f'v_cmp_eq_u32 vcc, {hex(SENT)}, v{regs[k]}')
            e(f's_cbranch_vccz {L}_ok')
        e('s_add_u32 s40, s40, 1'); e(f's_cmp_gt_u32 s40, {SPIN_MAX}'); e('s_cbranch_scc1 L_abort')
        e(f's_branch {L}')
        e.lab(L + '_ok')
    else:
        e.lab(L)
        if sleep: e(f's_sleep {sleep}')
        e(f'buffer_load_dword v14, {vaddr}, s[8:11], {so} offen sc1')
        e('s_add_u32 s40, s40, 1'); e(f's_cmp_gt_u32 s40, {SPIN_MAX}'); e('s_cbranch_scc1 L_abort')
        e('s_waitcnt vmcnt(0)')
        e(f'v_cmp_eq_u32 vcc, {hex(SENT)}, v14')
        e(f's_cbranch_vccnz {L}')
    if mask is not None: e('s_mov_b64 exec, -1')
    e.lab(L + '_w')
    e('s_barrier')

def gather_mem(e, q, extra=(), isP=True):
    e('s_add_u32 s42, s32, s48'); e('s_add_u32 s43, s32, s49')
    e('v_lshrrev_b32 v15, 2, v0' if OPT['fs'] == 2 else f'v_lshlrev_b32 v15, {OPT["fs"]-4}, v0')
    e('s_add_u32 s3, s32, s22')
    if OPT['f3pos'] >= 0: e('v_writelane_b32 v15, s45, 16')
    stamp(e, 0)
    direct = (not isP) and OPT['vdir'] >= 0
    if not direct: probe(e, 'v15', 's3', 'l', '0x1ffff' if OPT['f3pos'] >= 0 else '0xffff', sleep=OPT['sleepL'])
    dL = OPT['dlyL'] if isP else max(0, OPT['vdir']); dR = OPT['dlyR'] if isP else 8
    for k in range(dL // 16): e('s_nop 15')
    if dL % 16: e(f's_nop {dL % 16}')
    stamp(e, 1)
    rf = 2 if direct else OPT['rfirst']
    if rf:
        R = [(96 + 4 * p, 'v0', 's43', p * 1024) for p in range(4)]
        Lc = [(48 + 4 * p, 'v0', 's42', p * 1024) for p in range(4)]
        for it in R: e(ldx4(*it))
        if rf == 1: e('s_waitcnt vmcnt(3)')
        first, second, c1, c2 = R, Lc, 1, 2
    else:
        Lc = [(96 + 4 * p, 'v0', 's42', p * 1024) for p in range(4)]
        R = [(48 + 4 * p, 'v0', 's43', p * 1024) for p in range(4)]
        for it in Lc: e(ldx4(*it))
        first, second, c1, c2 = Lc, R, 2, 1
    if rf != 1:
        for k in range(dR // 16): e('s_nop 15')
        if dR % 16: e(f's_nop {dR % 16}')
    for it in second: e(ldx4(*it))
    nx = len(extra)
    G = e.uniq('GA')
    poll(e, first, 'a', issued=True, first=4, cnt=c1)
    unp = []
    for d in range(16): unp += [f'v_lshlrev_b32 v{80+2*d}, 16, v{96+d}', f'v_and_b32 v{81+2*d}, 0xffff0000, v{96+d}']
    e.many(unp)
    e.many(extra)
    e.lab(G + '_u')
    e.raw('.p2align 3')
    def cv(p):
        for k in range(4): e(f'v_cvt_pk_bf16_f32 v{32+4*p+k}, v{80+8*p+2*k}, v{81+8*p+2*k}')
        q.L(f'ds_write_b128 v5, v[{32+4*p}:{35+4*p}] offset:{p*1024}', 'AW')
    for p in range(4):
        e(f's_waitcnt vmcnt({3 - p + nx})'); e('s_nop 0')
        if p == 3: stamp(e, 2)
        for k in range(4):
            d = 4 * p + k
            e(f'v_dot2_f32_bf16 v{80+2*d}, v{48+d}, s51, v{80+2*d}'); e(f'v_dot2_f32_bf16 v{81+2*d}, v{48+d}, s52, v{81+2*d}')
        R = 48 + 4 * p
        e(f'v_max3_u32 v14, v{R}, v{R+1}, v{R+1 if p == 0 else 14}'); e(f'v_max3_u32 v14, v{R+2}, v{R+3}, v14')
        if p == 3: e(f'v_cmp_eq_u32 vcc, {hex(SENT)}, v14')
        cv(p)
    e(f's_cbranch_vccnz {G}_re')
    e2 = E(); e2.n = e.n + 1000
    if OPT['stamp']: e2(f's_add_u32 s99, s99, {(0, 0x10000, 0x1000000)[c2]}')
    for it in first: e2(ldx4(*it))
    poll(e2, second, 'b', issued=True)
    e2.many(unp)
    e2(f's_branch {G}_u')
    DEFER.append([f'{G}_re:'] + [x for x in e2.L])

def softmax(e, pv, nt, D, hook=None, out=None):
    e('v_max3_f32 v21, v21, v16, v17'); e('v_max3_f32 v20, v20, v18, v19'); e('v_max_f32 v20, v20, v21')
    def cross(op):
        r = []
        for sw in ('v_permlane32_swap_b32', 'v_permlane16_swap_b32'):
            r += ['v_mov_b32 v21, v20', 's_nop 1', f'{sw} v20, v21', f'{op} v20, v20, v21']
        return r
    e.many(cross('v_max_f32'))
    if hook: hook(3)
    S = [24, 25, 26, 27, 28, 29, 30, 31, 16, 17, 18, 19]
    for r in S[::2]: e(f'v_pk_add_f32 v[{r}:{r+1}], v[{r}:{r+1}], v[20:21] op_sel_hi:[1,0] neg_lo:[0,1] neg_hi:[0,1]')
    for r in S[::2]: e(f'v_pk_mul_f32 v[{r}:{r+1}], v[{r}:{r+1}], s[100:101]')
    if hook: hook(4)
    for r in S: e(f'v_exp_f32 v{r}, v{r}')
    if hook: hook(5)
    e('v_pk_add_f32 v[20:21], v[24:25], v[26:27]'); e('v_pk_add_f32 v[22:23], v[28:29], v[30:31]')
    for d in range(4): e(f'v_cvt_pk_bf16_f32 v{24+d}, v{24+2*d}, v{25+2*d}')
    e('v_pk_add_f32 v[20:21], v[20:21], v[16:17]'); e('v_pk_add_f32 v[22:23], v[22:23], v[18:19]')
    for d in range(2): e(f'v_cvt_pk_bf16_f32 v{16+d}, v{16+2*d}, v{17+2*d}')
    rest = ['v_pk_add_f32 v[20:21], v[20:21], v[22:23]', 'v_add_f32 v20, v20, v21'] + cross('v_add_f32') + ['v_rcp_f32 v20, v20']
    k = 0
    for i, m in enumerate(pv):
        e(m)
        if hook and i == 0: hook(6)
        if hook and i == 2: hook(7)
        if i < len(pv) - 1 and k < 2: e(rest[k]); k += 1
    e.many(rest[k:])
    e('s_nop 0')
    for r in range(D, D + 4 * nt, 2): e(f'v_pk_mul_f32 v[{r}:{r+1}], v[{r}:{r+1}], v[20:21] op_sel_hi:[1,0]')
    for pr in range(nt // 2):
        for d in range(4): e(f'v_cvt_pk_bf16_f32 v{(D+8*pr if out is None else out+4*pr)+d}, v{D+8*pr+2*d}, v{D+8*pr+2*d+1}')

def gen_P(e):
    e.lab('L_chainP')
    if OPT['stamp'] == 3: e('s_memrealtime s[90:91]')
    common_init(e)
    e('s_cmp_eq_u32 s28, 0')
    e(f's_cselect_b32 s12, s{P_WQ}, s{P_WK}'); e(f's_cselect_b32 s13, s{P_WQ+1}, s{P_WK+1}')
    w_voffsets(e, 8192, 0)
    e('s_lshl_b32 s21, s30, 8')
    e('s_lshl_b32 s3, s27, 1'); e('v_xor_b32 v18, s3, v28')
    e('s_lshl_b32 s3, s27, 15'); e('v_add_u32 v19, s3, v29')
    e('v_lshl_add_u32 v2, v18, 5, v19'); e('v_xor_b32 v3, 32, v2')
    def load(n):
        tau, hf = n >> 1, n & 1
        for Q in range(4):
            e(f's_add_u32 m0, s41, {Q*32768 + hf*16384}')
            e(f's_add_u32 s20, s21, {((4*Q+tau)*64 + 32*hf)*8192}')
            for i in range(4): e(f'buffer_load_dwordx4 v{12+i}, s[12:15], s20 offen offset:{i*1024}{OPT["wnt"]*" nt"} lds')
    rot = lambda r: [f'v_add_u32 v{r}, 0x8000, v{r}', f'v_and_b32 v{r}, 0x1ffff, v{r}']
    load(0); load(1)
    for n in range(6):
        tau, hf = n >> 1, n & 1
        e('s_waitcnt vmcnt(16)')
        if n == 1: census(e)
        e('s_barrier')
        for q in range(4):
            for tl in range(4):
                for u in range(2):
                    e(f'ds_read_b64_tr_b16 {wreg2((q*3+tau)*4+tl, 4*hf+2*u)}, v{2+(tl&1)} offset:{hf*16384+(tl>>1)*8192+u*4096}')
            e.many(rot(2) + rot(3))
        e('s_waitcnt lgkmcnt(0)'); e('s_barrier')
        if n == 0: e(ROTLD)
        load(n + 2)
    e('s_waitcnt vmcnt(0)'); e('s_barrier')
    e('s_lshl_b32 s3, s27, 15'); e('v_add_u32 v4, s3, v0')
    for hf in range(2):
        for q in range(4):
            for tl in range(4):
                for u in range(2):
                    R = 64 + 4 * (4 * q + tl) + 2 * u
                    e(f'ds_read_b64_tr_b16 v[{R}:{R+1}], v{2+(tl&1)} offset:{hf*16384+(tl>>1)*8192+u*4096}')
            e.many(rot(2) + rot(3))
        e('s_waitcnt lgkmcnt(0)'); e('s_barrier')
        for n in range(16): e(f'ds_write_b128 v4, v[{64+4*n}:{67+4*n}] offset:{hf*16384+n*1024}')
        e('s_waitcnt lgkmcnt(0)')
    e('v_mov_b32 v2, v4')
    common_regs(e)
    e('v_lshrrev_b32 v18, 5, v30'); e('v_lshlrev_b32 v6, 9, v18')
    e('v_and_b32 v18, 15, v30'); e('v_lshl_add_u32 v6, v18, 5, v6')
    e('v_bfe_u32 v18, v30, 4, 1'); e('v_lshl_add_u32 v6, v18, 3, v6')
    e('s_lshl_b32 s3, s27, 10'); e(f's_add_u32 s3, s3, {MB_}'); e('v_add_u32 v6, s3, v6')
    e('v_lshlrev_b32 v7, 3, v30'); e(f'v_add_u32 v7, {MB_}, v7')
    e(f'v_add_u32 v8, {KVB}, v0')
    e('v_and_b32 v18, 3, v30'); e('v_lshlrev_b32 v9, 8, v18')
    e('v_lshrrev_b32 v18, 2, v30'); e('v_lshl_add_u32 v9, v18, 4, v9')
    e('v_and_b32 v18, 1, v30'); e('v_lshlrev_b32 v18, 7, v18'); e('v_xor_b32 v9, v9, v18')
    e('s_lshl_b32 s3, s27, 10'); e(f's_add_u32 s3, s3, {KVB + 8192}'); e('v_add_u32 v9, s3, v9')
    e('v_xor_b32 v3, 0x400, v9')
    e('v_and_b32 v18, 31, v30'); e('v_lshlrev_b32 v10, 4, v18')
    e('s_lshl_b32 s3, s27, 9'); e('v_add_u32 v10, s3, v10')
    e('v_xor_b32 v13, 0x200, v10')
    e('v_and_b32 v18, 7, v30'); e('v_lshlrev_b32 v11, 4, v18')
    e('v_lshrrev_b32 v18, 4, v30'); e('v_lshl_add_u32 v11, v18, 7, v11')
    e('s_lshl_b32 s3, s27, 9'); e('v_add_u32 v11, s3, v11')
    e('s_lshl_b32 s3, s34, 4'); e('s_add_u32 s53, s53, s3'); e('s_lshl_b32 s3, s27, 2'); e('s_add_u32 s53, s53, s3'); e('s_mov_b32 s20, 1')
    for r in range(4): e(f'v_mov_b32 v{108+r}, {hex(SENT)}')
    def slots(sc):
        for k in range(4):
            e(f's_add_u32 s3, s50, {WS_STEP + k*STEP_SZ + ST_OM}'); e(f's_add_u32 s4, s53, {WS_STEP + k*STEP_SZ}')
            e(f'buffer_store_dwordx4 v[108:111], v11, s[8:11], s3 offen{sc}')
            e('s_mov_b64 exec, s[20:21]'); e(f'buffer_store_dword v108, off, s[8:11], s4{sc}'); e('s_mov_b64 exec, -1')
    handshake(e, 'CP1_top', 'CP0_top')
    e('s_cmp_eq_u32 s37, 0'); e('s_cbranch_scc1 CP_nl')
    for k in range(4):
        e(f's_add_u32 s3, s50, {WS_STEP + k*STEP_SZ + ST_OM}'); e(f's_add_u32 s4, s53, {WS_STEP + k*STEP_SZ}')
        e('buffer_load_dword v18, v11, s[8:11], s3 offen sc1'); e('buffer_load_dword v18, off, s[8:11], s4 sc1')
    e('s_waitcnt vmcnt(0)')
    slots('')
    e.lab('CP_nl')
    e('s_lshl_b32 s3, s29, 4')
    e('v_and_b32 v18, 15, v30'); e('v_add_u32 v18, s3, v18')
    e('v_lshrrev_b32 v19, 4, v30'); e('v_lshlrev_b32 v19, 2, v19'); e('v_sub_u32 v18, v18, v19')
    for T in range(2):
        for r in range(4):
            m = 68 + 2 * (4 * T + r)
            e(f'v_cmp_le_i32 s[{m}:{m+1}], {16*T+r}, v18')
    e(f's_mul_i32 s35, s30, {1536*KB}'); e(f's_add_u32 s35, s35, {WS_QKV}')
    e('s_lshl_b32 s36, s30, 2'); e('s_add_u32 s36, s36, s27'); e('s_lshl_b32 s36, s36, 17')
    e('s_lshl_b32 s3, s29, 10'); e('s_add_u32 s36, s36, s3')
    e(f's_mov_b32 s100, {hex(CSC)}'); e(f's_mov_b32 s101, {hex(CSC)}')
    e(f's_add_u32 s46, s41, {KVB}')
    def prefetch(nxt):
        g = [['s_mov_b32 m0, s46', 's_add_u32 s5, s35, s41', f's_add_u32 s5, s5, {8192 + nxt*24*KB}', 's_lshl_b32 s4, s28, 7', 'v_lshrrev_b32 v15, 1, v0', 'v_and_b32 v15, s4, v15', 'v_xor_b32 v15, v15, v0']]
        g += [[f'buffer_load_dwordx4 v15, s[8:11], s5 offen offset:{i*1024} sc1 lds'] for i in range(4)]
        g += [['s_lshr_b32 s5, s41, 1', 's_add_u32 s5, s5, s35', f's_add_u32 s5, s5, {nxt*24*KB}', 'v_lshlrev_b32 v15, 3, v0'],
              ['s_mov_b64 exec, 0xffff', 'buffer_load_dword v14, v15, s[8:11], s5 offen sc1', 's_mov_b64 exec, -1'],
              [f's_add_u32 s5, s31, {nxt+1}', 's_lshr_b32 s5, s5, 2', 's_lshl_b32 s5, s5, 7', f's_add_u32 s5, s5, {WS_CNT + C_KV*128}'],
              ['buffer_load_dword v12, off, s[8:11], s5 sc1']]
        return g
    e(f's_mov_b32 s7, {WS_CNT + C_KV*128}')
    wait_counter(e, 's7', 96, 'kv0', slp=4)
    for g in prefetch(0): e.many(g)
    e('s_mov_b32 s16, s8'); e('s_mov_b32 s17, s9'); e('s_mov_b32 s18, 0'); e('s_mov_b32 s19, 0x20000'); e('s_mov_b32 s38, 0'); e('s_mov_b32 s39, 0')
    e('s_cmp_eq_u32 s27, 0'); e('s_cselect_b32 s23, 4, -1')
    if OPT['stamp'] == 3: e('s_memrealtime s[92:93]'); e('s_waitcnt lgkmcnt(0)')
    e('s_cmp_eq_u32 s37, 0'); e('s_cbranch_scc1 CP0_top')
    for loc in (1, 0):
        LOC[0] = loc
        (P_loop2 if OPT['p2'] else P_loop)(e, f'CP{loc}', prefetch)

def P_loop(e, X, prefetch):
    e.raw('.p2align 6')
    e.lab(X + '_top')
    e('s_mov_b32 s40, 0')
    q = Seq(e)
    def wrd(n):
        B = 64 + 8 * (n & 1)
        return [(f'ds_read_b128 v[{B+4*hf}:{B+4*hf+3}], v2 offset:{hf*16384+n*1024}', f'W{n}') for hf in range(2)]
    for n in range(2):
        for x, t in wrd(n): q.L(x, t)
    for r in range(16, 32, 2): e(f'v_mov_b64 v[{r}:{r+1}], 0')
    e(f'v_add_u32 v4, 4096, v5'); e(f'v_and_b32 v4, {hex(MEMB + 0x3fff)}, v4')
    e('s_add_u32 s44, s32, s50'); e(f's_add_u32 s54, s44, {ST_OM}'); e(f's_add_u32 s44, s44, {ST_VM}')
    e('s_add_u32 s55, s32, s53')
    if OPT['qlds']: e('s_lshl_b32 s24, s27, 11'); e(f's_add_u32 m0, s24, {MEMB + 8192}'); e('s_add_u32 s24, s24, s35')
    else: e('s_lshl_b32 s24, s29, 12'); e('s_add_u32 s24, s24, s35')
    OST = [f'buffer_store_dwordx4 v[{112+4*pr}:{115+4*pr}], v0, s[16:19], s{38+pr} offen sc1' for pr in range(2)]
    if OPT['qlds']: QL = ['s_lshl_b32 s3, s29, 12', f's_add_u32 s3, s3, {MEMB + 8192}', 'v_add_u32 v15, s3, v0'] + [f'ds_read_b128 v[{112+4*ks}:{115+4*ks}], v15 offset:{ks*1024}' for ks in range(4)]
    else: QL = [ldx4(112 + 4 * ks, 'v0', 's24', ks * 1024) for ks in range(4)]
    gather_mem(e, q)
    fill = [[] for _ in range(64)]; pre = [[] for _ in range(64)]
    fill[0].append(('V', OST[0])); fill[1].append(('V', OST[1]))
    for n in range(2, 16):
        for k, (x, t) in enumerate(wrd(n)): fill[4 * n - 5 + k].append(('L', x, t))
    for qq in range(1, 4):
        base = 16 * (qq - 1)
        if qq == 1: fill[2] += [('NL', 'AW'), ('X', 's_barrier')]
        for p in range(4):
            R = 32 + 16 * (qq & 1) + 4 * p
            fill[base + ((2, 2, 5, 6) if qq == 1 else (1, 2, 5, 6))[p]].append(('L', f'ds_read_b128 v[{R}:{R+3}], v4 offset:{p*1024}', f'A{qq}'))
        if qq < 3: fill[base + 9] += [('X', 'v_add_u32 v4, 4096, v4')]; fill[base + 10] += [('X', f'v_and_b32 v4, {hex(MEMB + 0x3fff)}, v4')]
        pre[16 * qq].append(('NL', f'A{qq}'))
    pre[48] += [('X', 's_barrier')]
    fill[41] += [('X', 'v_lshlrev_b32 v4, 22, v0')]; fill[42] += [('X', 'v_ashrrev_i32 v4, 8, v4')]; fill[45] += [('X', 'v_xor_b32 v4, -1, v4')]; fill[46] += [('X', 'v_and_b32 v4, 0xff800000, v4')]
    VT = [f'ds_read_b64_tr_b16 v[{64+4*n+2*t}:{65+4*n+2*t}], {"v9" if n < 2 else "v3"} offset:{t*4096+(n&1)*8}' for n in range(4) for t in range(2)]
    for ks in range(4): fill[(13, 14, 29, 30)[ks]].append(('L', f'ds_read_b128 v[{80+4*ks}:{83+4*ks}], v8 offset:{ks*1024+4096}', 'K1'))
    for ks in range(4): fill[(49, 50, 53, 54)[ks]].append(('L', f'ds_read_b128 v[{32+4*ks}:{35+4*ks}], v8 offset:{ks*1024}', 'K0'))
    VM = [(96, 'v10', 's44', 0), (100, 'v13', 's44', 0)]
    def post(a, d, off, tag):
        return [('X', f'v_permlane32_swap_b32 v{a+r}, v{a+4+r}') for r in range(4)] + \
               [('X', f'v_pk_add_f32 v[{a}:{a+1}], v[{a}:{a+1}], v[{a+4}:{a+5}]'), ('X', f'v_pk_add_f32 v[{a+2}:{a+3}], v[{a+2}:{a+3}], v[{a+6}:{a+7}]'),
                ('X', f'v_cvt_pk_bf16_f32 v{d}, v{a}, v{a+1}'), ('X', f'v_cvt_pk_bf16_f32 v{d+1}, v{a+2}, v{a+3}'),
                ('L', f'ds_write_b64 v6, v[{d}:{d+1}] offset:{off}', tag)]
    if OPT['stamp'] in (1, 2) and not OPT['st2']:
        pre[0].insert(0, ('X', stamp_ins(7))); fill[2].append(('X', stamp_ins(8)))
        pre[16].append(('X', stamp_ins(9))); pre[32].append(('X', stamp_ins(10))); pre[48].append(('X', stamp_ins(11))); fill[63].append(('X', stamp_ins(12)))
    if OPT['qlds']:
        for i in range(2): fill[57 + i].append(('V', f'buffer_load_dwordx4 v0, s[8:11], s24 offen offset:{i*1024} sc1 lds'))
    pq = post(16, 20, 0, 'MQ')
    fill[58].append(('X', 's_nop 1'))
    for k, it in enumerate(pq[:4]): fill[59 + k].append(it)
    k = 0
    for qq in range(4):
        for tl in range(4):
            for kp in range(4):
                q.emit(pre[k])
                A = 32 + 16 * (qq & 1) + 4 * kp
                if kp < 3: B = wreg((qq * 3 + kp) * 4 + tl)
                else:
                    n = 4 * qq + tl; q.need(ltag=f'W{n}'); b = 64 + 8 * (n & 1); B = f'v[{b}:{b+7}]'
                e(f'{SMF} v[{16+4*tl}:{19+4*tl}], v[{A}:{A+3}], {B}, v1')
                q.emit(fill[k]); k += 1
    q.emit(pq[4:])
    minit = [f'v_mov_b32 v{16+r}, v4' for r in range(4)]
    e.many(minit)
    q.emit(post(24, 22, 16, 'MK'))
    if not OPT['vmlate']:
        for it in VM: e(ldx4(*it))
    q.need(ltag='MK')
    e('s_barrier')
    for ks in range(4):
        for u in range(2): q.L(f'ds_read_b64_tr_b16 v[{48+4*ks+2*u}:{49+4*ks+2*u}], v7 offset:{ks*1024+u*512}', f'X{ks}')
    def mf(D, A, B, ks, z=True): e(f'{MF} v[{D}:{D+3}], v[{A+4*ks}:{A+4*ks+3}], v[{B+4*ks}:{B+4*ks+3}], {"0" if ks == 0 and z else f"v[{D}:{D+3}]"}')
    def flag(pos):
        if OPT['st2'] and pos >= 1: stamp(e, min(12, 6 + pos))
        if pos == 5: e('s_waitcnt lgkmcnt(4)')
        if pos == 5 and OPT['vmlate']: poll(e, VM, 'vm', issued=True, cnt=3)
        if OPT['flagpos'] == pos: local_store(e, ['s_mov_b64 exec, s[20:21]', 'buffer_store_dword v1, off, s[8:11], s55', 's_mov_b64 exec, -1'])
    stamp(e, 3)
    if OPT['vmlate'] == 1:
        for it in VM: e(ldx4(*it))
    for ks in range(4):
        q.need(ltag=f'X{ks}'); mf(24, 32, 48, ks)
        if OPT['vmlate'] == 2 and ks >= 2: e(ldx4(*VM[ks - 2]))
        mf(28, 80, 48, ks)
    flag(0)
    for ks in range(4):
        mf(16, 48, 48, ks, False)
        q.L(VT[2*ks], 'VT'); q.L(VT[2*ks+1], 'VT')
        if ks == 1: flag(1)
    xmax = ['v_max3_f32 v20, v24, v25, v26', 'v_max3_f32 v21, v27, v28, v29', 'v_max3_f32 v20, v20, v30, v31']
    if not OPT['vmlate']: poll(e, VM, 'vm', issued=True, mid=xmax, cnt=3)
    else: e('v_mov_b32 v15, 0'); e.many(xmax)
    e(f's_cmp_eq_u32 s31, {NSTEP-1}'); e(f's_cbranch_scc1 {X}_last')
    def pvl(nt, D):
        return [f'{MF} v[{D+4*n}:{D+4*n+3}], v[{64+4*n}:{67+4*n}], v[24:27], 0' for n in range(nt)] + \
               [f'{MF16} v[{D+4*n}:{D+4*n+3}], v[{96+2*n}:{97+2*n}], v[16:17], v[{D+4*n}:{D+4*n+3}]' for n in range(nt)]
    softmax(e, pvl(2, 104), 2, 104, flag)
    e('s_mov_b32 exec_lo, 0x00ff00ff'); e('s_mov_b32 exec_hi, 0x00ff00ff')
    local_store(e, ['buffer_store_dwordx4 v[104:107], v11, s[8:11], s54 offen'])
    stamp(e, 4)
    e('s_waitcnt lgkmcnt(0)')
    e('s_barrier')
    e('s_mov_b64 exec, -1'); e.many(QL); e('s_mov_b32 exec_lo, 0x00ff00ff'); e('s_mov_b32 exec_hi, 0x00ff00ff')
    for r in range(4): e(f'v_mov_b32 v{108+r}, {hex(SENT)}')
    e('s_add_u32 s3, s25, s50'); e(f's_add_u32 s3, s3, {ST_OM}'); e('s_add_u32 s4, s25, s53')
    local_store(e, ['buffer_store_dwordx4 v[108:111], v11, s[8:11], s3 offen', 's_mov_b64 exec, s[20:21]', 'buffer_store_dword v108, off, s[8:11], s4'])
    e('s_mov_b64 exec, -1')
    e('s_cmp_lg_u32 s31, s23'); e(f's_cbranch_scc1 {X}_ns')
    e('s_add_u32 s23, s23, 4'); e('s_lshr_b32 s3, s31, 2'); e('v_mov_b32 v15, s3'); e('s_lshl_b32 s3, s30, 7'); e(f's_add_u32 s3, s3, {WS_CNT + C_O*128}')
    e('s_mov_b64 exec, 1'); e('buffer_store_dword v15, off, s[8:11], s3 sc1'); e('s_mov_b64 exec, -1')
    e.lab(X + '_ns')
    e('v_readfirstlane_b32 s3, v12')
    e('s_nop 0')
    e('s_cmp_ge_u32 s3, 96'); e(f's_cbranch_scc1 {X}_rdy')
    e('s_add_u32 s7, s31, 1'); e('s_lshr_b32 s7, s7, 2'); e('s_lshl_b32 s7, s7, 7'); e(f's_add_u32 s7, s7, {WS_CNT + C_KV*128}')
    wait_counter(e, 's7', 96, 'kv', wg=False)
    e.lab(X + '_rdy')
    def xscores(pf, wait):
        e.many(minit)
        e('v_mov_b32 v22, 0xff800000')
        for ee in range(8): e(f'v_cndmask_b32 v{24+ee}, v22, 0, s[{68+2*ee}:{69+2*ee}]')
        e('s_waitcnt lgkmcnt(0)' if OPT['qlds'] else f's_waitcnt vmcnt({wait})'); e('s_nop 0')
        pf = list(pf)
        for D, A, ks in [(d, a_, ks) for ks in range(4) for d, a_ in ((24, 32), (28, 80))] + [(16, 48, ks) for ks in range(4)]:
            mf(D, A, 112, ks, False)
            if pf: e.many(pf.pop(0))
    xscores(prefetch(1), 2)
    e(f's_branch {X}_x')
    e.lab(X + '_last')
    if OPT['vmlate']: poll(e, VM, 'vm', issued=True)
    e('s_barrier')
    e.many(QL); e('s_waitcnt lgkmcnt(0)')
    xscores([], 0)
    e.lab(X + '_x')
    for k in range(5): e('v_mov_b32 v15, 0')
    e.many(xmax)
    softmax(e, pvl(4, 32), 4, 32, out=112)
    e(f's_add_u32 s38, s36, {WS_O}'); e(f's_xor_b32 s39, s36, {128*KB}'); e(f's_add_u32 s39, s39, {WS_O}')
    e('s_mov_b32 s18, s10')
    e('s_add_u32 s36, s36, 2048')
    e('s_add_u32 s31, s31, 1'); e('s_mov_b32 s25, s32'); e('s_mov_b32 s32, s26'); e(f's_add_u32 s26, s26, {STEP_SZ}'); e('s_and_b32 s26, s26, 0xfffff'); e(f's_or_b32 s26, s26, {WS_STEP}'); e(f's_add_u32 s35, s35, {24*KB}')
    stamp(e, 5)
    stamp_flush(e)
    e(f's_cmp_lt_u32 s31, {NSTEP}'); e(f's_cbranch_scc1 {X}_top')
    e.many(OST)
    if OPT['stamp'] == 3:
        e('s_memrealtime s[94:95]'); e('s_waitcnt lgkmcnt(0)')
        for k, r in enumerate((99, 90, 92, 94)): e(f'v_mov_b32 v{20+k}, s{r}')
        e('buffer_store_dwordx4 v[20:23], off, s[8:11], s98')
    e('s_waitcnt vmcnt(0)'); e('s_barrier')
    e('s_cmp_lg_u32 s27, 0'); e('s_cbranch_scc1 L_exit')
    e('s_lshl_b32 s3, s30, 7'); e(f's_add_u32 s3, s3, {WS_CNT + C_O*128}')
    e('v_mov_b32 v18, 16'); e('s_mov_b64 exec, 1'); e('buffer_store_dword v18, off, s[8:11], s3 sc1')
    e('s_endpgm')
    flush_defer(e)

def P_loop2(e, X, prefetch):
    e.raw('.p2align 6')
    e.lab(X + '_top')
    e('s_mov_b32 s40, 0')
    q = Seq(e)
    ORD = [(qq, tl) for qq in range(2) for tl in range(4)] + [(2, 0), (2, 1), (3, 0), (3, 1), (2, 2), (2, 3), (3, 2), (3, 3)]
    ACC = (24, 28, 16, 20)
    def wrd(sl):
        n = 4 * ORD[sl][0] + ORD[sl][1]; B = 64 + 8 * (sl & 1)
        return [(f'ds_read_b128 v[{B+4*hf}:{B+4*hf+3}], v2 offset:{hf*16384+n*1024}', f'W{sl}') for hf in range(2)]
    for n in range(2):
        for x, t in wrd(n): q.L(x, t)
    for r in range(16, 32, 2): e(f'v_mov_b64 v[{r}:{r+1}], 0')
    e(f'v_add_u32 v4, 4096, v5'); e(f'v_and_b32 v4, {hex(MEMB + 0x3fff)}, v4')
    e('s_add_u32 s44, s32, s50'); e(f's_add_u32 s54, s44, {ST_OM}'); e(f's_add_u32 s44, s44, {ST_VM}')
    e('s_add_u32 s55, s32, s53')
    e('s_lshl_b32 s24, s29, 12'); e('s_add_u32 s24, s24, s35')
    OST = [f'buffer_store_dwordx4 v[{112+4*pr}:{115+4*pr}], v0, s[16:19], s{38+pr} offen sc1' for pr in range(2)]
    QL = [ldx4(96 + 4 * ks, 'v0', 's24', ks * 1024) for ks in range(4)]
    gather_mem(e, q)
    fill = [[] for _ in range(64)]; pre = [[] for _ in range(64)]
    fill[0].append(('V', OST[0])); fill[1].append(('V', OST[1]))
    for n in range(2, 16):
        for k, (x, t) in enumerate(wrd(n)): fill[4 * n - 5 + k].append(('L', x, t))
    APOS = {1: (2, 2, 5, 6), 2: (17, 18, 21, 22), 3: (31, 32, 33, 34)}
    fill[2] += [('NL', 'AW'), ('X', 's_barrier')]
    for qq in range(1, 4):
        for p in range(4):
            R = 32 + 16 * (qq & 1) + 4 * p
            fill[APOS[qq][p]].append(('L', f'ds_read_b128 v[{R}:{R+3}], v4 offset:{p*1024}', f'A{qq}'))
        if qq < 3: fill[16 * qq - 7] += [('X', 'v_add_u32 v4, 4096, v4')]; fill[16 * qq - 6] += [('X', f'v_and_b32 v4, {hex(MEMB + 0x3fff)}, v4')]
        pre[(0, 16, 32, 40)[qq]].append(('NL', f'A{qq}'))
    pre[44] += [('X', 's_barrier')]
    fill[41] += [('X', 'v_lshlrev_b32 v4, 22, v0')]; fill[42] += [('X', 'v_ashrrev_i32 v4, 8, v4')]; fill[45] += [('X', 'v_xor_b32 v4, -1, v4')]; fill[46] += [('X', 'v_and_b32 v4, 0xff800000, v4')]
    VT = [f'ds_read_b64_tr_b16 v[{64+4*n+2*t}:{65+4*n+2*t}], {"v9" if n < 2 else "v3"} offset:{t*4096+(n&1)*8}' for n in range(4) for t in range(2)]
    for ks in range(4): fill[(13, 14, 29, 30)[ks]].append(('L', f'ds_read_b128 v[{80+4*ks}:{83+4*ks}], v8 offset:{ks*1024+4096}', 'K1'))
    for ks in range(4): fill[(37, 38, 49, 50)[ks]].append(('L', f'ds_read_b128 v[{112+4*ks}:{115+4*ks}], v8 offset:{ks*1024}', 'K0'))
    VM = [(48, 'v10', 's44', 0), (52, 'v13', 's44', 0)]
    def post(a, d, off, tag):
        return [('X', f'v_permlane32_swap_b32 v{a+r}, v{a+4+r}') for r in range(4)] + \
               [('X', f'v_pk_add_f32 v[{a}:{a+1}], v[{a}:{a+1}], v[{a+4}:{a+5}]'), ('X', f'v_pk_add_f32 v[{a+2}:{a+3}], v[{a+2}:{a+3}], v[{a+6}:{a+7}]'),
                ('X', f'v_cvt_pk_bf16_f32 v{d}, v{a}, v{a+1}'), ('X', f'v_cvt_pk_bf16_f32 v{d+1}, v{a+2}, v{a+3}'),
                ('L', f'ds_write_b64 v6, v[{d}:{d+1}] offset:{off}', tag)]
    def xr(R, tag): return [('L', f'ds_read_b64_tr_b16 v[{R+4*ks+2*u}:{R+4*ks+2*u+1}], v7 offset:{ks*1024+u*512}', f'{tag}{ks}') for ks in range(4) for u in range(2)]
    if OPT['stamp'] in (1, 2) and not OPT['st2']:
        pre[0].insert(0, ('X', stamp_ins(7))); fill[2].append(('X', stamp_ins(8)))
        pre[16].append(('X', stamp_ins(9))); pre[32].append(('X', stamp_ins(10))); pre[48].append(('X', stamp_ins(11))); fill[63].append(('X', stamp_ins(12)))
    for k, it in enumerate(post(24, 14, 0, 'MQ')): fill[(51, 52, 53, 53, 54, 54, 55, 55, 55)[k]].append(it)
    fill[59] += [('NL', 'MQ'), ('X', 's_barrier')]
    for k, it in enumerate(xr(96, 'XQ')): fill[59 + k // 2].append(it)
    k = 0
    for sl, (qq, tl) in enumerate(ORD):
        for kp in range(4):
            q.emit(pre[k])
            A = 32 + 16 * (qq & 1) + 4 * kp
            if kp < 3: B = wreg((qq * 3 + kp) * 4 + tl)
            else: q.need(ltag=f'W{sl}'); b = 64 + 8 * (sl & 1); B = f'v[{b}:{b+7}]'
            e(f'{SMF} v[{ACC[tl]}:{ACC[tl]+3}], v[{A}:{A+3}], {B}, v1')
            q.emit(fill[k]); k += 1
    def mfs(D, A, B, ks, z=True): return f'{MF} v[{D}:{D+3}], v[{A+4*ks}:{A+4*ks+3}], v[{B+4*ks}:{B+4*ks+3}], {"0" if ks == 0 and z else f"v[{D}:{D+3}]"}'
    def mf(*a): e(mfs(*a))
    st2 = lambda n: stamp(e, n) if OPT['st2'] else None
    minit = [f'v_mov_b32 v{16+r}, v4' for r in range(4)]
    xmax = ['v_max3_f32 v20, v24, v25, v26', 'v_max3_f32 v21, v27, v28, v29', 'v_max3_f32 v20, v20, v30, v31']
    def cross(op, a, t): return sum([[f'v_mov_b32 v{t}, v{a}', 's_nop 1', f'{sw} v{a}, v{t}', f'{op} v{a}, v{a}, v{t}'] for sw in ('v_permlane32_swap_b32', 'v_permlane16_swap_b32')], [])
    pk = post(16, 22, 16, 'MK')
    n0 = len(e.L)
    for ks in range(2):
        q.need(ltag=f'XQ{ks}'); mf(24, 112, 96, ks)
        if OPT['vm2'] == 0: e(ldx4(*VM[ks]))
        mf(28, 80, 96, ks)
    q.need(ltag='XQ3')
    while len(e.L) - n0 < 8: e('v_mov_b32 v15, 0')
    for k, (D, A, ks) in enumerate(((24, 112, 2), (28, 80, 2), (24, 112, 3), (28, 80, 3))):
        q.emit([pk[k]]); mf(D, A, 96, ks)
        if OPT['vm2'] == 1 and k in (1, 2): e(ldx4(*VM[k - 1]))
    q.emit(pk[4:])
    st2(7)
    e.many(minit)
    e.many(xmax + ['v_max_f32 v20, v20, v21'] + cross('v_max_f32', 20, 21))
    if OPT['vm2'] == 2:
        for it in VM: e(ldx4(*it))
    q.need(ltag='MK')
    e('s_barrier')
    stamp(e, 3)
    SX = list(range(24, 32))
    va = [f'v_pk_add_f32 v[{r}:{r+1}], v[{r}:{r+1}], v[20:21] op_sel_hi:[1,0] neg_lo:[0,1] neg_hi:[0,1]' for r in SX[::2]] + \
         [f'v_pk_mul_f32 v[{r}:{r+1}], v[{r}:{r+1}], s[100:101]' for r in SX[::2]] + [f'v_exp_f32 v{r}, v{r}' for r in SX]
    rd = xr(32, 'XK') + [('L', x, 'VT0' if k < 4 else 'VT1') for k, x in enumerate(VT)]
    for k in range(16): q.emit([rd[k]]); e(va[k])
    st2(8)
    vb = ['v_pk_add_f32 v[22:23], v[24:25], v[26:27]', 'v_pk_add_f32 v[14:15], v[28:29], v[30:31]', 'v_cvt_pk_bf16_f32 v24, v24, v25', 'v_cvt_pk_bf16_f32 v25, v26, v27',
          'v_cvt_pk_bf16_f32 v26, v28, v29', 'v_cvt_pk_bf16_f32 v27, v30, v31', 'v_pk_add_f32 v[22:23], v[22:23], v[14:15]', 'v_add_f32 v22, v22, v23']
    for ks in range(4):
        q.need(ltag=f'XK{ks}'); mf(16, 32, 96, ks, False)
        if OPT['vm2'] == 3 and ks < 2: e(ldx4(*VM[ks]))
        e.many(vb[2*ks:2*ks+2])
    q.need(ltag='VT0')
    FL = ['s_mov_b64 exec, s[20:21]', 'buffer_store_dword v1, off, s[8:11], s55', 's_mov_b64 exec, -1']
    for n in range(2):
        e(f'{MF} v[{56+4*n}:{59+4*n}], v[{64+4*n}:{67+4*n}], v[24:27], 0')
    if OPT['vm2'] < 2: poll(e, VM, 'vm', issued=True, cnt=3)
    else: e('v_mov_b32 v15, 0'); e('v_mov_b32 v15, 0'); e('v_mov_b32 v15, 0')
    st2(9)
    e('v_max3_f32 v28, v16, v17, v18'); e('v_max3_f32 v28, v28, v19, v20')
    e.many(cross('v_max_f32', 28, 29))
    e('v_sub_f32 v20, v20, v28')
    for r in (16, 18): e(f'v_pk_add_f32 v[{r}:{r+1}], v[{r}:{r+1}], v[28:29] op_sel_hi:[1,0] neg_lo:[0,1] neg_hi:[0,1]')
    e('v_mul_f32 v20, s100, v20')
    for r in (16, 18): e(f'v_pk_mul_f32 v[{r}:{r+1}], v[{r}:{r+1}], s[100:101]')
    for r in (20, 16, 17, 18, 19): e(f'v_exp_f32 v{r}, v{r}')
    st2(10)
    for r in range(56, 64, 2): e(f'v_pk_mul_f32 v[{r}:{r+1}], v[{r}:{r+1}], v[20:21] op_sel_hi:[1,0]')
    e('v_pk_add_f32 v[28:29], v[16:17], v[18:19]')
    e('v_cvt_pk_bf16_f32 v16, v16, v17'); e('v_cvt_pk_bf16_f32 v17, v18, v19')
    e('v_add_f32 v28, v28, v29'); e('v_fmac_f32 v28, v22, v20')
    if OPT['vm2'] >= 2: poll(e, VM, 'vm', issued=True, cnt=3)
    e(f'{MF16} v[56:59], v[48:49], v[16:17], v[56:59]')
    if OPT['flagpos'] == 6: local_store(e, FL)
    e(f'{MF16} v[60:63], v[50:51], v[16:17], v[60:63]')
    st2(11)
    e.many(cross('v_add_f32', 28, 29))
    e('v_rcp_f32 v28, v28'); e('s_nop 0')
    for r in range(56, 64, 2): e(f'v_pk_mul_f32 v[{r}:{r+1}], v[{r}:{r+1}], v[28:29] op_sel_hi:[1,0]')
    for d in range(4): e(f'v_cvt_pk_bf16_f32 v{56+d}, v{56+2*d}, v{57+2*d}')
    def pvl(nt, D):
        return [f'{MF} v[{D+4*n}:{D+4*n+3}], v[{64+4*n}:{67+4*n}], v[24:27], 0' for n in range(nt)] + \
               [f'{MF16} v[{D+4*n}:{D+4*n+3}], v[{48+2*n}:{49+2*n}], v[16:17], v[{D+4*n}:{D+4*n+3}]' for n in range(nt)]
    e('s_mov_b32 exec_lo, 0x00ff00ff'); e('s_mov_b32 exec_hi, 0x00ff00ff')
    local_store(e, ['buffer_store_dwordx4 v[56:59], v11, s[8:11], s54 offen'])
    stamp(e, 4)
    e('s_waitcnt lgkmcnt(0)')
    e('s_barrier')
    e('s_mov_b64 exec, -1'); e.many(QL); e('s_mov_b32 exec_lo, 0x00ff00ff'); e('s_mov_b32 exec_hi, 0x00ff00ff')
    for r in range(4): e(f'v_mov_b32 v{60+r}, {hex(SENT)}')
    e('s_add_u32 s3, s25, s50'); e(f's_add_u32 s3, s3, {ST_OM}'); e('s_add_u32 s4, s25, s53')
    local_store(e, ['buffer_store_dwordx4 v[60:63], v11, s[8:11], s3 offen', 's_mov_b64 exec, s[20:21]', 'buffer_store_dword v60, off, s[8:11], s4'])
    e('s_mov_b64 exec, -1')
    e('s_cmp_lg_u32 s31, s23'); e(f's_cbranch_scc1 {X}_ns')
    e('s_add_u32 s23, s23, 4'); e('s_lshr_b32 s3, s31, 2'); e('v_mov_b32 v15, s3'); e('s_lshl_b32 s3, s30, 7'); e(f's_add_u32 s3, s3, {WS_CNT + C_O*128}')
    e('s_mov_b64 exec, 1'); e('buffer_store_dword v15, off, s[8:11], s3 sc1'); e('s_mov_b64 exec, -1')
    e.lab(X + '_ns')
    e(f's_cmp_eq_u32 s31, {NSTEP-1}'); e(f's_cbranch_scc1 {X}_last')
    e('v_readfirstlane_b32 s3, v12')
    e('s_nop 0')
    e('s_cmp_ge_u32 s3, 96'); e(f's_cbranch_scc1 {X}_rdy')
    e('s_add_u32 s7, s31, 1'); e('s_lshr_b32 s7, s7, 2'); e('s_lshl_b32 s7, s7, 7'); e(f's_add_u32 s7, s7, {WS_CNT + C_KV*128}')
    wait_counter(e, 's7', 96, 'kv', wg=False)
    e.lab(X + '_rdy')
    def xscores(pf, wait):
        e.many(minit)
        e('v_mov_b32 v22, 0xff800000')
        for ee in range(8): e(f'v_cndmask_b32 v{24+ee}, v22, 0, s[{68+2*ee}:{69+2*ee}]')
        e(f's_waitcnt vmcnt({wait})'); e('s_nop 0')
        pf = list(pf)
        for D, A, ks in [(d, a_, ks) for ks in range(4) for d, a_ in ((24, 112), (28, 80))] + [(16, 32, ks) for ks in range(4)]:
            mf(D, A, 96, ks, False)
            if pf: e.many(pf.pop(0))
    xscores(prefetch(1), 2)
    e(f's_branch {X}_x')
    e.lab(X + '_last')
    xscores([], 2)
    e.lab(X + '_x')
    for k in range(5): e('v_mov_b32 v15, 0')
    e.many(xmax)
    softmax(e, pvl(4, 80), 4, 80, out=112)
    e(f's_add_u32 s38, s36, {WS_O}'); e(f's_xor_b32 s39, s36, {128*KB}'); e(f's_add_u32 s39, s39, {WS_O}')
    e('s_mov_b32 s18, s10')
    e('s_add_u32 s36, s36, 2048')
    e('s_add_u32 s31, s31, 1'); e('s_mov_b32 s25, s32'); e('s_mov_b32 s32, s26'); e(f's_add_u32 s26, s26, {STEP_SZ}'); e('s_and_b32 s26, s26, 0xfffff'); e(f's_or_b32 s26, s26, {WS_STEP}'); e(f's_add_u32 s35, s35, {24*KB}')
    stamp(e, 5)
    stamp_flush(e)
    e(f's_cmp_lt_u32 s31, {NSTEP}'); e(f's_cbranch_scc1 {X}_top')
    e.many(OST)
    if OPT['stamp'] == 3:
        e('s_memrealtime s[94:95]'); e('s_waitcnt lgkmcnt(0)')
        for k, r in enumerate((99, 90, 92, 94)): e(f'v_mov_b32 v{20+k}, s{r}')
        e('buffer_store_dwordx4 v[20:23], off, s[8:11], s98')
    e('s_waitcnt vmcnt(0)'); e('s_barrier')
    e('s_cmp_lg_u32 s27, 0'); e('s_cbranch_scc1 L_exit')
    e('s_lshl_b32 s3, s30, 7'); e(f's_add_u32 s3, s3, {WS_CNT + C_O*128}')
    e('v_mov_b32 v18, 16'); e('s_mov_b64 exec, 1'); e('buffer_store_dword v18, off, s[8:11], s3 sc1')
    e('s_endpgm')
    flush_defer(e)

def gen_VO(e):
    e.lab('L_chainV')
    common_init(e)
    w_voffsets(e, 8192, 0)
    e(f's_mov_b32 s12, s{P_WV}'); e(f's_mov_b32 s13, s{P_WV+1}')
    e(f's_mov_b32 s16, s{P_WO}'); e(f's_mov_b32 s17, s{P_WO+1}'); e(f's_mov_b32 s18, {8*MB}'); e('s_mov_b32 s19, 0x20000')
    e('s_lshl_b32 s21, s30, 8'); e('s_lshl_b32 s3, s28, 18'); e('s_add_u32 s21, s21, s3')
    e('s_lshl_b32 s22, s33, 22'); e('s_lshl_b32 s3, s27, 20'); e('s_add_u32 s22, s22, s3')
    e('s_and_b32 s3, s34, 15'); e('s_lshl_b32 s3, s3, 7'); e('s_add_u32 s22, s22, s3')
    e('s_lshl_b32 s3, s27, 1'); e('v_xor_b32 v18, s3, v28')
    e('s_lshl_b32 s3, s27, 14'); e('v_add_u32 v19, s3, v29')
    e('v_lshl_add_u32 v2, v18, 5, v19'); e('v_xor_b32 v3, 32, v2')
    e('v_lshrrev_b32 v18, 5, v30'); e('v_lshlrev_b32 v22, 15, v18')
    e('v_bfe_u32 v18, v30, 4, 1'); e('v_lshl_add_u32 v22, v18, 13, v22')
    e('v_bfe_u32 v18, v30, 3, 1'); e('v_lshl_add_u32 v22, v18, 11, v22')
    e('v_bfe_u32 v18, v30, 1, 2'); e('v_lshrrev_b32 v19, 4, v30'); e('v_xor_b32 v18, v18, v19'); e('v_lshl_add_u32 v22, v18, 5, v22')
    e('v_and_b32 v18, 1, v30'); e('v_lshl_add_u32 v22, v18, 4, v22')
    e('v_lshrrev_b32 v18, 2, v30'); e('v_lshlrev_b32 v8, 7, v18')
    e('v_bfe_u32 v18, v30, 3, 2'); e('v_lshl_add_u32 v8, v18, 5, v8')
    e('v_and_b32 v18, 3, v30'); e('v_lshl_add_u32 v8, v18, 3, v8')
    e('s_lshl_b32 s23, s27, 14'); e('s_add_u32 s23, s23, 65536'); e('v_add_u32 v8, s23, v8')
    def loadV(tau):
        for Q in range(4):
            e(f's_add_u32 m0, s41, {Q*16384}')
            e(f's_add_u32 s20, s21, {(4*Q+tau)*64*8192}')
            for i in range(4): e(f'buffer_load_dwordx4 v{12+i}, s[12:15], s20 offen offset:{i*1024}{OPT["wnt"]*" nt"} lds')
    RND = ((0, 1), (2, 4), (5, 6), (3, 7))
    KREG = {0: 0, 1: 1, 2: 2, 4: 3, 5: 4, 6: 5}
    def loadO(n):
        for sl, ks in enumerate(RND[n]):
            for i in range(8):
                e(f's_add_u32 m0, s23, {sl*8192 + i*1024}')
                e(f's_add_u32 s20, s22, {(64*ks + 32*(i>>2) + 8*(i&1) + 2*((i>>1)&1))*2048}')
                e(f'buffer_load_dwordx4 v22, s[16:19], s20 offen{OPT["wnt"]*" nt"} lds')
    def ord_(sl, dst):
        r = []
        for n in range(4):
            r.append(('X', f'v_xor_b32 v18, {n<<5}, v8'))
            for x in range(2):
                for u in range(2): r.append(('L', f'ds_read_b64_tr_b16 {dst(n, 4*x+2*u)}, v18 offset:{sl*8192+x*4096+u*2048}', 'O'))
        return r
    rot = lambda r: [f'v_add_u32 v{r}, 0x4000, v{r}', f'v_and_b32 v{r}, 0xffff, v{r}']
    loadV(0); loadO(0)
    for n in range(3):
        e('s_waitcnt vmcnt(16)'); e('s_barrier')
        for q in range(4):
            for t in range(2):
                for hf in range(2):
                    for u in range(2):
                        e(f'ds_read_b64_tr_b16 {wreg2((q*3+n)*2+t, 4*hf+2*u)}, v{2+t} offset:{hf*8192+u*4096}')
            e.many(rot(2) + rot(3))
        e('s_waitcnt lgkmcnt(0)'); e('s_barrier')
        if n == 0: e(ROTLD)
        loadV(n + 1)
        e('s_waitcnt vmcnt(16)')
        if n == 0: census(e)
        for sl, ks in enumerate(RND[n]):
            for it in ord_(sl, lambda t, o: wreg2(24 + KREG[ks] * 4 + t, o)): e(it[1])
        e('s_waitcnt lgkmcnt(0)')
        loadO(n + 1)
    e('s_waitcnt vmcnt(0)'); e('s_barrier')
    for q in range(4):
        for t in range(2):
            for hf in range(2):
                for u in range(2):
                    R = 64 + 8 * (2 * q + t) + 4 * hf + 2 * u
                    e(f'ds_read_b64_tr_b16 v[{R}:{R+1}], v{2+t} offset:{hf*8192+u*4096}')
        e.many(rot(2) + rot(3))
    e('s_waitcnt lgkmcnt(0)'); e('s_barrier')
    e('s_lshl_b32 s3, s27, 14'); e('v_add_u32 v2, s3, v0')
    for n in range(16): e(f'ds_write_b128 v2, v[{64+4*n}:{67+4*n}] offset:{n*1024}')
    e('s_waitcnt lgkmcnt(0)')
    for sl in range(2):
        for it in ord_(sl, lambda t, o: f'v[{64+32*sl+8*t+o}:{64+32*sl+8*t+o+1}]'): e(it[1])
    e('s_waitcnt lgkmcnt(0)')
    e('v_add_u32 v8, s23, v0')
    for n in range(16): e(f'ds_write_b128 v8, v[{64+4*n}:{67+4*n}] offset:{n*1024}')
    e('s_waitcnt lgkmcnt(0)')
    common_regs(e)
    e('s_barrier')
    e('v_and_b32 v18, 31, v30'); e('v_lshlrev_b32 v6, 4, v18')
    e('v_lshrrev_b32 v18, 5, v30'); e('v_lshl_add_u32 v6, v18, 3, v6')
    e('s_lshl_b32 s3, s27, 9'); e('v_add_u32 v6, s3, v6')
    e('v_bfe_u32 v18, v30, 3, 1'); e('v_lshlrev_b32 v11, 6, v18')
    for bit, sh in ((1, 5), (2, 4), (5, 3), (0, 2)):
        e(f'v_bfe_u32 v18, v30, {bit}, 1'); e(f'v_lshl_add_u32 v11, v18, {sh}, v11')
    e('v_bfe_u32 v18, v30, 4, 1'); e('v_mul_u32_u24 v18, 640, v18'); e('v_add_u32 v11, v11, v18')
    e('s_mul_i32 s3, s27, 1280'); e(f's_add_u32 s3, s3, {KVB}'); e('v_add_u32 v11, s3, v11')
    e('v_add_u32 v10, 5120, v11')
    e('v_bfe_u32 v18, v30, 2, 3'); e('v_mul_u32_u24 v7, 160, v18')
    e('v_lshrrev_b32 v18, 5, v30'); e('v_lshl_add_u32 v7, v18, 5, v7')
    e('v_and_b32 v18, 3, v30'); e('v_lshl_add_u32 v7, v18, 3, v7')
    e('s_mul_i32 s3, s28, 5120'); e('s_lshl_b32 s4, s29, 6'); e('s_add_u32 s3, s3, s4'); e(f's_add_u32 s3, s3, {KVB}'); e('v_add_u32 v7, s3, v7')
    e('s_lshl_b32 s35, s30, 10')
    e('s_lshl_b32 s3, s27, 8'); e('v_lshlrev_b32 v13, 2, v30'); e('v_add_u32 v13, s3, v13')
    e('s_and_b32 s3, s35, 0x6000'); e('s_add_u32 s46, s35, s3'); e(f's_add_u32 s35, s35, {ST_PL}')
    e('v_lshlrev_b32 v9, 2, v30')
    e('v_lshlrev_b32 v12, 7, v30')
    e('s_lshl_b32 s36, s33, 15'); e('s_lshl_b32 s3, s27, 13'); e('s_add_u32 s36, s36, s3'); e(f's_add_u32 s36, s36, {ST_OM}')
    e('s_and_b32 s3, s34, 15'); e(f's_lshl_b32 s3, s3, {OPT["fs"]}'); e('s_add_u32 s24, s22, s3')
    e(f'v_mov_b32 v24, {hex(SENT)}'); e(f'v_mov_b32 v25, {hex(SENT)}')
    handshake(e, 'CV1_top', 'CV0_top')
    e('v_mov_b32 v3, 0'); e(f's_mul_i32 s54, s30, {1536*KB}'); e('s_mul_i32 s3, s27, 6144'); e('s_add_u32 s54, s54, s3'); e(f's_add_u32 s54, s54, {WS_QKV}')
    e('s_add_u32 s46, s46, s6')
    e('s_lshl_b32 s47, s33, 7'); e('s_add_u32 s47, s47, s6'); e(f's_add_u32 s47, s47, {ST_F3}')
    e('s_cmp_eq_u32 s34, 16'); e('s_cselect_b32 s38, s20, 0'); e('s_mov_b32 s39, 0')
    e('s_mov_b32 s16, s8'); e('s_mov_b32 s17, s9'); e('s_cmp_lg_u32 s38, 0'); e('s_cselect_b32 s18, s10, 0')
    e(f's_add_u32 s3, s47, {WS_STEP}')
    e('s_mov_b64 exec, s[38:39]'); e('buffer_store_dword v1, off, s[8:11], s3 sc1'); e('s_mov_b64 exec, -1')
    e(f's_add_u32 s3, s24, {WS_STEP}')
    e('s_mov_b64 exec, s[20:21]'); e('buffer_store_dword v1, off, s[8:11], s3 sc1'); e('s_mov_b64 exec, -1')
    e('s_cmp_eq_u32 s37, 0'); e('s_cbranch_scc1 CV0_top')
    for k in range(4):
        R = WS_STEP + k * STEP_SZ
        e(f's_add_u32 s3, s50, {R + ST_VM}'); e('buffer_load_dword v18, v6, s[8:11], s3 offen sc1')
        e(f's_add_u32 s3, s35, {R}'); e('buffer_load_dword v18, v13, s[8:11], s3 offen sc1')
        e(f's_add_u32 s3, s24, {R}'); e('buffer_load_dword v18, off, s[8:11], s3 sc1')
    e('s_waitcnt vmcnt(0)')
    for k in range(4):
        R = WS_STEP + k * STEP_SZ
        e(f's_add_u32 s3, s50, {R + ST_VM}'); e('buffer_store_dwordx2 v[24:25], v6, s[8:11], s3 offen')
        if k:
            e(f's_add_u32 s3, s35, {R}'); e('buffer_store_dword v24, v13, s[8:11], s3 offen')
            e(f's_add_u32 s3, s24, {R}')
            e('s_mov_b64 exec, s[20:21]'); e('buffer_store_dword v24, off, s[8:11], s3'); e('s_mov_b64 exec, -1')
    for loc in (1, 0):
        LOC[0] = loc
        V_loop(e, f'CV{loc}', KREG)

def V_loop(e, X, KREG):
    e.raw('.p2align 6')
    e.lab(X + '_top')
    e('s_mov_b32 s40, 0')
    q = Seq(e)
    def wrd(n):
        B = 64 + 8 * (n & 1)
        return [(f'ds_read_b128 v[{B+4*hf}:{B+4*hf+3}], v2 offset:{n*2048+hf*1024}', f'W{n}') for hf in range(2)]
    for n in range(2):
        for x, t in wrd(n): q.L(x, t)
    for r in range(16, 24, 2): e(f'v_mov_b64 v[{r}:{r+1}], 0')
    e(f'v_add_u32 v4, 4096, v5'); e(f'v_and_b32 v4, {hex(MEMB + 0x3fff)}, v4')
    gather_mem(e, q, isP=False)
    fill = [[] for _ in range(32)]; pre = [[] for _ in range(32)]
    for n in range(2, 8):
        for k, (x, t) in enumerate(wrd(n)): fill[4 * n - 5 + k].append(('L', x, t))
    for qq in range(1, 4):
        base = 8 * (qq - 1) + (1 if qq == 1 else 0)
        if qq == 1: fill[base] += [('NL', 'AW'), ('X', 's_barrier')]
        for p in range(4):
            R = 32 + 16 * (qq & 1) + 4 * p
            fill[base + p // 2].append(('L', f'ds_read_b128 v[{R}:{R+3}], v4 offset:{p*1024}', f'A{qq}'))
        if qq < 3: fill[base + 2] += [('X', 'v_add_u32 v4, 4096, v4'), ('X', f'v_and_b32 v4, {hex(MEMB + 0x3fff)}, v4')]
        pre[8 * qq].append(('NL', f'A{qq}'))
    k = 0
    for qq in range(4):
        for t in range(2):
            for kp in range(4):
                q.emit(pre[k])
                A = 32 + 16 * (qq & 1) + 4 * kp
                if kp < 3: B = wreg((qq * 3 + kp) * 2 + t)
                else:
                    n = 2 * qq + t; q.need(ltag=f'W{n}'); b = 64 + 8 * t; B = f'v[{b}:{b+7}]'
                e(f'{SMF} v[{16+4*t}:{19+4*t}], v[{A}:{A+3}], {B}, v1')
                q.emit(fill[k]); k += 1
    e('s_add_u32 s42, s32, s50'); e(f's_add_u32 s42, s42, {ST_VM}')
    for r in range(24, 32, 2): e(f'v_mov_b64 v[{r}:{r+1}], 0')
    e('s_nop 1')
    for r in range(4): e(f'v_permlane32_swap_b32 v{16+r}, v{20+r}')
    e('v_pk_add_f32 v[16:17], v[16:17], v[20:21]'); e('v_pk_add_f32 v[18:19], v[18:19], v[22:23]')
    e('v_cvt_pk_bf16_f32 v20, v16, v17'); e('v_cvt_pk_bf16_f32 v21, v18, v19')
    local_store(e, ['buffer_store_dwordx2 v[20:21], v6, s[8:11], s42 offen'])
    stamp(e, 3)
    e(f's_cmp_eq_u32 s31, {NSTEP-1}'); e(f's_cbranch_scc1 {X}_end')
    DEFER.append([f'{X}_end:'] + (['v_mov_b32 v21, s99', 'buffer_store_dword v21, off, s[8:11], s98'] if OPT['stamp'] == 3 else []) + ['s_endpgm'])
    if OPT['vwarm']:
        e('v_readfirstlane_b32 s3, v3'); e('v_lshlrev_b32 v15, 3, v0')
        e(f's_add_u32 s54, s54, {24*KB}')
        e('s_cmp_lt_u32 s3, 96'); e(f's_cbranch_scc1 {X}_nw')
        e('s_mov_b64 exec, 0xffffffffffff' if False else 's_bfm_b64 exec, 48, 0')
        e('buffer_load_dword v14, v15, s[8:11], s54 offen sc1'); e('s_mov_b64 exec, -1')
        e.lab(X + '_nw')
        e('s_add_u32 s3, s31, 2'); e('s_lshr_b32 s3, s3, 2'); e('s_lshl_b32 s3, s3, 7'); e(f's_add_u32 s3, s3, {WS_CNT + C_KV*128}')
        e('buffer_load_dword v3, off, s[8:11], s3 sc1')
    e(f'v_mov_b32 v22, {hex(SENT)}'); e(f'v_mov_b32 v23, {hex(SENT)}')
    e('s_add_u32 s42, s25, s50'); e(f's_add_u32 s42, s42, {ST_VM}'); e('s_add_u32 s43, s25, s35'); e('s_add_u32 s44, s25, s46'); e('s_add_u32 s3, s25, s24')
    e('buffer_store_dword v22, v13, s[8:11], s44 offen sc1')
    e('s_add_u32 s44, s25, s47'); e('s_mov_b64 exec, s[38:39]'); e('buffer_store_dword v22, off, s[8:11], s44 sc1'); e('s_mov_b64 exec, -1')
    local_store(e, ['buffer_store_dwordx2 v[22:23], v6, s[8:11], s42 offen', 'buffer_store_dword v22, v13, s[8:11], s43 offen',
                    's_mov_b64 exec, s[20:21]', 'buffer_store_dword v22, off, s[8:11], s3', 's_mov_b64 exec, -1'])
    for n in range(16): e(f'ds_read_b128 v[{64+4*n}:{67+4*n}], v8 offset:{n*1024}')
    for r in range(16, 32, 2): e(f'v_mov_b64 v[{r}:{r+1}], 0')
    e('s_add_u32 s42, s32, s36'); e('s_add_u32 s43, s42, 4096'); e('s_add_u32 s44, s32, s53')
    e('s_waitcnt lgkmcnt(0)')
    stamp(e, 4)
    probe(e, 'v9', 's44', 'f', None, sleep=OPT['sleepF'])
    for k in range(OPT['dlyF'] // 16): e('s_nop 15')
    if OPT['dlyF'] % 16: e(f's_nop {OPT["dlyF"] % 16}')
    stamp(e, 5)
    OI = [(32 + 4 * ks, 'v0', 's42' if ks < 4 else 's43', (ks & 3) * 1024) for ks in range(8)]
    NA = OPT['ahead']
    for k, it in enumerate(OI[:NA]):
        e(ldx4(*it))
        if OPT['pace'] and k < NA - 1: e(f's_nop {OPT["pace"]}')
    def chk(ks):
        R = 32 + 4 * ks
        return [[f's_waitcnt vmcnt({min(7, ks + NA - 1) - ks + (1 if ks > OPT["f3pos"] >= 0 else 0)})', f'v_max3_u32 v14, v{R}, v{R+1}, v{R+2}'],
                [f'v_max_u32 v14, v14, v{R+3}', f'v_cmp_eq_u32 vcc, {hex(SENT)}, v14'], [f's_cbranch_vccnz {X}_f{ks}', f'{X}_b{ks}:']]
    def put(l):
        for x in l:
            if x.endswith(':'): e.raw(x)
            else: e(x)
    for l in chk(0): put(l)
    stamp(e, 11)
    e('s_add_u32 s44, s26, s24'); e('s_add_u32 s3, s26, s47')
    def sm(ks, t):
        R = 32 + 4 * ks
        B = wreg(24 + KREG[ks] * 4 + t) if ks in KREG else f'v[{64+32*(ks>>2)+8*t}:{64+32*(ks>>2)+8*t+7}]'
        e(f'{SMF} v[{16+4*t}:{19+4*t}], v[{R}:{R+3}], {B}, v1')
    def red(c):
        a = 16 + 8 * c
        return [f'v_permlane32_swap_b32 v{a+r}, v{a+4+r}' for r in range(4)] + \
               [f'v_pk_add_f32 v[{a}:{a+1}], v[{a}:{a+1}], v[{a+4}:{a+5}]', f'v_pk_add_f32 v[{a+2}:{a+3}], v[{a+2}:{a+3}], v[{a+6}:{a+7}]'] + \
               [f'ds_write2_b32 v{11-c}, v{a+r}, v{a+r+1} offset0:{r*40} offset1:{r*40+40}' for r in (0, 2)]
    F3 = ['s_mov_b64 exec, 1', 'buffer_store_dword v1, off, s[16:19], s3 sc1', 's_mov_b64 exec, -1']
    assert OPT['f3pos'] < 0 or OPT['f3pos'] + NA >= 7
    for ks in range(6):
        for t in range(4):
            sm(ks, t)
            if t == 0 and ks + NA < 8: e(ldx4(*OI[ks + NA]))
            if t == 0 and ks == OPT['f3pos']: e.many(F3)
            if t > 0: put(chk(ks + 1)[t - 1])
    c7 = chk(7)
    sm(6, 0)
    if OPT['f3pos'] == 6: e.many(F3)
    put(c7[0]); sm(6, 1); put(c7[1]); sm(6, 2); put(c7[2])
    sm(7, 0)
    if OPT['f3pos'] == 7: e.many(F3)
    sm(7, 1)
    e('s_add_u32 s31, s31, 1'); e('s_add_u32 s42, s26, s46')
    sm(6, 3)
    e('s_add_u32 s43, s26, s35'); e('v_mov_b32 v15, 0')
    sm(7, 2)
    e('v_mov_b32 v15, 0')
    sm(7, 3)
    stamp(e, 7)
    r0, r1 = red(0), red(1)
    e.many(r0); e.many(r1)
    if OPT['f2pos'] == 8: local_store(e, ['s_mov_b64 exec, s[20:21]', 'buffer_store_dword v1, off, s[8:11], s44', 's_mov_b64 exec, -1'])
    stamp(e, 8)
    for k in range(OPT['warm1']): e('v_mov_b32 v15, 0')
    e('s_waitcnt lgkmcnt(0)')
    stamp(e, 9)
    e('s_barrier')
    stamp(e, 10)
    for w in range(4): e(f'ds_read_b64 v[{36+2*w}:{37+2*w}], v7 offset:{w*1280}')
    if OPT['f2pos'] == 9: local_store(e, ['s_mov_b64 exec, s[20:21]', 'buffer_store_dword v1, off, s[8:11], s44', 's_mov_b64 exec, -1'])
    for k in range(OPT['warm2']): e('v_mov_b32 v15, 0')
    e('s_waitcnt lgkmcnt(2)')
    e('v_pk_add_f32 v[36:37], v[36:37], v[38:39]')
    e('s_waitcnt lgkmcnt(0)')
    e('v_pk_add_f32 v[40:41], v[40:41], v[42:43]')
    e('v_pk_add_f32 v[36:37], v[36:37], v[40:41]')
    e('v_cvt_pk_bf16_f32 v24, v36, v37')
    if OPT['lfirst']: local_store(e, ['buffer_store_dword v24, v13, s[8:11], s43 offen'])
    if OPT['lgap']: e(f's_nop {OPT["lgap"]}')
    e('buffer_store_dword v24, v13, s[8:11], s42 offen sc1')
    if not OPT['lfirst']: local_store(e, ['buffer_store_dword v24, v13, s[8:11], s43 offen'])
    stamp(e, 6)
    if OPT['rpf'] >= 0 and OPT['vdir'] < 0:
        e(f's_xor_b32 s42, s42, {32*KB}')
        for k in range(OPT['rpf'] // 16): e('s_nop 15')
        if OPT['rpf'] % 16: e(f's_nop {OPT["rpf"] % 16}')
        e('buffer_load_dword v47, v13, s[8:11], s42 offen sc1')
    e('s_mov_b32 s25, s32'); e('s_mov_b32 s32, s26'); e(f's_add_u32 s26, s26, {STEP_SZ}'); e('s_and_b32 s26, s26, 0xfffff'); e(f's_or_b32 s26, s26, {WS_STEP}')
    stamp_flush(e)
    e(f's_branch {X}_top')
    for ks in range(8):
        e.lab(f'{X}_f{ks}')
        if OPT['stamp']: e('s_add_u32 s99, s99, 1')
        poll(e, OI[ks:min(8, ks + NA)], 'o', issued=True)
        e(f's_branch {X}_b{ks}')
    flush_defer(e)

def gen_chain(e):
    gen_P(e); gen_VO(e)
```

```python
from common import *
from k_bulk import setup_load, P_WQ, P_WK, P_WV, P_X, F_K0, tstamp, BOPT
LB = 128 * KB
def dbg_add(e, off, total, go):
    L = e.uniq('DA')
    e('s_cmp_lg_u32 s27, 0'); e(f's_cbranch_scc1 {L}')
    e('v_mov_b32 v18, 1'); e('s_mov_b64 exec, 1')
    e(f'buffer_atomic_add v18, off, s[68:71], 0 offset:{off} sc0 sc1')
    e('s_waitcnt vmcnt(0)')
    e('v_readfirstlane_b32 s3, v18')
    e(f's_cmp_lg_u32 s3, {total-1}'); e(f's_cbranch_scc1 {L}_n')
    e(f'buffer_store_dword v18, off, s[68:71], 0 offset:{go} sc1')
    e.lab(L + '_n')
    e('s_mov_b64 exec, -1')
    e.lab(L)

def gen_start(e):
    D = 32; F = 64
    e('s_bitcmp1_b32 s2, 2'); e('s_cbranch_scc0 ST_misc')
    srd(e, 44, P_X, 4 * MB)
    e('s_lshr_b32 s23, s2, 3'); e('s_lshl_b32 s23, s23, 2'); e('s_and_b32 s3, s2, 3'); e('s_add_u32 s23, s23, s3')
    e('v_lshrrev_b32 v23, 8, v0')
    e('v_bfe_u32 v24, v0, 4, 4')
    e('v_lshlrev_b32 v25, 11, v24')
    e('v_lshl_add_u32 v25, v23, 3, v25')
    e('s_lshl_b32 s3, s23, 15'); e('s_lshl_b32 s4, s27, 9'); e('s_add_u32 s3, s3, s4')
    for kk in range(8):
        e(f'buffer_load_dwordx2 v[{D+4*kk}:{D+4*kk+1}], v25, s[44:47], s3 offen offset:{kk*64}')
        e(f'buffer_load_dwordx2 v[{D+4*kk+2}:{D+4*kk+3}], v25, s[44:47], s3 offen offset:{kk*64+32}')
    e('v_lshlrev_b32 v26, 6, v24'); e(f'v_add_u32 v26, {LB}, v26')
    e('s_lshl_b32 s3, s27, 4'); e('v_lshl_add_u32 v27, v23, 2, v26'); e('v_add_u32 v27, s3, v27')
    for n in range(32):
        if n % 2 == 0: e(f's_waitcnt vmcnt({15 - n // 2})')
        e(f'v_lshlrev_b32 v{F+2*n}, 16, v{D+n}')
        e(f'v_and_b32 v{F+2*n+1}, 0xffff0000, v{D+n}')
    if BOPT['tstamp'] == 2: tstamp(e)
    A = 28
    def tree(src, n):
        e(f'v_pk_add_f32 v[{A}:{A+1}], v[{src}:{src+1}], v[{src+2}:{src+3}]'); e(f'v_pk_add_f32 v[{A+2}:{A+3}], v[{src+4}:{src+5}], v[{src+6}:{src+7}]')
        for k in range(8, n, 2): t = A + (k & 2); e(f'v_pk_add_f32 v[{t}:{t+1}], v[{t}:{t+1}], v[{src+k}:{src+k+1}]')
    def fold(): e(f'v_pk_add_f32 v[{A}:{A+1}], v[{A}:{A+1}], v[{A+2}:{A+3}]'); e(f'v_add_f32 v{A}, v{A}, v{A+1}')
    def finish(off):
        fold()
        e(f'ds_write_b32 v27, v{A} offset:{off}')
        e('s_waitcnt lgkmcnt(0)'); e('s_barrier')
        for q in range(4): e(f'ds_read_b128 v[{D+4*q}:{D+4*q+3}], v26 offset:{off+16*q}')
        e('s_waitcnt lgkmcnt(0)')
        tree(D, 16); fold()
        e(f'v_mul_f32 v{A}, 0x3a800000, v{A}')
    e(f'buffer_load_dword v21, off, s[68:71], 0 offset:{D_ROT} sc1')
    tree(F, 64)
    finish(0)
    e(f'v_mov_b32 v22, v{A}')
    for n in range(0, 64, 2):
        t = A + (n & 2)
        e(f'v_pk_add_f32 v[24:25], v[{F+n}:{F+n+1}], v[22:23] op_sel_hi:[1,0] neg_lo:[0,1] neg_hi:[0,1]')
        if n < 4: e(f'v_pk_mul_f32 v[{t}:{t+1}], v[24:25], v[24:25]')
        else: e(f'v_pk_fma_f32 v[{t}:{t+1}], v[24:25], v[24:25], v[{t}:{t+1}]')
    finish(1024)
    e(f'v_cvt_pk_bf16_f32 v24, v22, v{A}')
    e('v_lshlrev_b32 v22, 16, v24')
    e(f'v_and_b32 v{A}, 0xffff0000, v24')
    e(f'v_add_f32 v{A}, 0x3727c5ac, v{A}')
    e(f'v_cvt_pk_bf16_f32 v{A}, v{A}, v{A}'); e(f'v_lshlrev_b32 v{A}, 16, v{A}')
    e(f'v_sqrt_f32 v{A}, v{A}'); e('s_nop 0')
    e(f'v_cvt_pk_bf16_f32 v{A}, v{A}, v{A}'); e(f'v_lshlrev_b32 v{A}, 16, v{A}')
    e(f'v_rcp_f32 v{A}, v{A}')
    e('s_waitcnt vmcnt(0)')
    verify_rot(e, issued=True, reg=21)
    e('s_lshl_b32 s3, s23, 10'); e('s_lshl_b32 s4, s27, 20'); e('s_add_u32 s3, s3, s4')
    for n in range(32):
        e(f'v_pk_add_f32 v[24:25], v[{F+2*n}:{F+2*n+1}], v[22:23] op_sel_hi:[1,0] neg_lo:[0,1] neg_hi:[0,1]')
        e('v_cvt_pk_bf16_f32 v25, v24, v25')
        e('v_lshlrev_b32 v24, 16, v25'); e('v_and_b32 v25, 0xffff0000, v25')
        e(f'v_pk_mul_f32 v[24:25], v[24:25], v[{A}:{A+1}] op_sel_hi:[1,0]')
        e(f'v_cvt_pk_bf16_f32 v{D+n}, v24, v25')
        if n % 4 == 3:
            kk = n // 4
            e(f'buffer_store_dwordx4 v[{D+4*kk}:{D+4*kk+3}], v0, s[8:11], s3 offen sc1')
            e(f's_add_u32 s3, s3, {128*KB}')
    if BOPT['tstamp'] == 2: tstamp(e)
    e('s_waitcnt vmcnt(0)'); e('s_barrier')
    if BOPT['tstamp'] == 2: tstamp(e)
    e('s_cmp_ge_u32 s23, 8'); e('s_cbranch_scc1 ST_n0')
    dbg_add(e, D_XN0, 9, D_XGO0)
    e.lab('ST_n0')
    dbg_add(e, D_XN, 192, D_XGO)
    e('s_branch L_sched')
    e.lab('ST_misc')
    verify_rot(e)
    e('s_lshr_b32 s23, s2, 3'); e('s_lshl_b32 s23, s23, 1'); e('s_and_b32 s3, s2, 7'); e(f's_cmp_eq_u32 s3, {MISC[1]}'); e('s_addc_u32 s23, s23, 0')
    for r in range(16): e(f'v_mov_b32 v{32+r}, {hex(SENT)}')
    e('s_lshl_b32 s5, s27, 10'); e('v_add_u32 v22, s5, v0')
    e('s_cmp_ge_u32 s23, 6'); e('s_cbranch_scc1 ST_fill')
    srd(e, 44, P_X + 2, 16 * KB)
    e('s_mov_b32 s3, 0x13'); e('s_bitcmp1_b32 s3, s23'); e('s_cselect_b32 s46, s46, 0')
    e('v_bfe_u32 v18, v22, 4, 3'); e('v_lshlrev_b32 v23, 11, v18')
    e('v_lshrrev_b32 v18, 9, v22'); e('v_lshl_add_u32 v23, v18, 6, v23')
    e('v_bfe_u32 v18, v22, 8, 1'); e('v_lshl_add_u32 v23, v18, 4, v23')
    e('v_bfe_u32 v18, v22, 7, 1'); e('v_lshl_add_u32 v23, v18, 2, v23')
    e('s_and_b32 s4, s23, 1'); e('s_lshl_b32 s4, s4, 10')
    e('s_cmp_eq_u32 s23, 4'); e('s_cselect_b32 s5, 1024, 0')
    for p in range(4):
        e(f's_add_u32 s3, s4, {(p&1)*512}')
        if p >= 2: e('s_add_u32 s3, s3, s5')
        for a_ in range(4): e(f'buffer_load_dword v{48+4*p+a_}, v23, s[44:47], s3 offen offset:{32*(a_&1) + 8*(a_>>1)}')
    e('s_waitcnt vmcnt(0)')
    for r in range(16):
        e(f'v_cmp_eq_u32 vcc, v{32+r}, v{48+r}'); e('s_nop 1'); e(f'v_cndmask_b32 v{32+r}, v{48+r}, -1, vcc')
    e.lab('ST_fill')
    e('s_lshl_b32 s3, s23, 14'); e(f's_add_u32 s3, s3, {WS_STEP}')
    for p in range(4):
        e(f'buffer_store_dwordx4 v[{32+4*p}:{35+4*p}], v22, s[8:11], s3 offen sc1'); e('s_add_u32 s3, s3, 4096')
    e('v_mov_b32 v19, 0'); e('s_lshl_b32 s3, s23, 8'); e(f's_add_u32 s3, s3, {WS_CNT}')
    e('v_lshrrev_b32 v18, 2, v0'); e('buffer_store_dword v19, v18, s[8:11], s3 offen sc1')
    e('s_waitcnt vmcnt(0)'); e('s_barrier')
    e('s_cmp_lg_u32 s23, 0'); e('s_cbranch_scc1 ST_n1')
    dbg_add(e, D_XN0, 9, D_XGO0)
    e.lab('ST_n1')
    dbg_add(e, D_XN, 192, D_XGO)
    e(f's_cmp_eq_u32 s2, {MISC_WG}'); e('s_cbranch_scc1 ST_cal')
    if BOPT['wpf']:
        e('v_lshlrev_b32 v18, 3, v0')
        e('s_lshl_b32 s3, s23, 2'); e('s_add_u32 s3, s3, s27'); e('s_lshl_b32 s3, s3, 1')
        e('s_and_b32 s4, s3, 127'); e('s_lshr_b32 s3, s3, 7'); e('s_lshl_b32 s3, s3, 8'); e('s_add_u32 s3, s3, s4'); e('s_add_u32 s3, s3, 128')
        e('s_lshl_b32 s3, s3, 13'); e('s_add_u32 s4, s3, 8192')
        for P in (P_WQ, P_WK, P_WV):
            srd(e, 44, P, 8 * MB)
            e('buffer_load_dword v200, v18, s[44:47], s3 offen'); e('buffer_load_dword v200, v18, s[44:47], s4 offen')
    e('s_branch L_sched')
    e.lab('ST_cal')
    e('s_cmp_lg_u32 s27, 0'); e('s_cbranch_scc1 ST_mw')
    e('s_mov_b64 exec, 1')
    e('s_mov_b32 s23, 0')
    for k in range(-1, 4):
        for par in ((0,) if k < 0 else (0, 1) if k & 1 else (1, 0)):
            e(f's_mov_b32 s3, {hex(WS_STEP + ST_PR + max(k, 0)*STEP_SZ + 240*KB + par*8*KB + (k&1)*4*KB)}')
            e('s_waitcnt vmcnt(0)')
            e('s_memtime s[4:5]'); e('s_waitcnt lgkmcnt(0)')
            e('buffer_store_dword v19, off, s[8:11], s3 sc1')
            e('s_waitcnt vmcnt(0)')
            e('s_memtime s[6:7]'); e('s_waitcnt lgkmcnt(0)')
            if k >= 0:
                e('s_sub_u32 s6, s6, s4'); e('s_min_u32 s6, s6, 3000')
                e('s_add_u32 s23, s23, s6' if par == 0 else 's_sub_u32 s23, s23, s6')
    e('s_cmp_gt_i32 s23, 0'); e('s_cselect_b32 s3, 3, 2')
    e('s_lshl_b32 s23, s23, 2'); e('s_or_b32 s3, s3, s23')
    e('v_mov_b32 v18, s3')
    e(f'buffer_store_dword v18, off, s[68:71], 0 offset:{D_PAR} sc1')
    e('s_mov_b64 exec, -1')
    e.lab('ST_mw')
    e('s_barrier')
    e('s_branch L_sched')
```

```python
from common import *
T_END, T_QK, T_VV, T_FU, T_FD, T_WO, T_FIN = 0, 1, 2, 3, 4, 5, 6
def desc(t, a=0, b=0, nj4=0, pref=0, mode=0, k0=0, nk=1, p=0, hb=0):
    return t | (nj4 == 1) << 3 | (nj4 == 2) << 6 | hb << 7 | pref << 4 | mode << 5 | a << 8 | b << 12 | k0 << 18 | (nk - 1) << 22 | p << 26
F_A, F_B, F_K0, F_NK, F_P = 0x40008, 0x6000c, 0x40012, 0x40016, 0x5001a
P_X, P_WQ, P_WK, P_WV, P_WO, P_W1, P_W3, P_W2, P_OUT, P_DBG, P_WS = 56, 60, 62, 64, 66, 72, 74, 76, 78, 80, 82
S = 4
RINGM = 0x1ffff
SPIN_MAX = 1 << 16

def acc(NJ, i, j):
    t = i * NJ + j
    return ('v', 32 + 4 * t) if t < 56 else ('a', (t - 56) * 4)
def rr(r, n=4): return f'{r[0]}[{r[1]}:{r[1]+n-1}]'
def wfrag(half, i): return ('a', 32 + half * 16 + i * 4)
def xfrag(NJ, st, j): return ('a', 64 + st * 32 + j * 4)

def load_ptrs(e):
    e('s_load_dwordx4 s[56:59], s[0:1], 0')
    e('s_load_dwordx8 s[60:67], s[0:1], 16')
    e('s_load_dwordx8 s[72:79], s[0:1], 64')
    e('s_load_dwordx4 s[80:83], s[0:1], 96')

def wait_counter(e, offs_sgpr, target, tag, srd_='s[8:11]', slp=8, wg=True, imm=0):
    L = e.uniq('W' + tag)
    if wg: e('s_cmp_lg_u32 s27, 0'); e(f's_cbranch_scc1 {L}_ok')
    e('s_mov_b32 s4, 0')
    e.lab(L)
    e(f'buffer_load_dword v18, off, {srd_}, {offs_sgpr} offset:{imm} sc1')
    e('s_add_u32 s4, s4, 1')
    e(f's_cmp_gt_u32 s4, {SPIN_MAX}')
    e('s_cbranch_scc1 L_abort')
    e('s_waitcnt vmcnt(0)')
    e('v_readfirstlane_b32 s3, v18')
    e(f's_cmp_ge_u32 s3, {target}')
    e(f's_cbranch_scc1 {L}_ok')
    e(f's_sleep {slp}')
    e(f's_branch {L}')
    e.lab(L + '_ok')
    if wg: e('s_barrier')

def signal(e):
    L = e.uniq('SIG')
    e('s_cmp_lg_u32 s27, 0')
    e(f's_cbranch_scc1 {L}')
    e('v_mov_b32 v18, s37')
    e('s_mov_b64 exec, 1')
    e('buffer_atomic_add v18, off, s[8:11], s35 sc1')
    e('s_cmp_eq_u32 s36, 0')
    e(f's_cbranch_scc1 {L}_1')
    e('buffer_atomic_add v18, off, s[8:11], s36 sc1')
    e.lab(L + '_1')
    e('s_mov_b64 exec, -1')
    e.lab(L)
    e('s_mov_b32 s35, 0')

def bulk_init(e):
    e('v_and_b32 v18, 63, v0')
    e('v_lshlrev_b32 v0, 4, v18')
    e('v_lshrrev_b32 v19, 2, v18')
    e('v_and_b32 v20, 7, v19')
    e('v_lshlrev_b32 v19, 8, v19')
    e('v_and_b32 v21, 3, v18')
    e('v_lshl_add_u32 v19, v21, 3, v19')
    e('s_lshl_b32 s3, s29, 2')
    e('v_xor_b32 v20, s3, v20')
    for n in range(4):
        e(f'v_xor_b32 v21, {n}, v20')
        e(f'v_lshl_add_u32 v{2+n}, v21, 5, v19')
    e('v_lshrrev_b32 v19, 4, v18')
    e('s_lshl_b32 s3, s29, 4')
    e('v_add_u32 v16, s3, v19')
    e('v_bfe_u32 v20, v18, 1, 3')
    e('v_xor_b32 v20, v20, v19')
    e('v_and_b32 v21, 1, v18')
    e('v_lshlrev_b32 v21, 4, v21')
    e('v_lshl_add_u32 v17, v20, 5, v21')
    e('s_mov_b32 s16, s8'); e('s_mov_b32 s17, s9'); e('s_mov_b32 s18, s10'); e('s_mov_b32 s19, 0x20000')
    e('s_mov_b32 s12, s8'); e('s_mov_b32 s13, s9'); e('s_mov_b32 s14, 0'); e('s_mov_b32 s15, 0x20000')
    e('s_mov_b32 s35, 0'); e('s_mov_b32 s87, 0')
    if BOPT['tstamp']:
        e('s_lshl_b32 s86, s2, 14'); e('s_lshl_b32 s3, s27, 10'); e('s_add_u32 s86, s86, s3'); e(f's_add_u32 s86, s86, {WS_DBG}'); e('s_mov_b32 s30, 0')

def w_voffsets(e, rs, vmode):
    e(f'v_mul_u32_u24 v18, {rs}, v16')
    e('v_xor_b32 v20, 0x80, v17')
    if vmode:
        e('v_and_b32 v19, 0x80, v17'); e('v_add_u32 v19, v19, v17')
        e('v_add_u32 v12, v18, v19')
        e('v_and_b32 v19, 0x80, v20'); e('v_add_u32 v20, v19, v20')
    else:
        e('v_add_u32 v12, v18, v17')
    d = 4 * rs - 1024
    e('v_add_u32 v13, v18, v20')
    e(f'v_add_u32 v13, {d}, v13')
    e(f'v_add_u32 v14, {2*d}, v12')
    e(f'v_add_u32 v15, {2*d}, v13')

def setup_load(e, dreg, tag):
    L = 'SL' + tag
    e(f's_bfe_u32 s4, {dreg}, {F_A}')
    e(f's_bfe_u32 s5, {dreg}, {F_B}')
    e(f's_bfe_u32 s20, {dreg}, 0x50007'); e('s_lshl_b32 s20, s20, 12')
    e('s_mov_b32 s18, s10')
    e('s_mov_b32 s40, 32')
    e(f's_and_b32 s3, {dreg}, 7')
    e(f's_cmp_eq_u32 s3, {T_VV}'); e(f's_cbranch_scc1 {L}_v')
    e(f's_cmp_eq_u32 s3, {T_FU}'); e(f's_cbranch_scc1 {L}_fu')
    e(f's_cmp_eq_u32 s3, {T_FD}'); e(f's_cbranch_scc1 {L}_fd')
    e(f's_cmp_eq_u32 s3, {T_WO}'); e(f's_cbranch_scc1 {L}_wo')
    e('s_cmp_eq_u32 s28, 0')
    e(f's_cselect_b32 s12, s{P_WQ}, s{P_WK}'); e(f's_cselect_b32 s13, s{P_WQ+1}, s{P_WK+1}')
    e(f's_mov_b32 s14, {8*MB}'); e(f's_mov_b32 s22, {32*8192}')
    e('s_lshl_b32 s21, s5, 8')
    w_voffsets(e, 8192, 0)
    e(f's_branch {L}_done')
    e.lab(L + '_v')
    e(f's_mov_b32 s12, s{P_WV}'); e(f's_mov_b32 s13, s{P_WV+1}')
    e(f's_mov_b32 s14, {8*MB}'); e(f's_mov_b32 s22, {32*8192}')
    e('s_lshl_b32 s21, s5, 9'); e('s_lshl_b32 s3, s28, 8'); e('s_add_u32 s21, s21, s3')
    w_voffsets(e, 8192, 0)
    e(f's_branch {L}_done')
    e.lab(L + '_fu')
    e('s_cmp_eq_u32 s28, 0')
    e(f's_cselect_b32 s12, s{P_W1}, s{P_W3}'); e(f's_cselect_b32 s13, s{P_W1+1}, s{P_W3+1}')
    e(f's_mov_b32 s14, {7*MB}'); e(f's_mov_b32 s22, {32*7168}')
    e('s_lshl_b32 s21, s5, 8')
    w_voffsets(e, 7168, 0)
    e(f's_branch {L}_done')
    e.lab(L + '_fd')
    e(f's_mov_b32 s12, s{P_W2}'); e(f's_mov_b32 s13, s{P_W2+1}')
    e(f's_mov_b32 s14, {7*MB}'); e(f's_mov_b32 s22, {32*2048}')
    e('s_lshl_b32 s21, s5, 9'); e('s_lshl_b32 s3, s28, 8'); e('s_add_u32 s21, s21, s3')
    e(f's_add_u32 s20, s20, {WS_H}')
    e('s_mov_b32 s40, 112')
    w_voffsets(e, 2048, 0)
    e(f's_branch {L}_done')
    e.lab(L + '_wo')
    e(f's_mov_b32 s12, s{P_WO}'); e(f's_mov_b32 s13, s{P_WO+1}')
    e(f's_mov_b32 s14, {8*MB}'); e(f's_mov_b32 s22, {32*2048}')
    e('s_lshl_b32 s21, s5, 9'); e('s_lshl_b32 s3, s28, 8'); e('s_add_u32 s21, s21, s3')
    e(f's_bfe_u32 s3, {dreg}, {F_K0}')
    e('s_lshl_b32 s4, s3, 19'); e('s_add_u32 s21, s21, s4')
    e('s_lshl_b32 s4, s3, 20'); e('s_add_u32 s20, s20, s4')
    e(f's_add_u32 s20, s20, {WS_O}')
    e(f's_bfe_u32 s40, {dreg}, {F_NK}'); e('s_add_u32 s40, s40, 1'); e('s_lshl_b32 s40, s40, 3')
    w_voffsets(e, 2048, 0)
    e.lab(L + '_done')

BOPT = dict(tstamp=0, wpf=0, deep=0, cw=1, go0=1, al=0)
def tstamp(e):
    if not BOPT['tstamp']: return
    e('s_memrealtime s[84:85]'); e('s_waitcnt lgkmcnt(0)')
    e('v_mov_b32 v18, s84'); e('v_mov_b32 v19, s30')
    e('s_mov_b64 exec, 1'); e('buffer_store_dwordx2 v[18:19], off, s[8:11], s86'); e('s_mov_b64 exec, -1')
    e('s_add_u32 s86, s86, 8')

def next_desc(e):
    tstamp(e)
    e('s_mov_b32 s30, s31')
    e('s_add_u32 s38, s38, 4'); e('s_addc_u32 s39, s39, 0')
    e('s_load_dword s31, s[38:39], 0')

def dep_wait(e):
    L = e.uniq('DW')
    e('s_cmp_lg_u32 s87, 0'); e(f's_cbranch_scc1 {L}_x')
    if BOPT['go0']:
        e('s_and_b32 s3, s30, 0xf47'); e(f's_cmp_gt_u32 s3, {0x40 + T_VV}'); e(f's_cbranch_scc1 {L}_all')
        e('s_bitcmp1_b32 s30, 6'); e(f's_cbranch_scc0 {L}_all')
        wait_counter(e, '0', 9, 'x0', 's[68:71]', 2, imm=D_XN0)
        e(f's_branch {L}')
        e.lab(L + '_all')
    wait_counter(e, '0', 1, 'xn', 's[68:71]', 2, imm=D_XGO)
    e('s_mov_b32 s87, 1')
    e.lab(L + '_x')
    e('s_and_b32 s3, s30, 7')
    e(f's_cmp_lt_u32 s3, {T_FD}'); e(f's_cbranch_scc1 {L}')
    e(f's_bfe_u32 s7, s30, {F_A}')
    e(f's_cmp_eq_u32 s3, {T_FD}'); e(f's_cbranch_scc0 {L}_o')
    e('s_lshl_b32 s7, s7, 7'); e(f's_add_u32 s7, s7, {WS_CNT + C_FU*128}')
    wait_counter(e, 's7', 28, 'dep', slp=8)
    e(f's_branch {L}')
    e.lab(L + '_o')
    e('s_cmp_lg_u32 s27, 0'); e(f's_cbranch_scc1 {L}_b')
    e(f's_bfe_u32 s5, s30, {F_K0}'); e('s_lshl_b32 s5, s5, 8'); e(f's_add_u32 s5, s5, {WS_CNT + C_O*128}')
    e('s_lshr_b32 s3, s40, 2'); e('s_bfm_b64 exec, s3, 0')
    e('v_lshlrev_b32 v19, 3, v0'); e('s_mov_b32 s4, 0')
    e.lab(L + '_p')
    e('buffer_load_dword v18, v19, s[8:11], s5 offen sc1')
    e('s_add_u32 s4, s4, 1'); e(f's_cmp_gt_u32 s4, {SPIN_MAX}'); e('s_cbranch_scc1 L_abort')
    e('s_waitcnt vmcnt(0)')
    e('v_cmp_ge_u32 vcc, s7, v18')
    e(f's_cbranch_vccz {L}_q')
    e('v_cmp_gt_u32 vcc, s7, v18')
    e(f's_cbranch_vccz {L}_r')
    e('s_sleep 64')
    e.lab(L + '_r')
    e('s_sleep 3'); e(f's_branch {L}_p')
    e.lab(L + '_q')
    e('s_mov_b64 exec, -1')
    e.lab(L + '_b')
    e('s_barrier')
    e.lab(L)
    tstamp(e)

def gen_gemm(e, NJ):
    G = f'G{NJ}'
    S = {2: 8, 4: 6 if BOPT['deep'] else 4, 8: 4}[NJ]
    WOFF = 16384 if S == 4 else NJ * 2048
    SL = WOFF + 16384
    def wrap(r): return [f's_add_u32 {r}, {r}, {SL}', f's_and_b32 {r}, {r}, {RINGM}'] if S == 4 else [f's_add_u32 {r}, {r}, {SL}', f's_cmp_eq_u32 {r}, {S*SL}', f's_cselect_b32 {r}, 0, {r}']
    NX = NJ // 2
    ND = NX + 4
    NM = 4 * NJ
    def dmaX(i): return f'buffer_load_dwordx4 v11, s[16:19], s20 offen offset:{i*1024} sc1 lds'
    def dmaW(i): return f'buffer_load_dwordx4 v{12+i}, s[12:15], s21 offen offset:{i*1024} lds'
    preX = ['s_add_u32 m0, s24, s41']; postX = [f's_add_u32 s20, s20, {128*KB}']
    preW = ['s_add_u32 m0, s24, s42']
    postW = ['s_add_u32 s21, s21, s22'] + wrap('s24')
    def rw(half):
        r = []
        for i in range(4):
            b = wfrag(half, i)[1]
            r += [f'ds_read_b64_tr_b16 a[{b}:{b+1}], v{7+i} offset:{WOFF+half*8192}', f'ds_read_b64_tr_b16 a[{b+2}:{b+3}], v{7+i} offset:{WOFF+half*8192+4096}']
        return r
    def rx(st): return [f'ds_read_b128 {rr(xfrag(NJ,st,j))}, v6 offset:{j*1024}' for j in range(NJ)]
    adv = ['\n'.join(wrap('s25')), 'v_add_u32 v6, s25, v1'] + [f'v_add_u32 v{7+i}, s25, v{2+i}' for i in range(4)]
    def rdB(st):
        a = rw(0); b = rx(st); return a[:2] + b + a[2:]
    def phase(half, st, rd, pre, dmas, post, extra, first=False, head=()):
        fill = [[] for _ in range(NM)]
        rpg = {8: 1, 4: 2, 2: 3}[NJ]
        for n, x in enumerate(rd): fill[n // rpg].append(x)
        nr = -(-len(rd) // rpg)
        for n, x in enumerate(extra): fill[min(NM - 1, nr + n // rpg)].append(x)
        if NJ == 8: pos = (18, 22, 26, 30)
        elif NJ == 4: pos = (8, 10, 12, 14) if len(dmas) == 4 else (9, 13)
        else: pos = (3, 4, 5, 6) if len(dmas) == 4 else (5,)
        fill[pos[0] - 1] += pre
        for i, x in enumerate(dmas): fill[pos[i]].append(x)
        fill[NM - 1] += post
        e.many(head)
        k = 0
        for i in range(4):
            for j in range(NJ):
                ac = rr(acc(NJ, half * 4 + i, j))
                e(f'v_mfma_f32_16x16x32_bf16 {ac}, {rr(wfrag(half,i))}, {rr(xfrag(NJ,st,j))}, {"0" if first else ac}')
                e.many(fill[k]); k += 1
    DX = [dmaX(i) for i in range(NX)]; DW = [dmaW(i) for i in range(4)]
    e.lab(G + '_cold')
    e(f's_mul_i32 s41, s27, {NX*1024}')
    e('s_lshl_b32 s42, s27, 12'); e(f's_add_u32 s42, s42, {WOFF}')
    e('v_add_u32 v11, s41, v0')
    e(f's_mul_i32 s3, s28, {NJ*1024}')
    e('v_add_u32 v1, s3, v0')
    setup_load(e, 's30', G + 'c')
    e('s_mov_b32 s24, 0'); e('s_mov_b32 s25, 0')
    for t in range(S - 1):
        e.many(preW); e('s_nop 0'); e.many(DW); e.many(postW)
    dep_wait(e)
    for t in range(S):
        e(f's_add_u32 m0, s41, {t*SL}'); e('s_nop 0'); e.many(DX); e.many(postX)
    e('v_mov_b32 v6, v1')
    for i in range(4): e(f'v_mov_b32 v{7+i}, v{2+i}')
    e(f's_waitcnt vmcnt({NX})')
    e('s_barrier')
    e.many(rw(0) + rx(0))
    e.lab(G + '_task')
    e(f's_sub_u32 s32, s40, {S+1}')
    e('s_sub_u32 s33, s40, 1')
    e('s_cmp_lg_u32 s35, 0')
    e(f's_cselect_b32 s43, {S-1}, s32')
    bar = [f's_waitcnt lgkmcnt(0) vmcnt({ND*(S-2)})', 's_barrier']
    phase(0, 0, rw(1), preW, DW, postW, adv, first=True, head=['s_waitcnt lgkmcnt(0)'])
    if S == 8: e('s_cmp_eq_u32 s40, 8'); e('s_cselect_b32 s14, 0, s14'); e('s_cselect_b32 s18, 0, s18')
    e.many(bar)
    phase(1, 0, rdB(1), preX, DX, postX, [], first=True)
    phase(0, 1, rw(1), preW, DW, postW + ['s_mov_b32 s26, 1'], adv, head=['s_waitcnt lgkmcnt(0)'])
    e.raw('.p2align 6')
    e.lab(G + '_loop')
    e.many(bar)
    phase(1, 1, rdB(0), preX, DX, postX + ['s_cmp_eq_u32 s26, s33'], [])
    e(f's_cbranch_scc1 {G}_epi')
    phase(0, 0, rw(1), preW, DW, postW + ['s_cmp_eq_u32 s26, s43'], adv, head=['s_waitcnt lgkmcnt(0)'])
    e(f's_cbranch_scc1 {G}_event')
    e.lab(G + '_back')
    e.many(bar)
    phase(1, 0, rdB(1), preX, DX, postX, [])
    phase(0, 1, rw(1), preW, DW, postW + ['s_add_u32 s26, s26, 2'], adv, head=['s_waitcnt lgkmcnt(0)'])
    e(f's_branch {G}_loop')
    e.lab(G + '_event')
    e('s_cmp_eq_u32 s26, s32')
    e(f's_cbranch_scc1 {G}_switch')
    signal(e)
    e('s_mov_b32 s43, s32')
    e(f's_branch {G}_back')
    e.lab(G + '_switch')
    e('s_bitcmp1_b32 s31, 4')
    e(f's_cbranch_scc1 {G}_sw1')
    e('s_mov_b32 s14, 0'); e('s_mov_b32 s18, 0')
    e(f's_branch {G}_back')
    e.lab(G + '_sw1')
    setup_load(e, 's31', G + 's')
    e(f's_branch {G}_back')
    e.lab(G + '_epi')
    e(f's_bfe_u32 s4, s30, {F_A}')
    e(f's_bfe_u32 s5, s30, {F_B}')
    e('s_bfe_u32 s6, s30, 0x50007'); e('s_lshl_b32 s6, s6, 2')
    e(f's_mul_i32 s3, s28, {NJ}')
    e('s_add_u32 s6, s6, s3')
    e('s_lshl_b32 s35, s4, 7')
    e(f's_add_u32 s35, s35, {WS_CNT}')
    e('s_mov_b32 s37, 1')
    e('s_and_b32 s3, s30, 7')
    if NJ == 8:
        e(f's_cmp_eq_u32 s3, {T_FU}'); e(f's_cbranch_scc1 {G}_fu')
    else:
        e(f's_cmp_ge_u32 s3, {T_FD}'); e(f's_cbranch_scc1 {G}_fd')
    def pack(m, j):
        a0 = acc(NJ, 2 * m, j); a1 = acc(NJ, 2 * m + 1, j)
        R0 = a0[1]
        if a1[0] == 'a':
            R1 = 20 + 4 * (j & 1)
            for q in range(4): e(f'v_accvgpr_read_b32 v{R1+q}, a{a1[1]+q}')
        else: R1 = a1[1]
        e(f'v_cvt_pk_bf16_f32 v{R0}, v{R0}, v{R0+1}')
        e(f'v_cvt_pk_bf16_f32 v{R0+1}, v{R0+2}, v{R0+3}')
        e(f'v_cvt_pk_bf16_f32 v{R0+2}, v{R1}, v{R1+1}')
        e(f'v_cvt_pk_bf16_f32 v{R0+3}, v{R1+2}, v{R1+3}')
        return R0
    def sig2(base):
        e(f's_add_u32 s35, s35, {base*128}')
        if NJ == 8: e('s_add_u32 s36, s35, 128')
        else: e('s_mov_b32 s36, 0')
    sig2(C_KV)
    if NJ > 2: e('s_mov_b32 s37, 2')
    e('s_lshr_b32 s6, s6, 1'); e(f's_mul_i32 s6, s6, {24*KB}')
    e(f's_mul_i32 s5, s5, {1536*KB}'); e('s_add_u32 s6, s6, s5')
    e(f's_add_u32 s5, s5, {16*KB}')
    e(f's_cmp_eq_u32 s3, {T_VV}')
    e('s_cselect_b32 s5, s5, 0')
    e(f's_mov_b32 s7, {8*KB}'); e(f's_cmov_b32 s7, {1536*KB}')
    e('s_add_u32 s6, s6, s5')
    e('s_lshl_b32 s3, s29, 11'); e('s_add_u32 s6, s6, s3')
    e(f's_add_u32 s6, s6, {WS_QKV}')
    for m in range(4):
        if m == 2: e('s_add_u32 s6, s6, s7')
        for j in range(NJ):
            R = pack(m, j)
            e(f's_add_u32 s3, s6, {(j>>1)*24*KB + (j&1)*4096}')
            e(f'buffer_store_dwordx4 v[{R}:{R+3}], v0, s[8:11], s3 offen offset:{(m&1)*1024} sc1')
    e.lab(G + '_done')
    e('s_bitcmp1_b32 s31, 4')
    e('s_cbranch_scc0 L_drain')
    next_desc(e)
    e(f's_branch {G}_task')
    if NJ == 8:
        e.lab(G + '_fu')
        sig2(C_FU)
        e('s_lshl_b32 s5, s5, 2'); e('s_lshl_b32 s3, s29, 1'); e('s_add_u32 s5, s5, s3')
        e('s_lshl_b32 s5, s5, 17'); e('s_lshl_b32 s6, s6, 10'); e('s_add_u32 s6, s6, s5')
        e(f's_add_u32 s6, s6, {WS_H}')
        e('s_mov_b32 s7, 0xbfb8aa3b')
        for m in range(2):
            for j in range(NJ):
                for ii in range(2):
                    i = 2 * m + ii
                    g = acc(NJ, i, j)[1]; ua = acc(NJ, i + 4, j)
                    if ua[0] == 'a':
                        u = 28
                        for q in range(4): e(f'v_accvgpr_read_b32 v{u+q}, a{ua[1]+q}')
                    else: u = ua[1]
                    T = 20 + 4 * ii
                    for q in range(4): e(f'v_mul_f32 v{T+q}, s7, v{g+q}')
                    for q in range(4): e(f'v_exp_f32 v{T+q}, v{T+q}')
                    for q in range(0, 4, 2): e(f'v_pk_mul_f32 v[{g+q}:{g+q+1}], v[{g+q}:{g+q+1}], v[{u+q}:{u+q+1}]')
                    for q in range(4): e(f'v_add_f32 v{T+q}, 1.0, v{T+q}')
                    for q in range(4): e(f'v_rcp_f32 v{T+q}, v{T+q}')
                for ii in range(2):
                    g = acc(NJ, 2 * m + ii, j)[1]; T = 20 + 4 * ii
                    for q in range(0, 4, 2): e(f'v_pk_mul_f32 v[{g+q}:{g+q+1}], v[{g+q}:{g+q+1}], v[{T+q}:{T+q+1}]')
                R = pack(m, j)
                if j % 4 == 0: e(f's_add_u32 s3, s6, {m*128*KB + j*1024}')
                e(f'buffer_store_dwordx4 v[{R}:{R+3}], v0, s[8:11], s3 offen offset:{(j&3)*1024} sc1')
        e(f's_branch {G}_done')
    else:
        e.lab(G + '_fd')
        e('s_lshl_b32 s35, s4, 2'); e('s_add_u32 s35, s35, s5'); e('s_lshl_b32 s35, s35, 7'); e(f's_add_u32 s35, s35, {WS_CNT + C_Y*128}')
        e('s_mov_b32 s36, 0'); e(f's_mov_b32 s37, {NJ//2}')
        e('s_lshl_b32 s6, s6, 15')
        e('s_lshl_b32 s5, s5, 9'); e('s_add_u32 s6, s6, s5')
        e('s_lshl_b32 s5, s29, 7'); e('s_add_u32 s6, s6, s5')
        e('v_lshrrev_b32 v20, 4, v0')
        e('v_and_b32 v21, 15, v20'); e('v_lshlrev_b32 v21, 11, v21')
        e('v_bfe_u32 v22, v20, 4, 1'); e('v_lshl_add_u32 v21, v22, 5, v21')
        e('v_lshrrev_b32 v22, 5, v20'); e('v_lshl_add_u32 v21, v22, 4, v21')
        srd(e, 44, P_X, 4 * MB); srd(e, 48, P_WS, WS_SIZE)
        e('s_mov_b32 s7, s6')
        e(f's_bfe_u32 s5, s30, {F_P}'); e('s_lshl_b32 s5, s5, 22'); e(f's_add_u32 s5, s5, {WS_Y}')
        e(f's_cmp_eq_u32 s3, {T_FD}'); e(f's_cbranch_scc1 {G}_fd2')
        e('s_mov_b32 s46, 0')
        e('s_bitcmp1_b32 s30, 5'); e(f's_cbranch_scc0 {G}_fd2')
        wait_counter(e, 's35', 2, 'y0')
        srd(e, 44, P_WS, WS_SIZE); srd(e, 48, P_OUT, 4 * MB)
        e(f's_add_u32 s7, s6, {WS_Y}'); e('s_mov_b32 s5, 0')
        e.lab(G + '_fd2')
        e('s_add_u32 s6, s6, s5')
        for j in range(NJ):
            e(f's_add_u32 s3, s7, {j*32768}')
            for ip in range(4):
                Y = 160 + 4 * (j * 4 + ip)
                e(f'buffer_load_dwordx4 v[{Y}:{Y+3}], v21, s[44:47], s3 offen offset:{(ip>>1)*256+(ip&1)*64} sc1')
        for j in range(NJ):
            for ip in range(4):
                R0 = acc(NJ, 2 * ip, j)[1]; R1 = acc(NJ, 2 * ip + 1, j)[1]
                for q in range(4): e(f'v_permlane16_swap_b32 v{R0+q}, v{R1+q}')
        for j in range(NJ):
            e(f's_add_u32 s3, s6, {j*32768}')
            e(f's_waitcnt vmcnt({4*NJ-4})')
            for ip in range(4):
                R0 = acc(NJ, 2 * ip, j)[1]; R1 = acc(NJ, 2 * ip + 1, j)[1]; Y = 160 + 4 * (j * 4 + ip)
                for q in range(4):
                    R = (R0, R0 + 2, R1, R1 + 2)[q]
                    e(f'v_lshlrev_b32 v22, 16, v{Y+q}'); e(f'v_and_b32 v23, 0xffff0000, v{Y+q}')
                    e(f'v_pk_add_f32 v[22:23], v[22:23], v[{R}:{R+1}]')
                    e(f'v_cvt_pk_bf16_f32 v{Y+q}, v22, v23')
                e(f'buffer_store_dwordx4 v[{Y}:{Y+3}], v21, s[48:51], s3 offen offset:{(ip>>1)*256+(ip&1)*64} sc1')
        e(f's_branch {G}_done')

def gen_fin(e):
    e.lab('L_fin')
    e(f's_bfe_u32 s4, s30, {F_A}'); e(f's_bfe_u32 s5, s30, {F_B}'); e(f's_bfe_u32 s33, s30, {F_K0}')
    e('s_lshl_b32 s6, s4, 18'); e('s_lshl_b32 s5, s5, 14'); e('s_add_u32 s6, s6, s5')
    e('s_lshl_b32 s5, s27, 12'); e('s_add_u32 s6, s6, s5'); e('s_lshl_b32 s5, s33, 9'); e('s_add_u32 s6, s6, s5')
    e('v_and_b32 v20, 0x200, v0'); e('v_mul_u32_u24 v20, 3, v20'); e('v_add_u32 v20, v20, v0')
    e(f's_bfe_u32 s40, s30, {F_P}')
    e('s_lshl_b32 s7, s4, 2'); e('s_add_u32 s7, s7, s33'); e('s_lshl_b32 s7, s7, 7'); e(f's_add_u32 s7, s7, {WS_CNT + C_Y*128}')
    e('s_lshl_b32 s41, s40, 1')
    wait_counter(e, 's7', 's41', 'fin', slp=2)
    srd(e, 48, P_OUT, 4 * MB)
    e(f's_bfe_u32 s26, s30, {F_NK}')
    e.lab('FIN_u')
    e(f's_add_u32 s7, s6, {WS_Y}')
    for k in range(17):
        e(f's_cmp_gt_u32 s40, {k}'); e('s_cselect_b32 s18, s10, 0')
        e(f'buffer_load_dwordx4 v[{64+4*k}:{67+4*k}], v20, s[16:19], s7 offen sc1')
        e(f's_add_u32 s7, s7, {4*MB}')
    for k in range(17):
        e(f's_waitcnt vmcnt({16-k})')
        for d in range(4):
            R = 64 + 4 * k + d
            if k == 0: e(f'v_lshlrev_b32 v{32+2*d}, 16, v{R}'); e(f'v_and_b32 v{33+2*d}, 0xffff0000, v{R}')
            else:
                e(f'v_lshlrev_b32 v22, 16, v{R}'); e(f'v_and_b32 v23, 0xffff0000, v{R}')
                e(f'v_pk_add_f32 v[{32+2*d}:{33+2*d}], v[{32+2*d}:{33+2*d}], v[22:23]')
    for d in range(4): e(f'v_cvt_pk_bf16_f32 v{40+d}, v{32+2*d}, v{33+2*d}')
    e('buffer_store_dwordx4 v[40:43], v20, s[48:51], s6 offen')
    e(f's_add_u32 s6, s6, {16*KB}')
    e('s_sub_u32 s26, s26, 1'); e('s_cbranch_scc0 FIN_u')
    e('s_branch L_sched')

def gen_sched(e):
    e.lab('L_drain')
    e('s_waitcnt vmcnt(0) lgkmcnt(0)')
    e('s_barrier')
    signal(e)
    e.lab('L_sched')
    e('s_waitcnt lgkmcnt(0)')
    next_desc(e)
    e('s_and_b32 s3, s30, 7')
    e(f's_cmp_eq_u32 s3, {T_END}'); e('s_cbranch_scc1 L_exit')
    e(f's_cmp_eq_u32 s3, {T_FIN}'); e('s_cbranch_scc1 L_fin')
    e('s_bitcmp1_b32 s30, 3')
    e('s_cbranch_scc1 G4_cold')
    e('s_bitcmp1_b32 s30, 6')
    e('s_cbranch_scc1 G2_cold')
    e('s_branch G8_cold')
```

```python
from common import *
from k_bulk import w_voffsets, wait_counter, P_X, P_WQ, P_WK, P_WV, P_WO, SPIN_MAX
MEMB = 128 * KB
KVB = 144 * KB
MB_ = MEMB + 4096
NSTEP = 64
SMF = 'v_smfmac_f32_16x16x64_bf16'
MF = 'v_mfma_f32_16x16x32_bf16'
MF16 = 'v_mfma_f32_16x16x16_bf16'
CSC = 0x3e0293ee
OPT = dict(stamp=0, sleepL=0, sleepF=0, vmpos=61, flagpos=6, rfirst=0, dbgout=0, vwarm=0, vm2=0, p2=0, vdir=48, qlds=0, lgap=8, vmlate=1, rpf=48, warm1=0, warm2=0, f3pos=5, oend=0, wnt=0, par=-1, fs=2, pp=4, dlyL=16, dlyR=32, dlyF=0, f2pos=8, lfirst=1, ahead=6, pace=8, st2=0)

class Seq:
    def __init__(s, e): s.e = e; s.l = []; s.v = []; s.ld = 0; s.vd = 0
    def L(s, ins, tag=None): s.e(ins); s.l.append(tag)
    def V(s, ins, tag=None): s.e(ins); s.v.append(tag)
    def need(s, ltag=None, vtag=None):
        w = []
        if ltag is not None:
            i = len(s.l) - s.l[::-1].index(ltag)
            if i > s.ld: n = min(15, len(s.l) - i); w.append(f'lgkmcnt({n})'); s.ld = len(s.l) - n
        if vtag is not None:
            i = len(s.v) - s.v[::-1].index(vtag)
            if i > s.vd: n = min(63, len(s.v) - i); w.append(f'vmcnt({n})'); s.vd = len(s.v) - n
        if w: s.e('s_waitcnt ' + ' '.join(w))
    def emit(s, items):
        for it in items:
            if it[0] == 'L': s.L(it[1], it[2])
            elif it[0] == 'V': s.V(it[1], it[2] if len(it) > 2 else None)
            elif it[0] == 'NL': s.need(ltag=it[1])
            elif it[0] == 'NV': s.need(vtag=it[1])
            elif it[0] == 'LAB': s.e.lab(it[1])
            else: s.e(it[1])

def wreg(rb): return f'a[{8*rb}:{8*rb+7}]' if rb < 32 else f'v[{128+8*(rb-32)}:{128+8*(rb-32)+7}]'
def wreg2(rb, o): return (f'a[{8*rb+o}:{8*rb+o+1}]' if rb < 32 else f'v[{128+8*(rb-32)+o}:{128+8*(rb-32)+o+1}]')

SREG = [84, 86, 88, 90, 92, 94, 96, 56, 58, 60, 62, 64, 66]
def stamp_ins(slot):
    r = SREG[slot]
    return f's_memrealtime s[{r}:{r+1}]' if OPT['stamp'] == 2 else f's_memtime s[{r}:{r+1}]'
def stamp(e, slot):
    if OPT['stamp'] in (1, 2): e(stamp_ins(slot))
def stamp_flush(e):
    if OPT['stamp'] not in (1, 2): return
    e('s_waitcnt lgkmcnt(0)')
    for k, r in enumerate(SREG + [99]): e(f'v_writelane_b32 v21, s{r}, {k}')
    e('v_lshrrev_b32 v20, 2, v0')
    e('s_mov_b64 exec, 0x3fff')
    e('buffer_store_dword v21, v20, s[8:11], s98 offen')
    e('s_mov_b64 exec, -1')
    e('s_add_u32 s98, s98, 256')

def ldx4(r, vo, so, imm): return f'buffer_load_dwordx4 v[{r}:{r+3}], {vo}, s[8:11], {so} offen offset:{imm} sc1'

def check(e, regs):
    if len(regs) == 4:
        e(f'v_max3_u32 v14, v{regs[0]}, v{regs[1]}, v{regs[2]}'); e(f'v_max_u32 v14, v14, v{regs[3]}')
    else:
        e(f'v_max3_u32 v14, v{regs[0]}, v{regs[1]}, v{regs[2]}')
        e(f'v_max3_u32 v15, v{regs[3]}, v{regs[4]}, v{regs[5]}')
        i = 6; t = 14
        while i + 1 < len(regs):
            e(f'v_max3_u32 v{t}, v{t}, v{regs[i]}, v{regs[i+1]}'); i += 2; t = 29 - t
        e('v_max_u32 v14, v14, v15')
    e(f'v_cmp_eq_u32 vcc, {hex(SENT)}, v14')

DEFER = []
def poll(e, items, tag, sleep=0, issued=False, mid=(), first=0, cnt=False):
    L = e.uniq('P' + tag)
    if not issued:
        for it in items: e(ldx4(*it))
    e(f's_waitcnt vmcnt({first})')
    e.lab(L)
    check(e, [it[0] + k for it in items for k in range(4)])
    e.many(mid)
    e(f's_cbranch_vccnz {L}_re')
    r = [f'{L}_re:', 's_add_u32 s40, s40, 1', f's_cmp_gt_u32 s40, {SPIN_MAX}', 's_cbranch_scc1 L_abort']
    if sleep: r.append(f's_sleep {sleep}')
    if cnt and OPT['stamp']: r.append(f's_add_u32 s99, s99, {(0, 0x10000, 0x1000000, 1)[cnt]}')
    r += ['s_mov_b64 exec, vcc'] + [ldx4(*it) for it in items] + ['s_mov_b64 exec, -1', 's_waitcnt vmcnt(0)', f's_branch {L}']
    DEFER.append(r)
def flush_defer(e):
    for r in DEFER:
        e.raw(r[0])
        for x in r[1:]:
            if x.endswith(':'): e.raw(x)
            else: e(x)
    DEFER.clear()

LOC = [1]
def local_store(e, ins):
    for x in ins: e(x + (' sc1' if x.startswith('buffer') and not LOC[0] else ''))

def common_init(e):
    e('s_and_b32 s30, s34, 15'); e('s_lshl_b32 s3, s33, 4'); e('s_add_u32 s30, s30, s3')
    e('v_and_b32 v30, 63, v0')
    e('v_lshlrev_b32 v0, 4, v30')
    e('v_lshrrev_b32 v19, 4, v30')
    e('s_lshl_b32 s3, s29, 4')
    e('v_add_u32 v16, s3, v19')
    e('v_bfe_u32 v20, v30, 1, 3'); e('v_xor_b32 v20, v20, v19')
    e('v_and_b32 v21, 1, v30'); e('v_lshlrev_b32 v21, 4, v21')
    e('v_lshl_add_u32 v17, v20, 5, v21')
    e('s_mov_b32 s15, 0x20000'); e(f's_mov_b32 s14, {8*MB}')
    e('v_lshrrev_b32 v29, 2, v30'); e('v_and_b32 v28, 7, v29'); e('v_lshlrev_b32 v29, 8, v29')
    e('v_and_b32 v21, 3, v30'); e('v_lshl_add_u32 v29, v21, 3, v29')
    e('s_lshl_b32 s41, s27, 12')

ROTLD = f'buffer_load_dword v31, off, s[68:71], 0 offset:{D_ROT} sc1'
def census(e):
    verify_rot(e, issued=True)
    e('s_getreg_b32 s47, hwreg(HW_REG_XCC_ID, 0, 3)'); e('s_lshl_b32 s47, s47, 3')
    e('s_lshl_b64 s[4:5], 1, s47')
    e('v_mov_b32 v18, s4'); e('v_mov_b32 v19, s5'); e('s_lshl_b32 s3, s33, 3')
    e('s_cmp_eq_u32 s27, 0'); e('s_cselect_b32 s4, 1, 0'); e('s_mov_b32 s5, 0')
    e('s_mov_b64 exec, s[4:5]')
    e(f'buffer_atomic_add_x2 v[18:19], off, s[68:71], s3 offset:{D_CH} sc1')
    e('s_mov_b64 exec, -1')

def common_regs(e):
    e('v_and_b32 v18, 8, v30'); e('v_cmp_eq_u32 vcc, 0, v18')
    e('v_mov_b32 v1, 0xeeee'); e('v_mov_b32 v18, 0x4444')
    e('v_cndmask_b32 v1, v1, v18, vcc')
    e(f's_add_u32 s3, s41, {MEMB}'); e('v_add_u32 v5, s3, v0')
    e('s_mov_b32 s51, 0x3f80'); e('s_mov_b32 s52, 0x3f800000')
    e('s_lshl_b32 s53, s33, 11'); e(f's_add_u32 s53, s53, {ST_FL}')
    e('s_cmp_eq_u32 s27, 3'); e('s_cselect_b32 s20, 1, 0'); e('s_mov_b32 s21, 0')
    e('s_mov_b32 s31, 0')
    e(f's_mov_b32 s32, {WS_STEP}'); e(f's_mov_b32 s25, {WS_STEP + 3*STEP_SZ}'); e(f's_mov_b32 s26, {WS_STEP + STEP_SZ}')
    e('s_lshl_b32 s3, s33, 14'); e('s_add_u32 s48, s3, s41'); e(f's_xor_b32 s49, s48, {16*KB}')
    e('s_and_b32 s3, s49, 0x6000'); e('s_add_u32 s49, s49, s3')
    e(f's_add_u32 s48, s48, {ST_PL}')
    e('s_lshl_b32 s50, s30, 11')
    e('s_lshl_b32 s22, s33, 11'); e(f's_add_u32 s22, s22, {ST_F2}')
    if OPT['stamp']:
        e('s_lshl_b32 s98, s2, 14'); e('s_lshl_b32 s3, s27, 6'); e('s_add_u32 s98, s98, s3'); e(f's_add_u32 s98, s98, {WS_DBG}'); e('s_mov_b32 s99, 0')

def handshake(e, code0, code1):
    L = e.uniq('HS')
    e('s_getpc_b64 s[4:5]')
    e.lab(L + '_pc')
    e(f's_add_u32 s4, s4, {code0}-{L}_pc'); e('s_addc_u32 s5, s5, 0')
    e('v_lshlrev_b32 v18, 2, v0'); e('v_add_u32 v18, s41, v18')
    e(f'v_min_u32 v18, {code1}-{code0}-4, v18')
    e('global_load_dword v19, v18, s[4:5]')
    e('s_mov_b32 s40, 0'); e('s_lshl_b32 s7, s33, 3')
    e.lab(L)
    e(f'buffer_load_dwordx2 v[20:21], off, s[68:71], s7 offset:{D_CH} sc1')
    e(f'buffer_load_dwordx2 v[22:23], off, s[68:71], 0 offset:{D_PAR} sc1')
    e('s_add_u32 s40, s40, 1'); e(f's_cmp_gt_u32 s40, {SPIN_MAX}'); e('s_cbranch_scc1 L_abort')
    e('s_waitcnt vmcnt(0)')
    e('v_readfirstlane_b32 s4, v20'); e('v_readfirstlane_b32 s5, v21'); e('v_readfirstlane_b32 s6, v22'); e('v_readfirstlane_b32 s3, v23')
    e('s_cmp_eq_u32 s3, 0'); e(f's_cbranch_scc1 {L}_s')
    e('s_cmp_eq_u32 s6, 0'); e(f's_cbranch_scc1 {L}_s')
    e('s_add_u32 s3, s4, s5'); e('s_mul_i32 s3, s3, 0x01010101'); e('s_lshr_b32 s3, s3, 24')
    e('s_cmp_eq_u32 s3, 32'); e(f's_cbranch_scc1 {L}_ok')
    e.lab(L + '_s')
    e('s_sleep 4'); e(f's_branch {L}')
    e.lab(L + '_ok')
    e('s_lshr_b64 s[4:5], s[4:5], s47'); e('s_and_b32 s4, s4, 0xff')
    e('s_cmp_eq_u32 s4, 32'); e('s_cselect_b32 s37, 1, 0')
    e('s_and_b32 s6, s6, 1'); e('s_lshl_b32 s6, s6, 13')
    if OPT['par'] >= 0: e(f's_mov_b32 s6, {OPT["par"]*8192}')
    e('s_add_u32 s49, s49, s6')
    e('s_xor_b32 s45, s33, 1'); e('s_lshl_b32 s45, s45, 7'); e('s_add_u32 s45, s45, s6'); e(f's_add_u32 s45, s45, {ST_F3}'); e('s_sub_u32 s45, s45, s22')

def probe(e, vaddr, so, tag, mask=None, sleep=0):
    L = e.uniq('Q' + tag)
    e('s_cmp_lg_u32 s27, 3'); e(f's_cbranch_scc1 {L}_w')
    if mask is not None: e(f's_mov_b64 exec, {mask}')
    if OPT['pp']:
        N = OPT['pp']; regs = [14, 32, 33, 34, 35, 36][:N]
        for r in regs[:-1]:
            e(f'buffer_load_dword v{r}, {vaddr}, s[8:11], {so} offen sc1'); e(f's_nop {min(15, 60 // N)}')
        e.lab(L)
        for k in range(N):
            e(f'buffer_load_dword v{regs[k-1]}, {vaddr}, s[8:11], {so} offen sc1')
            e(f's_waitcnt vmcnt({N-1})')
            e(f'v_cmp_eq_u32 vcc, {hex(SENT)}, v{regs[k]}')
            e(f's_cbranch_vccz {L}_ok')
        e('s_add_u32 s40, s40, 1'); e(f's_cmp_gt_u32 s40, {SPIN_MAX}'); e('s_cbranch_scc1 L_abort')
        e(f's_branch {L}')
        e.lab(L + '_ok')
    else:
        e.lab(L)
        if sleep: e(f's_sleep {sleep}')
        e(f'buffer_load_dword v14, {vaddr}, s[8:11], {so} offen sc1')
        e('s_add_u32 s40, s40, 1'); e(f's_cmp_gt_u32 s40, {SPIN_MAX}'); e('s_cbranch_scc1 L_abort')
        e('s_waitcnt vmcnt(0)')
        e(f'v_cmp_eq_u32 vcc, {hex(SENT)}, v14')
        e(f's_cbranch_vccnz {L}')
    if mask is not None: e('s_mov_b64 exec, -1')
    e.lab(L + '_w')
    e('s_barrier')

def gather_mem(e, q, extra=(), isP=True):
    e('s_add_u32 s42, s32, s48'); e('s_add_u32 s43, s32, s49')
    e('v_lshrrev_b32 v15, 2, v0' if OPT['fs'] == 2 else f'v_lshlrev_b32 v15, {OPT["fs"]-4}, v0')
    e('s_add_u32 s3, s32, s22')
    if OPT['f3pos'] >= 0: e('v_writelane_b32 v15, s45, 16')
    stamp(e, 0)
    direct = (not isP) and OPT['vdir'] >= 0
    if not direct: probe(e, 'v15', 's3', 'l', '0x1ffff' if OPT['f3pos'] >= 0 else '0xffff', sleep=OPT['sleepL'])
    dL = OPT['dlyL'] if isP else max(0, OPT['vdir']); dR = OPT['dlyR'] if isP else 8
    for k in range(dL // 16): e('s_nop 15')
    if dL % 16: e(f's_nop {dL % 16}')
    stamp(e, 1)
    rf = 2 if direct else OPT['rfirst']
    if rf:
        R = [(96 + 4 * p, 'v0', 's43', p * 1024) for p in range(4)]
        Lc = [(48 + 4 * p, 'v0', 's42', p * 1024) for p in range(4)]
        for it in R: e(ldx4(*it))
        if rf == 1: e('s_waitcnt vmcnt(3)')
        first, second, c1, c2 = R, Lc, 1, 2
    else:
        Lc = [(96 + 4 * p, 'v0', 's42', p * 1024) for p in range(4)]
        R = [(48 + 4 * p, 'v0', 's43', p * 1024) for p in range(4)]
        for it in Lc: e(ldx4(*it))
        first, second, c1, c2 = Lc, R, 2, 1
    if rf != 1:
        for k in range(dR // 16): e('s_nop 15')
        if dR % 16: e(f's_nop {dR % 16}')
    for it in second: e(ldx4(*it))
    nx = len(extra)
    G = e.uniq('GA')
    poll(e, first, 'a', issued=True, first=4, cnt=c1)
    unp = []
    for d in range(16): unp += [f'v_lshlrev_b32 v{80+2*d}, 16, v{96+d}', f'v_and_b32 v{81+2*d}, 0xffff0000, v{96+d}']
    e.many(unp)
    e.many(extra)
    e.lab(G + '_u')
    e.raw('.p2align 3')
    def cv(p):
        for k in range(4): e(f'v_cvt_pk_bf16_f32 v{32+4*p+k}, v{80+8*p+2*k}, v{81+8*p+2*k}')
        q.L(f'ds_write_b128 v5, v[{32+4*p}:{35+4*p}] offset:{p*1024}', 'AW')
    for p in range(4):
        e(f's_waitcnt vmcnt({3 - p + nx})'); e('s_nop 0')
        if p == 3: stamp(e, 2)
        for k in range(4):
            d = 4 * p + k
            e(f'v_dot2_f32_bf16 v{80+2*d}, v{48+d}, s51, v{80+2*d}'); e(f'v_dot2_f32_bf16 v{81+2*d}, v{48+d}, s52, v{81+2*d}')
        R = 48 + 4 * p
        e(f'v_max3_u32 v14, v{R}, v{R+1}, v{R+1 if p == 0 else 14}'); e(f'v_max3_u32 v14, v{R+2}, v{R+3}, v14')
        if p == 3: e(f'v_cmp_eq_u32 vcc, {hex(SENT)}, v14')
        cv(p)
    e(f's_cbranch_vccnz {G}_re')
    e2 = E(); e2.n = e.n + 1000
    if OPT['stamp']: e2(f's_add_u32 s99, s99, {(0, 0x10000, 0x1000000)[c2]}')
    for it in first: e2(ldx4(*it))
    poll(e2, second, 'b', issued=True)
    e2.many(unp)
    e2(f's_branch {G}_u')
    DEFER.append([f'{G}_re:'] + [x for x in e2.L])

def softmax(e, pv, nt, D, hook=None, out=None):
    e('v_max3_f32 v21, v21, v16, v17'); e('v_max3_f32 v20, v20, v18, v19'); e('v_max_f32 v20, v20, v21')
    def cross(op):
        r = []
        for sw in ('v_permlane32_swap_b32', 'v_permlane16_swap_b32'):
            r += ['v_mov_b32 v21, v20', 's_nop 1', f'{sw} v20, v21', f'{op} v20, v20, v21']
        return r
    e.many(cross('v_max_f32'))
    if hook: hook(3)
    S = [24, 25, 26, 27, 28, 29, 30, 31, 16, 17, 18, 19]
    for r in S[::2]: e(f'v_pk_add_f32 v[{r}:{r+1}], v[{r}:{r+1}], v[20:21] op_sel_hi:[1,0] neg_lo:[0,1] neg_hi:[0,1]')
    for r in S[::2]: e(f'v_pk_mul_f32 v[{r}:{r+1}], v[{r}:{r+1}], s[100:101]')
    if hook: hook(4)
    for r in S: e(f'v_exp_f32 v{r}, v{r}')
    if hook: hook(5)
    e('v_pk_add_f32 v[20:21], v[24:25], v[26:27]'); e('v_pk_add_f32 v[22:23], v[28:29], v[30:31]')
    for d in range(4): e(f'v_cvt_pk_bf16_f32 v{24+d}, v{24+2*d}, v{25+2*d}')
    e('v_pk_add_f32 v[20:21], v[20:21], v[16:17]'); e('v_pk_add_f32 v[22:23], v[22:23], v[18:19]')
    for d in range(2): e(f'v_cvt_pk_bf16_f32 v{16+d}, v{16+2*d}, v{17+2*d}')
    rest = ['v_pk_add_f32 v[20:21], v[20:21], v[22:23]', 'v_add_f32 v20, v20, v21'] + cross('v_add_f32') + ['v_rcp_f32 v20, v20']
    k = 0
    for i, m in enumerate(pv):
        e(m)
        if hook and i == 0: hook(6)
        if hook and i == 2: hook(7)
        if i < len(pv) - 1 and k < 2: e(rest[k]); k += 1
    e.many(rest[k:])
    e('s_nop 0')
    for r in range(D, D + 4 * nt, 2): e(f'v_pk_mul_f32 v[{r}:{r+1}], v[{r}:{r+1}], v[20:21] op_sel_hi:[1,0]')
    for pr in range(nt // 2):
        for d in range(4): e(f'v_cvt_pk_bf16_f32 v{(D+8*pr if out is None else out+4*pr)+d}, v{D+8*pr+2*d}, v{D+8*pr+2*d+1}')

def gen_P(e):
    e.lab('L_chainP')
    if OPT['stamp'] == 3: e('s_memrealtime s[90:91]')
    common_init(e)
    e('s_cmp_eq_u32 s28, 0')
    e(f's_cselect_b32 s12, s{P_WQ}, s{P_WK}'); e(f's_cselect_b32 s13, s{P_WQ+1}, s{P_WK+1}')
    w_voffsets(e, 8192, 0)
    e('s_lshl_b32 s21, s30, 8')
    e('s_lshl_b32 s3, s27, 1'); e('v_xor_b32 v18, s3, v28')
    e('s_lshl_b32 s3, s27, 15'); e('v_add_u32 v19, s3, v29')
    e('v_lshl_add_u32 v2, v18, 5, v19'); e('v_xor_b32 v3, 32, v2')
    def load(n):
        tau, hf = n >> 1, n & 1
        for Q in range(4):
            e(f's_add_u32 m0, s41, {Q*32768 + hf*16384}')
            e(f's_add_u32 s20, s21, {((4*Q+tau)*64 + 32*hf)*8192}')
            for i in range(4): e(f'buffer_load_dwordx4 v{12+i}, s[12:15], s20 offen offset:{i*1024}{OPT["wnt"]*" nt"} lds')
    rot = lambda r: [f'v_add_u32 v{r}, 0x8000, v{r}', f'v_and_b32 v{r}, 0x1ffff, v{r}']
    load(0); load(1)
    for n in range(6):
        tau, hf = n >> 1, n & 1
        e('s_waitcnt vmcnt(16)')
        if n == 1: census(e)
        e('s_barrier')
        for q in range(4):
            for tl in range(4):
                for u in range(2):
                    e(f'ds_read_b64_tr_b16 {wreg2((q*3+tau)*4+tl, 4*hf+2*u)}, v{2+(tl&1)} offset:{hf*16384+(tl>>1)*8192+u*4096}')
            e.many(rot(2) + rot(3))
        e('s_waitcnt lgkmcnt(0)'); e('s_barrier')
        if n == 0: e(ROTLD)
        load(n + 2)
    e('s_waitcnt vmcnt(0)'); e('s_barrier')
    e('s_lshl_b32 s3, s27, 15'); e('v_add_u32 v4, s3, v0')
    for hf in range(2):
        for q in range(4):
            for tl in range(4):
                for u in range(2):
                    R = 64 + 4 * (4 * q + tl) + 2 * u
                    e(f'ds_read_b64_tr_b16 v[{R}:{R+1}], v{2+(tl&1)} offset:{hf*16384+(tl>>1)*8192+u*4096}')
            e.many(rot(2) + rot(3))
        e('s_waitcnt lgkmcnt(0)'); e('s_barrier')
        for n in range(16): e(f'ds_write_b128 v4, v[{64+4*n}:{67+4*n}] offset:{hf*16384+n*1024}')
        e('s_waitcnt lgkmcnt(0)')
    e('v_mov_b32 v2, v4')
    common_regs(e)
    e('v_lshrrev_b32 v18, 5, v30'); e('v_lshlrev_b32 v6, 9, v18')
    e('v_and_b32 v18, 15, v30'); e('v_lshl_add_u32 v6, v18, 5, v6')
    e('v_bfe_u32 v18, v30, 4, 1'); e('v_lshl_add_u32 v6, v18, 3, v6')
    e('s_lshl_b32 s3, s27, 10'); e(f's_add_u32 s3, s3, {MB_}'); e('v_add_u32 v6, s3, v6')
    e('v_lshlrev_b32 v7, 3, v30'); e(f'v_add_u32 v7, {MB_}, v7')
    e(f'v_add_u32 v8, {KVB}, v0')
    e('v_and_b32 v18, 3, v30'); e('v_lshlrev_b32 v9, 8, v18')
    e('v_lshrrev_b32 v18, 2, v30'); e('v_lshl_add_u32 v9, v18, 4, v9')
    e('v_and_b32 v18, 1, v30'); e('v_lshlrev_b32 v18, 7, v18'); e('v_xor_b32 v9, v9, v18')
    e('s_lshl_b32 s3, s27, 10'); e(f's_add_u32 s3, s3, {KVB + 8192}'); e('v_add_u32 v9, s3, v9')
    e('v_xor_b32 v3, 0x400, v9')
    e('v_and_b32 v18, 31, v30'); e('v_lshlrev_b32 v10, 4, v18')
    e('s_lshl_b32 s3, s27, 9'); e('v_add_u32 v10, s3, v10')
    e('v_xor_b32 v13, 0x200, v10')
    e('v_and_b32 v18, 7, v30'); e('v_lshlrev_b32 v11, 4, v18')
    e('v_lshrrev_b32 v18, 4, v30'); e('v_lshl_add_u32 v11, v18, 7, v11')
    e('s_lshl_b32 s3, s27, 9'); e('v_add_u32 v11, s3, v11')
    e('s_lshl_b32 s3, s34, 4'); e('s_add_u32 s53, s53, s3'); e('s_lshl_b32 s3, s27, 2'); e('s_add_u32 s53, s53, s3'); e('s_mov_b32 s20, 1')
    for r in range(4): e(f'v_mov_b32 v{108+r}, {hex(SENT)}')
    def slots(sc):
        for k in range(4):
            e(f's_add_u32 s3, s50, {WS_STEP + k*STEP_SZ + ST_OM}'); e(f's_add_u32 s4, s53, {WS_STEP + k*STEP_SZ}')
            e(f'buffer_store_dwordx4 v[108:111], v11, s[8:11], s3 offen{sc}')
            e('s_mov_b64 exec, s[20:21]'); e(f'buffer_store_dword v108, off, s[8:11], s4{sc}'); e('s_mov_b64 exec, -1')
    handshake(e, 'CP1_top', 'CP0_top')
    e('s_cmp_eq_u32 s37, 0'); e('s_cbranch_scc1 CP_nl')
    for k in range(4):
        e(f's_add_u32 s3, s50, {WS_STEP + k*STEP_SZ + ST_OM}'); e(f's_add_u32 s4, s53, {WS_STEP + k*STEP_SZ}')
        e('buffer_load_dword v18, v11, s[8:11], s3 offen sc1'); e('buffer_load_dword v18, off, s[8:11], s4 sc1')
    e('s_waitcnt vmcnt(0)')
    slots('')
    e.lab('CP_nl')
    e('s_lshl_b32 s3, s29, 4')
    e('v_and_b32 v18, 15, v30'); e('v_add_u32 v18, s3, v18')
    e('v_lshrrev_b32 v19, 4, v30'); e('v_lshlrev_b32 v19, 2, v19'); e('v_sub_u32 v18, v18, v19')
    for T in range(2):
        for r in range(4):
            m = 68 + 2 * (4 * T + r)
            e(f'v_cmp_le_i32 s[{m}:{m+1}], {16*T+r}, v18')
    e(f's_mul_i32 s35, s30, {1536*KB}'); e(f's_add_u32 s35, s35, {WS_QKV}')
    e('s_lshl_b32 s36, s30, 2'); e('s_add_u32 s36, s36, s27'); e('s_lshl_b32 s36, s36, 17')
    e('s_lshl_b32 s3, s29, 10'); e('s_add_u32 s36, s36, s3')
    e(f's_mov_b32 s100, {hex(CSC)}'); e(f's_mov_b32 s101, {hex(CSC)}')
    e(f's_add_u32 s46, s41, {KVB}')
    def prefetch(nxt):
        g = [['s_mov_b32 m0, s46', 's_add_u32 s5, s35, s41', f's_add_u32 s5, s5, {8192 + nxt*24*KB}', 's_lshl_b32 s4, s28, 7', 'v_lshrrev_b32 v15, 1, v0', 'v_and_b32 v15, s4, v15', 'v_xor_b32 v15, v15, v0']]
        g += [[f'buffer_load_dwordx4 v15, s[8:11], s5 offen offset:{i*1024} sc1 lds'] for i in range(4)]
        g += [['s_lshr_b32 s5, s41, 1', 's_add_u32 s5, s5, s35', f's_add_u32 s5, s5, {nxt*24*KB}', 'v_lshlrev_b32 v15, 3, v0'],
              ['s_mov_b64 exec, 0xffff', 'buffer_load_dword v14, v15, s[8:11], s5 offen sc1', 's_mov_b64 exec, -1'],
              [f's_add_u32 s5, s31, {nxt+1}', 's_lshr_b32 s5, s5, 2', 's_lshl_b32 s5, s5, 7', f's_add_u32 s5, s5, {WS_CNT + C_KV*128}'],
              ['buffer_load_dword v12, off, s[8:11], s5 sc1']]
        return g
    e(f's_mov_b32 s7, {WS_CNT + C_KV*128}')
    wait_counter(e, 's7', 96, 'kv0', slp=4)
    for g in prefetch(0): e.many(g)
    e('s_mov_b32 s16, s8'); e('s_mov_b32 s17, s9'); e('s_mov_b32 s18, 0'); e('s_mov_b32 s19, 0x20000'); e('s_mov_b32 s38, 0'); e('s_mov_b32 s39, 0')
    e('s_cmp_eq_u32 s27, 0'); e('s_cselect_b32 s23, 4, -1')
    if OPT['stamp'] == 3: e('s_memrealtime s[92:93]'); e('s_waitcnt lgkmcnt(0)')
    e('s_cmp_eq_u32 s37, 0'); e('s_cbranch_scc1 CP0_top')
    for loc in (1, 0):
        LOC[0] = loc
        (P_loop2 if OPT['p2'] else P_loop)(e, f'CP{loc}', prefetch)

def P_loop(e, X, prefetch):
    e.raw('.p2align 6')
    e.lab(X + '_top')
    e('s_mov_b32 s40, 0')
    q = Seq(e)
    def wrd(n):
        B = 64 + 8 * (n & 1)
        return [(f'ds_read_b128 v[{B+4*hf}:{B+4*hf+3}], v2 offset:{hf*16384+n*1024}', f'W{n}') for hf in range(2)]
    for n in range(2):
        for x, t in wrd(n): q.L(x, t)
    for r in range(16, 32, 2): e(f'v_mov_b64 v[{r}:{r+1}], 0')
    e(f'v_add_u32 v4, 4096, v5'); e(f'v_and_b32 v4, {hex(MEMB + 0x3fff)}, v4')
    e('s_add_u32 s44, s32, s50'); e(f's_add_u32 s54, s44, {ST_OM}'); e(f's_add_u32 s44, s44, {ST_VM}')
    e('s_add_u32 s55, s32, s53')
    if OPT['qlds']: e('s_lshl_b32 s24, s27, 11'); e(f's_add_u32 m0, s24, {MEMB + 8192}'); e('s_add_u32 s24, s24, s35')
    else: e('s_lshl_b32 s24, s29, 12'); e('s_add_u32 s24, s24, s35')
    OST = [f'buffer_store_dwordx4 v[{112+4*pr}:{115+4*pr}], v0, s[16:19], s{38+pr} offen sc1' for pr in range(2)]
    if OPT['qlds']: QL = ['s_lshl_b32 s3, s29, 12', f's_add_u32 s3, s3, {MEMB + 8192}', 'v_add_u32 v15, s3, v0'] + [f'ds_read_b128 v[{112+4*ks}:{115+4*ks}], v15 offset:{ks*1024}' for ks in range(4)]
    else: QL = [ldx4(112 + 4 * ks, 'v0', 's24', ks * 1024) for ks in range(4)]
    gather_mem(e, q)
    fill = [[] for _ in range(64)]; pre = [[] for _ in range(64)]
    fill[0].append(('V', OST[0])); fill[1].append(('V', OST[1]))
    for n in range(2, 16):
        for k, (x, t) in enumerate(wrd(n)): fill[4 * n - 5 + k].append(('L', x, t))
    for qq in range(1, 4):
        base = 16 * (qq - 1)
        if qq == 1: fill[2] += [('NL', 'AW'), ('X', 's_barrier')]
        for p in range(4):
            R = 32 + 16 * (qq & 1) + 4 * p
            fill[base + ((2, 2, 5, 6) if qq == 1 else (1, 2, 5, 6))[p]].append(('L', f'ds_read_b128 v[{R}:{R+3}], v4 offset:{p*1024}', f'A{qq}'))
        if qq < 3: fill[base + 9] += [('X', 'v_add_u32 v4, 4096, v4')]; fill[base + 10] += [('X', f'v_and_b32 v4, {hex(MEMB + 0x3fff)}, v4')]
        pre[16 * qq].append(('NL', f'A{qq}'))
    pre[48] += [('X', 's_barrier')]
    fill[41] += [('X', 'v_lshlrev_b32 v4, 22, v0')]; fill[42] += [('X', 'v_ashrrev_i32 v4, 8, v4')]; fill[45] += [('X', 'v_xor_b32 v4, -1, v4')]; fill[46] += [('X', 'v_and_b32 v4, 0xff800000, v4')]
    VT = [f'ds_read_b64_tr_b16 v[{64+4*n+2*t}:{65+4*n+2*t}], {"v9" if n < 2 else "v3"} offset:{t*4096+(n&1)*8}' for n in range(4) for t in range(2)]
    for ks in range(4): fill[(13, 14, 29, 30)[ks]].append(('L', f'ds_read_b128 v[{80+4*ks}:{83+4*ks}], v8 offset:{ks*1024+4096}', 'K1'))
    for ks in range(4): fill[(49, 50, 53, 54)[ks]].append(('L', f'ds_read_b128 v[{32+4*ks}:{35+4*ks}], v8 offset:{ks*1024}', 'K0'))
    VM = [(96, 'v10', 's44', 0), (100, 'v13', 's44', 0)]
    def post(a, d, off, tag):
        return [('X', f'v_permlane32_swap_b32 v{a+r}, v{a+4+r}') for r in range(4)] + \
               [('X', f'v_pk_add_f32 v[{a}:{a+1}], v[{a}:{a+1}], v[{a+4}:{a+5}]'), ('X', f'v_pk_add_f32 v[{a+2}:{a+3}], v[{a+2}:{a+3}], v[{a+6}:{a+7}]'),
                ('X', f'v_cvt_pk_bf16_f32 v{d}, v{a}, v{a+1}'), ('X', f'v_cvt_pk_bf16_f32 v{d+1}, v{a+2}, v{a+3}'),
                ('L', f'ds_write_b64 v6, v[{d}:{d+1}] offset:{off}', tag)]
    if OPT['stamp'] in (1, 2) and not OPT['st2']:
        pre[0].insert(0, ('X', stamp_ins(7))); fill[2].append(('X', stamp_ins(8)))
        pre[16].append(('X', stamp_ins(9))); pre[32].append(('X', stamp_ins(10))); pre[48].append(('X', stamp_ins(11))); fill[63].append(('X', stamp_ins(12)))
    if OPT['qlds']:
        for i in range(2): fill[57 + i].append(('V', f'buffer_load_dwordx4 v0, s[8:11], s24 offen offset:{i*1024} sc1 lds'))
    pq = post(16, 20, 0, 'MQ')
    fill[58].append(('X', 's_nop 1'))
    for k, it in enumerate(pq[:4]): fill[59 + k].append(it)
    k = 0
    for qq in range(4):
        for tl in range(4):
            for kp in range(4):
                q.emit(pre[k])
                A = 32 + 16 * (qq & 1) + 4 * kp
                if kp < 3: B = wreg((qq * 3 + kp) * 4 + tl)
                else:
                    n = 4 * qq + tl; q.need(ltag=f'W{n}'); b = 64 + 8 * (n & 1); B = f'v[{b}:{b+7}]'
                e(f'{SMF} v[{16+4*tl}:{19+4*tl}], v[{A}:{A+3}], {B}, v1')
                q.emit(fill[k]); k += 1
    q.emit(pq[4:])
    minit = [f'v_mov_b32 v{16+r}, v4' for r in range(4)]
    e.many(minit)
    q.emit(post(24, 22, 16, 'MK'))
    if not OPT['vmlate']:
        for it in VM: e(ldx4(*it))
    q.need(ltag='MK')
    e('s_barrier')
    for ks in range(4):
        for u in range(2): q.L(f'ds_read_b64_tr_b16 v[{48+4*ks+2*u}:{49+4*ks+2*u}], v7 offset:{ks*1024+u*512}', f'X{ks}')
    def mf(D, A, B, ks, z=True): e(f'{MF} v[{D}:{D+3}], v[{A+4*ks}:{A+4*ks+3}], v[{B+4*ks}:{B+4*ks+3}], {"0" if ks == 0 and z else f"v[{D}:{D+3}]"}')
    def flag(pos):
        if OPT['st2'] and pos >= 1: stamp(e, min(12, 6 + pos))
        if pos == 5: e('s_waitcnt lgkmcnt(4)')
        if pos == 5 and OPT['vmlate']: poll(e, VM, 'vm', issued=True, cnt=3)
        if OPT['flagpos'] == pos: local_store(e, ['s_mov_b64 exec, s[20:21]', 'buffer_store_dword v1, off, s[8:11], s55', 's_mov_b64 exec, -1'])
    stamp(e, 3)
    if OPT['vmlate'] == 1:
        for it in VM: e(ldx4(*it))
    for ks in range(4):
        q.need(ltag=f'X{ks}'); mf(24, 32, 48, ks)
        if OPT['vmlate'] == 2 and ks >= 2: e(ldx4(*VM[ks - 2]))
        mf(28, 80, 48, ks)
    flag(0)
    for ks in range(4):
        mf(16, 48, 48, ks, False)
        q.L(VT[2*ks], 'VT'); q.L(VT[2*ks+1], 'VT')
        if ks == 1: flag(1)
    xmax = ['v_max3_f32 v20, v24, v25, v26', 'v_max3_f32 v21, v27, v28, v29', 'v_max3_f32 v20, v20, v30, v31']
    if not OPT['vmlate']: poll(e, VM, 'vm', issued=True, mid=xmax, cnt=3)
    else: e('v_mov_b32 v15, 0'); e.many(xmax)
    e(f's_cmp_eq_u32 s31, {NSTEP-1}'); e(f's_cbranch_scc1 {X}_last')
    def pvl(nt, D):
        return [f'{MF} v[{D+4*n}:{D+4*n+3}], v[{64+4*n}:{67+4*n}], v[24:27], 0' for n in range(nt)] + \
               [f'{MF16} v[{D+4*n}:{D+4*n+3}], v[{96+2*n}:{97+2*n}], v[16:17], v[{D+4*n}:{D+4*n+3}]' for n in range(nt)]
    softmax(e, pvl(2, 104), 2, 104, flag)
    e('s_mov_b32 exec_lo, 0x00ff00ff'); e('s_mov_b32 exec_hi, 0x00ff00ff')
    local_store(e, ['buffer_store_dwordx4 v[104:107], v11, s[8:11], s54 offen'])
    stamp(e, 4)
    e('s_waitcnt lgkmcnt(0)')
    e('s_barrier')
    e('s_mov_b64 exec, -1'); e.many(QL); e('s_mov_b32 exec_lo, 0x00ff00ff'); e('s_mov_b32 exec_hi, 0x00ff00ff')
    for r in range(4): e(f'v_mov_b32 v{108+r}, {hex(SENT)}')
    e('s_add_u32 s3, s25, s50'); e(f's_add_u32 s3, s3, {ST_OM}'); e('s_add_u32 s4, s25, s53')
    local_store(e, ['buffer_store_dwordx4 v[108:111], v11, s[8:11], s3 offen', 's_mov_b64 exec, s[20:21]', 'buffer_store_dword v108, off, s[8:11], s4'])
    e('s_mov_b64 exec, -1')
    e('s_cmp_lg_u32 s31, s23'); e(f's_cbranch_scc1 {X}_ns')
    e('s_add_u32 s23, s23, 4'); e('s_lshr_b32 s3, s31, 2'); e('v_mov_b32 v15, s3'); e('s_lshl_b32 s3, s30, 7'); e(f's_add_u32 s3, s3, {WS_CNT + C_O*128}')
    e('s_mov_b64 exec, 1'); e('buffer_store_dword v15, off, s[8:11], s3 sc1'); e('s_mov_b64 exec, -1')
    e.lab(X + '_ns')
    e('v_readfirstlane_b32 s3, v12')
    e('s_nop 0')
    e('s_cmp_ge_u32 s3, 96'); e(f's_cbranch_scc1 {X}_rdy')
    e('s_add_u32 s7, s31, 1'); e('s_lshr_b32 s7, s7, 2'); e('s_lshl_b32 s7, s7, 7'); e(f's_add_u32 s7, s7, {WS_CNT + C_KV*128}')
    wait_counter(e, 's7', 96, 'kv', wg=False)
    e.lab(X + '_rdy')
    def xscores(pf, wait):
        e.many(minit)
        e('v_mov_b32 v22, 0xff800000')
        for ee in range(8): e(f'v_cndmask_b32 v{24+ee}, v22, 0, s[{68+2*ee}:{69+2*ee}]')
        e('s_waitcnt lgkmcnt(0)' if OPT['qlds'] else f's_waitcnt vmcnt({wait})'); e('s_nop 0')
        pf = list(pf)
        for D, A, ks in [(d, a_, ks) for ks in range(4) for d, a_ in ((24, 32), (28, 80))] + [(16, 48, ks) for ks in range(4)]:
            mf(D, A, 112, ks, False)
            if pf: e.many(pf.pop(0))
    xscores(prefetch(1), 2)
    e(f's_branch {X}_x')
    e.lab(X + '_last')
    if OPT['vmlate']: poll(e, VM, 'vm', issued=True)
    e('s_barrier')
    e.many(QL); e('s_waitcnt lgkmcnt(0)')
    xscores([], 0)
    e.lab(X + '_x')
    for k in range(5): e('v_mov_b32 v15, 0')
    e.many(xmax)
    softmax(e, pvl(4, 32), 4, 32, out=112)
    e(f's_add_u32 s38, s36, {WS_O}'); e(f's_xor_b32 s39, s36, {128*KB}'); e(f's_add_u32 s39, s39, {WS_O}')
    e('s_mov_b32 s18, s10')
    e('s_add_u32 s36, s36, 2048')
    e('s_add_u32 s31, s31, 1'); e('s_mov_b32 s25, s32'); e('s_mov_b32 s32, s26'); e(f's_add_u32 s26, s26, {STEP_SZ}'); e('s_and_b32 s26, s26, 0xfffff'); e(f's_or_b32 s26, s26, {WS_STEP}'); e(f's_add_u32 s35, s35, {24*KB}')
    stamp(e, 5)
    stamp_flush(e)
    e(f's_cmp_lt_u32 s31, {NSTEP}'); e(f's_cbranch_scc1 {X}_top')
    e.many(OST)
    if OPT['stamp'] == 3:
        e('s_memrealtime s[94:95]'); e('s_waitcnt lgkmcnt(0)')
        for k, r in enumerate((99, 90, 92, 94)): e(f'v_mov_b32 v{20+k}, s{r}')
        e('buffer_store_dwordx4 v[20:23], off, s[8:11], s98')
        if OPT['dbgout']:
            e('s_load_dwordx2 s[4:5], s[0:1], 96'); e('s_sub_u32 s92, s92, s90'); e('s_sub_u32 s94, s94, s90'); e('s_waitcnt lgkmcnt(0)')
            for k, r in enumerate((92, 94, 99, 8)): e(f'v_mov_b32 v{24+k}, s{r}')
            e('s_lshr_b32 s3, s30, 4'); e('s_lshl_b32 s3, s3, 4'); e('s_add_u32 s3, s3, 32'); e('v_mov_b32 v28, s3')
            e('s_and_b32 s3, s30, 15'); e('s_or_b32 s3, s3, s27'); e('s_cmp_eq_u32 s3, 0'); e('s_cselect_b32 s6, 1, 0'); e('s_mov_b32 s7, 0')
            e('s_mov_b64 exec, s[6:7]'); e('global_store_dwordx4 v28, v[24:27], s[4:5]'); e('s_mov_b64 exec, -1')
    e('s_waitcnt vmcnt(0)'); e('s_barrier')
    e('s_cmp_lg_u32 s27, 0'); e('s_cbranch_scc1 L_exit')
    e('s_lshl_b32 s3, s30, 7'); e(f's_add_u32 s3, s3, {WS_CNT + C_O*128}')
    e('v_mov_b32 v18, 16'); e('s_mov_b64 exec, 1'); e('buffer_store_dword v18, off, s[8:11], s3 sc1')
    e('s_endpgm')
    flush_defer(e)

def P_loop2(e, X, prefetch):
    e.raw('.p2align 6')
    e.lab(X + '_top')
    e('s_mov_b32 s40, 0')
    q = Seq(e)
    ORD = [(qq, tl) for qq in range(2) for tl in range(4)] + [(2, 0), (2, 1), (3, 0), (3, 1), (2, 2), (2, 3), (3, 2), (3, 3)]
    ACC = (24, 28, 16, 20)
    def wrd(sl):
        n = 4 * ORD[sl][0] + ORD[sl][1]; B = 64 + 8 * (sl & 1)
        return [(f'ds_read_b128 v[{B+4*hf}:{B+4*hf+3}], v2 offset:{hf*16384+n*1024}', f'W{sl}') for hf in range(2)]
    for n in range(2):
        for x, t in wrd(n): q.L(x, t)
    for r in range(16, 32, 2): e(f'v_mov_b64 v[{r}:{r+1}], 0')
    e(f'v_add_u32 v4, 4096, v5'); e(f'v_and_b32 v4, {hex(MEMB + 0x3fff)}, v4')
    e('s_add_u32 s44, s32, s50'); e(f's_add_u32 s54, s44, {ST_OM}'); e(f's_add_u32 s44, s44, {ST_VM}')
    e('s_add_u32 s55, s32, s53')
    e('s_lshl_b32 s24, s29, 12'); e('s_add_u32 s24, s24, s35')
    OST = [f'buffer_store_dwordx4 v[{112+4*pr}:{115+4*pr}], v0, s[16:19], s{38+pr} offen sc1' for pr in range(2)]
    QL = [ldx4(96 + 4 * ks, 'v0', 's24', ks * 1024) for ks in range(4)]
    gather_mem(e, q)
    fill = [[] for _ in range(64)]; pre = [[] for _ in range(64)]
    fill[0].append(('V', OST[0])); fill[1].append(('V', OST[1]))
    for n in range(2, 16):
        for k, (x, t) in enumerate(wrd(n)): fill[4 * n - 5 + k].append(('L', x, t))
    APOS = {1: (2, 2, 5, 6), 2: (17, 18, 21, 22), 3: (31, 32, 33, 34)}
    fill[2] += [('NL', 'AW'), ('X', 's_barrier')]
    for qq in range(1, 4):
        for p in range(4):
            R = 32 + 16 * (qq & 1) + 4 * p
            fill[APOS[qq][p]].append(('L', f'ds_read_b128 v[{R}:{R+3}], v4 offset:{p*1024}', f'A{qq}'))
        if qq < 3: fill[16 * qq - 7] += [('X', 'v_add_u32 v4, 4096, v4')]; fill[16 * qq - 6] += [('X', f'v_and_b32 v4, {hex(MEMB + 0x3fff)}, v4')]
        pre[(0, 16, 32, 40)[qq]].append(('NL', f'A{qq}'))
    pre[44] += [('X', 's_barrier')]
    fill[41] += [('X', 'v_lshlrev_b32 v4, 22, v0')]; fill[42] += [('X', 'v_ashrrev_i32 v4, 8, v4')]; fill[45] += [('X', 'v_xor_b32 v4, -1, v4')]; fill[46] += [('X', 'v_and_b32 v4, 0xff800000, v4')]
    VT = [f'ds_read_b64_tr_b16 v[{64+4*n+2*t}:{65+4*n+2*t}], {"v9" if n < 2 else "v3"} offset:{t*4096+(n&1)*8}' for n in range(4) for t in range(2)]
    for ks in range(4): fill[(13, 14, 29, 30)[ks]].append(('L', f'ds_read_b128 v[{80+4*ks}:{83+4*ks}], v8 offset:{ks*1024+4096}', 'K1'))
    for ks in range(4): fill[(37, 38, 49, 50)[ks]].append(('L', f'ds_read_b128 v[{112+4*ks}:{115+4*ks}], v8 offset:{ks*1024}', 'K0'))
    VM = [(48, 'v10', 's44', 0), (52, 'v13', 's44', 0)]
    def post(a, d, off, tag):
        return [('X', f'v_permlane32_swap_b32 v{a+r}, v{a+4+r}') for r in range(4)] + \
               [('X', f'v_pk_add_f32 v[{a}:{a+1}], v[{a}:{a+1}], v[{a+4}:{a+5}]'), ('X', f'v_pk_add_f32 v[{a+2}:{a+3}], v[{a+2}:{a+3}], v[{a+6}:{a+7}]'),
                ('X', f'v_cvt_pk_bf16_f32 v{d}, v{a}, v{a+1}'), ('X', f'v_cvt_pk_bf16_f32 v{d+1}, v{a+2}, v{a+3}'),
                ('L', f'ds_write_b64 v6, v[{d}:{d+1}] offset:{off}', tag)]
    def xr(R, tag): return [('L', f'ds_read_b64_tr_b16 v[{R+4*ks+2*u}:{R+4*ks+2*u+1}], v7 offset:{ks*1024+u*512}', f'{tag}{ks}') for ks in range(4) for u in range(2)]
    if OPT['stamp'] in (1, 2) and not OPT['st2']:
        pre[0].insert(0, ('X', stamp_ins(7))); fill[2].append(('X', stamp_ins(8)))
        pre[16].append(('X', stamp_ins(9))); pre[32].append(('X', stamp_ins(10))); pre[48].append(('X', stamp_ins(11))); fill[63].append(('X', stamp_ins(12)))
    for k, it in enumerate(post(24, 14, 0, 'MQ')): fill[(51, 52, 53, 53, 54, 54, 55, 55, 55)[k]].append(it)
    fill[59] += [('NL', 'MQ'), ('X', 's_barrier')]
    for k, it in enumerate(xr(96, 'XQ')): fill[59 + k // 2].append(it)
    k = 0
    for sl, (qq, tl) in enumerate(ORD):
        for kp in range(4):
            q.emit(pre[k])
            A = 32 + 16 * (qq & 1) + 4 * kp
            if kp < 3: B = wreg((qq * 3 + kp) * 4 + tl)
            else: q.need(ltag=f'W{sl}'); b = 64 + 8 * (sl & 1); B = f'v[{b}:{b+7}]'
            e(f'{SMF} v[{ACC[tl]}:{ACC[tl]+3}], v[{A}:{A+3}], {B}, v1')
            q.emit(fill[k]); k += 1
    def mfs(D, A, B, ks, z=True): return f'{MF} v[{D}:{D+3}], v[{A+4*ks}:{A+4*ks+3}], v[{B+4*ks}:{B+4*ks+3}], {"0" if ks == 0 and z else f"v[{D}:{D+3}]"}'
    def mf(*a): e(mfs(*a))
    st2 = lambda n: stamp(e, n) if OPT['st2'] else None
    minit = [f'v_mov_b32 v{16+r}, v4' for r in range(4)]
    xmax = ['v_max3_f32 v20, v24, v25, v26', 'v_max3_f32 v21, v27, v28, v29', 'v_max3_f32 v20, v20, v30, v31']
    def cross(op, a, t): return sum([[f'v_mov_b32 v{t}, v{a}', 's_nop 1', f'{sw} v{a}, v{t}', f'{op} v{a}, v{a}, v{t}'] for sw in ('v_permlane32_swap_b32', 'v_permlane16_swap_b32')], [])
    pk = post(16, 22, 16, 'MK')
    n0 = len(e.L)
    for ks in range(2):
        q.need(ltag=f'XQ{ks}'); mf(24, 112, 96, ks)
        if OPT['vm2'] == 0: e(ldx4(*VM[ks]))
        mf(28, 80, 96, ks)
    q.need(ltag='XQ3')
    while len(e.L) - n0 < 8: e('v_mov_b32 v15, 0')
    for k, (D, A, ks) in enumerate(((24, 112, 2), (28, 80, 2), (24, 112, 3), (28, 80, 3))):
        q.emit([pk[k]]); mf(D, A, 96, ks)
        if OPT['vm2'] == 1 and k in (1, 2): e(ldx4(*VM[k - 1]))
    q.emit(pk[4:])
    st2(7)
    e.many(minit)
    e.many(xmax + ['v_max_f32 v20, v20, v21'] + cross('v_max_f32', 20, 21))
    if OPT['vm2'] == 2:
        for it in VM: e(ldx4(*it))
    q.need(ltag='MK')
    e('s_barrier')
    stamp(e, 3)
    SX = list(range(24, 32))
    va = [f'v_pk_add_f32 v[{r}:{r+1}], v[{r}:{r+1}], v[20:21] op_sel_hi:[1,0] neg_lo:[0,1] neg_hi:[0,1]' for r in SX[::2]] + \
         [f'v_pk_mul_f32 v[{r}:{r+1}], v[{r}:{r+1}], s[100:101]' for r in SX[::2]] + [f'v_exp_f32 v{r}, v{r}' for r in SX]
    rd = xr(32, 'XK') + [('L', x, 'VT0' if k < 4 else 'VT1') for k, x in enumerate(VT)]
    for k in range(16): q.emit([rd[k]]); e(va[k])
    st2(8)
    vb = ['v_pk_add_f32 v[22:23], v[24:25], v[26:27]', 'v_pk_add_f32 v[14:15], v[28:29], v[30:31]', 'v_cvt_pk_bf16_f32 v24, v24, v25', 'v_cvt_pk_bf16_f32 v25, v26, v27',
          'v_cvt_pk_bf16_f32 v26, v28, v29', 'v_cvt_pk_bf16_f32 v27, v30, v31', 'v_pk_add_f32 v[22:23], v[22:23], v[14:15]', 'v_add_f32 v22, v22, v23']
    for ks in range(4):
        q.need(ltag=f'XK{ks}'); mf(16, 32, 96, ks, False)
        if OPT['vm2'] == 3 and ks < 2: e(ldx4(*VM[ks]))
        e.many(vb[2*ks:2*ks+2])
    q.need(ltag='VT0')
    FL = ['s_mov_b64 exec, s[20:21]', 'buffer_store_dword v1, off, s[8:11], s55', 's_mov_b64 exec, -1']
    for n in range(2):
        e(f'{MF} v[{56+4*n}:{59+4*n}], v[{64+4*n}:{67+4*n}], v[24:27], 0')
    if OPT['vm2'] < 2: poll(e, VM, 'vm', issued=True, cnt=3)
    else: e('v_mov_b32 v15, 0'); e('v_mov_b32 v15, 0'); e('v_mov_b32 v15, 0')
    st2(9)
    e('v_max3_f32 v28, v16, v17, v18'); e('v_max3_f32 v28, v28, v19, v20')
    e.many(cross('v_max_f32', 28, 29))
    e('v_sub_f32 v20, v20, v28')
    for r in (16, 18): e(f'v_pk_add_f32 v[{r}:{r+1}], v[{r}:{r+1}], v[28:29] op_sel_hi:[1,0] neg_lo:[0,1] neg_hi:[0,1]')
    e('v_mul_f32 v20, s100, v20')
    for r in (16, 18): e(f'v_pk_mul_f32 v[{r}:{r+1}], v[{r}:{r+1}], s[100:101]')
    for r in (20, 16, 17, 18, 19): e(f'v_exp_f32 v{r}, v{r}')
    st2(10)
    for r in range(56, 64, 2): e(f'v_pk_mul_f32 v[{r}:{r+1}], v[{r}:{r+1}], v[20:21] op_sel_hi:[1,0]')
    e('v_pk_add_f32 v[28:29], v[16:17], v[18:19]')
    e('v_cvt_pk_bf16_f32 v16, v16, v17'); e('v_cvt_pk_bf16_f32 v17, v18, v19')
    e('v_add_f32 v28, v28, v29'); e('v_fmac_f32 v28, v22, v20')
    if OPT['vm2'] >= 2: poll(e, VM, 'vm', issued=True, cnt=3)
    e(f'{MF16} v[56:59], v[48:49], v[16:17], v[56:59]')
    if OPT['flagpos'] == 6: local_store(e, FL)
    e(f'{MF16} v[60:63], v[50:51], v[16:17], v[60:63]')
    st2(11)
    e.many(cross('v_add_f32', 28, 29))
    e('v_rcp_f32 v28, v28'); e('s_nop 0')
    for r in range(56, 64, 2): e(f'v_pk_mul_f32 v[{r}:{r+1}], v[{r}:{r+1}], v[28:29] op_sel_hi:[1,0]')
    for d in range(4): e(f'v_cvt_pk_bf16_f32 v{56+d}, v{56+2*d}, v{57+2*d}')
    def pvl(nt, D):
        return [f'{MF} v[{D+4*n}:{D+4*n+3}], v[{64+4*n}:{67+4*n}], v[24:27], 0' for n in range(nt)] + \
               [f'{MF16} v[{D+4*n}:{D+4*n+3}], v[{48+2*n}:{49+2*n}], v[16:17], v[{D+4*n}:{D+4*n+3}]' for n in range(nt)]
    e('s_mov_b32 exec_lo, 0x00ff00ff'); e('s_mov_b32 exec_hi, 0x00ff00ff')
    local_store(e, ['buffer_store_dwordx4 v[56:59], v11, s[8:11], s54 offen'])
    stamp(e, 4)
    e('s_waitcnt lgkmcnt(0)')
    e('s_barrier')
    e('s_mov_b64 exec, -1'); e.many(QL); e('s_mov_b32 exec_lo, 0x00ff00ff'); e('s_mov_b32 exec_hi, 0x00ff00ff')
    for r in range(4): e(f'v_mov_b32 v{60+r}, {hex(SENT)}')
    e('s_add_u32 s3, s25, s50'); e(f's_add_u32 s3, s3, {ST_OM}'); e('s_add_u32 s4, s25, s53')
    local_store(e, ['buffer_store_dwordx4 v[60:63], v11, s[8:11], s3 offen', 's_mov_b64 exec, s[20:21]', 'buffer_store_dword v60, off, s[8:11], s4'])
    e('s_mov_b64 exec, -1')
    e('s_cmp_lg_u32 s31, s23'); e(f's_cbranch_scc1 {X}_ns')
    e('s_add_u32 s23, s23, 4'); e('s_lshr_b32 s3, s31, 2'); e('v_mov_b32 v15, s3'); e('s_lshl_b32 s3, s30, 7'); e(f's_add_u32 s3, s3, {WS_CNT + C_O*128}')
    e('s_mov_b64 exec, 1'); e('buffer_store_dword v15, off, s[8:11], s3 sc1'); e('s_mov_b64 exec, -1')
    e.lab(X + '_ns')
    e(f's_cmp_eq_u32 s31, {NSTEP-1}'); e(f's_cbranch_scc1 {X}_last')
    e('v_readfirstlane_b32 s3, v12')
    e('s_nop 0')
    e('s_cmp_ge_u32 s3, 96'); e(f's_cbranch_scc1 {X}_rdy')
    e('s_add_u32 s7, s31, 1'); e('s_lshr_b32 s7, s7, 2'); e('s_lshl_b32 s7, s7, 7'); e(f's_add_u32 s7, s7, {WS_CNT + C_KV*128}')
    wait_counter(e, 's7', 96, 'kv', wg=False)
    e.lab(X + '_rdy')
    def xscores(pf, wait):
        e.many(minit)
        e('v_mov_b32 v22, 0xff800000')
        for ee in range(8): e(f'v_cndmask_b32 v{24+ee}, v22, 0, s[{68+2*ee}:{69+2*ee}]')
        e(f's_waitcnt vmcnt({wait})'); e('s_nop 0')
        pf = list(pf)
        for D, A, ks in [(d, a_, ks) for ks in range(4) for d, a_ in ((24, 112), (28, 80))] + [(16, 32, ks) for ks in range(4)]:
            mf(D, A, 96, ks, False)
            if pf: e.many(pf.pop(0))
    xscores(prefetch(1), 2)
    e(f's_branch {X}_x')
    e.lab(X + '_last')
    xscores([], 2)
    e.lab(X + '_x')
    for k in range(5): e('v_mov_b32 v15, 0')
    e.many(xmax)
    softmax(e, pvl(4, 80), 4, 80, out=112)
    e(f's_add_u32 s38, s36, {WS_O}'); e(f's_xor_b32 s39, s36, {128*KB}'); e(f's_add_u32 s39, s39, {WS_O}')
    e('s_mov_b32 s18, s10')
    e('s_add_u32 s36, s36, 2048')
    e('s_add_u32 s31, s31, 1'); e('s_mov_b32 s25, s32'); e('s_mov_b32 s32, s26'); e(f's_add_u32 s26, s26, {STEP_SZ}'); e('s_and_b32 s26, s26, 0xfffff'); e(f's_or_b32 s26, s26, {WS_STEP}'); e(f's_add_u32 s35, s35, {24*KB}')
    stamp(e, 5)
    stamp_flush(e)
    e(f's_cmp_lt_u32 s31, {NSTEP}'); e(f's_cbranch_scc1 {X}_top')
    e.many(OST)
    if OPT['stamp'] == 3:
        e('s_memrealtime s[94:95]'); e('s_waitcnt lgkmcnt(0)')
        for k, r in enumerate((99, 90, 92, 94)): e(f'v_mov_b32 v{20+k}, s{r}')
        e('buffer_store_dwordx4 v[20:23], off, s[8:11], s98')
        if OPT['dbgout']:
            e('s_load_dwordx2 s[4:5], s[0:1], 96'); e('s_sub_u32 s92, s92, s90'); e('s_sub_u32 s94, s94, s90'); e('s_waitcnt lgkmcnt(0)')
            for k, r in enumerate((92, 94, 99, 8)): e(f'v_mov_b32 v{24+k}, s{r}')
            e('s_lshr_b32 s3, s30, 4'); e('s_lshl_b32 s3, s3, 4'); e('s_add_u32 s3, s3, 32'); e('v_mov_b32 v28, s3')
            e('s_and_b32 s3, s30, 15'); e('s_or_b32 s3, s3, s27'); e('s_cmp_eq_u32 s3, 0'); e('s_cselect_b32 s6, 1, 0'); e('s_mov_b32 s7, 0')
            e('s_mov_b64 exec, s[6:7]'); e('global_store_dwordx4 v28, v[24:27], s[4:5]'); e('s_mov_b64 exec, -1')
    e('s_waitcnt vmcnt(0)'); e('s_barrier')
    e('s_cmp_lg_u32 s27, 0'); e('s_cbranch_scc1 L_exit')
    e('s_lshl_b32 s3, s30, 7'); e(f's_add_u32 s3, s3, {WS_CNT + C_O*128}')
    e('v_mov_b32 v18, 16'); e('s_mov_b64 exec, 1'); e('buffer_store_dword v18, off, s[8:11], s3 sc1')
    e('s_endpgm')
    flush_defer(e)

def gen_VO(e):
    e.lab('L_chainV')
    common_init(e)
    w_voffsets(e, 8192, 0)
    e(f's_mov_b32 s12, s{P_WV}'); e(f's_mov_b32 s13, s{P_WV+1}')
    e(f's_mov_b32 s16, s{P_WO}'); e(f's_mov_b32 s17, s{P_WO+1}'); e(f's_mov_b32 s18, {8*MB}'); e('s_mov_b32 s19, 0x20000')
    e('s_lshl_b32 s21, s30, 8'); e('s_lshl_b32 s3, s28, 18'); e('s_add_u32 s21, s21, s3')
    e('s_lshl_b32 s22, s33, 22'); e('s_lshl_b32 s3, s27, 20'); e('s_add_u32 s22, s22, s3')
    e('s_and_b32 s3, s34, 15'); e('s_lshl_b32 s3, s3, 7'); e('s_add_u32 s22, s22, s3')
    e('s_lshl_b32 s3, s27, 1'); e('v_xor_b32 v18, s3, v28')
    e('s_lshl_b32 s3, s27, 14'); e('v_add_u32 v19, s3, v29')
    e('v_lshl_add_u32 v2, v18, 5, v19'); e('v_xor_b32 v3, 32, v2')
    e('v_lshrrev_b32 v18, 5, v30'); e('v_lshlrev_b32 v22, 15, v18')
    e('v_bfe_u32 v18, v30, 4, 1'); e('v_lshl_add_u32 v22, v18, 13, v22')
    e('v_bfe_u32 v18, v30, 3, 1'); e('v_lshl_add_u32 v22, v18, 11, v22')
    e('v_bfe_u32 v18, v30, 1, 2'); e('v_lshrrev_b32 v19, 4, v30'); e('v_xor_b32 v18, v18, v19'); e('v_lshl_add_u32 v22, v18, 5, v22')
    e('v_and_b32 v18, 1, v30'); e('v_lshl_add_u32 v22, v18, 4, v22')
    e('v_lshrrev_b32 v18, 2, v30'); e('v_lshlrev_b32 v8, 7, v18')
    e('v_bfe_u32 v18, v30, 3, 2'); e('v_lshl_add_u32 v8, v18, 5, v8')
    e('v_and_b32 v18, 3, v30'); e('v_lshl_add_u32 v8, v18, 3, v8')
    e('s_lshl_b32 s23, s27, 14'); e('s_add_u32 s23, s23, 65536'); e('v_add_u32 v8, s23, v8')
    def loadV(tau):
        for Q in range(4):
            e(f's_add_u32 m0, s41, {Q*16384}')
            e(f's_add_u32 s20, s21, {(4*Q+tau)*64*8192}')
            for i in range(4): e(f'buffer_load_dwordx4 v{12+i}, s[12:15], s20 offen offset:{i*1024}{OPT["wnt"]*" nt"} lds')
    RND = ((0, 1), (2, 4), (5, 6), (3, 7))
    KREG = {0: 0, 1: 1, 2: 2, 4: 3, 5: 4, 6: 5}
    def loadO(n):
        for sl, ks in enumerate(RND[n]):
            for i in range(8):
                e(f's_add_u32 m0, s23, {sl*8192 + i*1024}')
                e(f's_add_u32 s20, s22, {(64*ks + 32*(i>>2) + 8*(i&1) + 2*((i>>1)&1))*2048}')
                e(f'buffer_load_dwordx4 v22, s[16:19], s20 offen{OPT["wnt"]*" nt"} lds')
    def ord_(sl, dst):
        r = []
        for n in range(4):
            r.append(('X', f'v_xor_b32 v18, {n<<5}, v8'))
            for x in range(2):
                for u in range(2): r.append(('L', f'ds_read_b64_tr_b16 {dst(n, 4*x+2*u)}, v18 offset:{sl*8192+x*4096+u*2048}', 'O'))
        return r
    rot = lambda r: [f'v_add_u32 v{r}, 0x4000, v{r}', f'v_and_b32 v{r}, 0xffff, v{r}']
    loadV(0); loadO(0)
    for n in range(3):
        e('s_waitcnt vmcnt(16)'); e('s_barrier')
        for q in range(4):
            for t in range(2):
                for hf in range(2):
                    for u in range(2):
                        e(f'ds_read_b64_tr_b16 {wreg2((q*3+n)*2+t, 4*hf+2*u)}, v{2+t} offset:{hf*8192+u*4096}')
            e.many(rot(2) + rot(3))
        e('s_waitcnt lgkmcnt(0)'); e('s_barrier')
        if n == 0: e(ROTLD)
        loadV(n + 1)
        e('s_waitcnt vmcnt(16)')
        if n == 0: census(e)
        for sl, ks in enumerate(RND[n]):
            for it in ord_(sl, lambda t, o: wreg2(24 + KREG[ks] * 4 + t, o)): e(it[1])
        e('s_waitcnt lgkmcnt(0)')
        loadO(n + 1)
    e('s_waitcnt vmcnt(0)'); e('s_barrier')
    for q in range(4):
        for t in range(2):
            for hf in range(2):
                for u in range(2):
                    R = 64 + 8 * (2 * q + t) + 4 * hf + 2 * u
                    e(f'ds_read_b64_tr_b16 v[{R}:{R+1}], v{2+t} offset:{hf*8192+u*4096}')
        e.many(rot(2) + rot(3))
    e('s_waitcnt lgkmcnt(0)'); e('s_barrier')
    e('s_lshl_b32 s3, s27, 14'); e('v_add_u32 v2, s3, v0')
    for n in range(16): e(f'ds_write_b128 v2, v[{64+4*n}:{67+4*n}] offset:{n*1024}')
    e('s_waitcnt lgkmcnt(0)')
    for sl in range(2):
        for it in ord_(sl, lambda t, o: f'v[{64+32*sl+8*t+o}:{64+32*sl+8*t+o+1}]'): e(it[1])
    e('s_waitcnt lgkmcnt(0)')
    e('v_add_u32 v8, s23, v0')
    for n in range(16): e(f'ds_write_b128 v8, v[{64+4*n}:{67+4*n}] offset:{n*1024}')
    e('s_waitcnt lgkmcnt(0)')
    common_regs(e)
    e('s_barrier')
    e('v_and_b32 v18, 31, v30'); e('v_lshlrev_b32 v6, 4, v18')
    e('v_lshrrev_b32 v18, 5, v30'); e('v_lshl_add_u32 v6, v18, 3, v6')
    e('s_lshl_b32 s3, s27, 9'); e('v_add_u32 v6, s3, v6')
    e('v_bfe_u32 v18, v30, 3, 1'); e('v_lshlrev_b32 v11, 6, v18')
    for bit, sh in ((1, 5), (2, 4), (5, 3), (0, 2)):
        e(f'v_bfe_u32 v18, v30, {bit}, 1'); e(f'v_lshl_add_u32 v11, v18, {sh}, v11')
    e('v_bfe_u32 v18, v30, 4, 1'); e('v_mul_u32_u24 v18, 640, v18'); e('v_add_u32 v11, v11, v18')
    e('s_mul_i32 s3, s27, 1280'); e(f's_add_u32 s3, s3, {KVB}'); e('v_add_u32 v11, s3, v11')
    e('v_add_u32 v10, 5120, v11')
    e('v_bfe_u32 v18, v30, 2, 3'); e('v_mul_u32_u24 v7, 160, v18')
    e('v_lshrrev_b32 v18, 5, v30'); e('v_lshl_add_u32 v7, v18, 5, v7')
    e('v_and_b32 v18, 3, v30'); e('v_lshl_add_u32 v7, v18, 3, v7')
    e('s_mul_i32 s3, s28, 5120'); e('s_lshl_b32 s4, s29, 6'); e('s_add_u32 s3, s3, s4'); e(f's_add_u32 s3, s3, {KVB}'); e('v_add_u32 v7, s3, v7')
    e('s_lshl_b32 s35, s30, 10')
    e('s_lshl_b32 s3, s27, 8'); e('v_lshlrev_b32 v13, 2, v30'); e('v_add_u32 v13, s3, v13')
    e('s_and_b32 s3, s35, 0x6000'); e('s_add_u32 s46, s35, s3'); e(f's_add_u32 s35, s35, {ST_PL}')
    e('v_lshlrev_b32 v9, 2, v30')
    e('v_lshlrev_b32 v12, 7, v30')
    e('s_lshl_b32 s36, s33, 15'); e('s_lshl_b32 s3, s27, 13'); e('s_add_u32 s36, s36, s3'); e(f's_add_u32 s36, s36, {ST_OM}')
    e('s_and_b32 s3, s34, 15'); e(f's_lshl_b32 s3, s3, {OPT["fs"]}'); e('s_add_u32 s24, s22, s3')
    e(f'v_mov_b32 v24, {hex(SENT)}'); e(f'v_mov_b32 v25, {hex(SENT)}')
    handshake(e, 'CV1_top', 'CV0_top')
    e('v_mov_b32 v3, 0'); e(f's_mul_i32 s54, s30, {1536*KB}'); e('s_mul_i32 s3, s27, 6144'); e('s_add_u32 s54, s54, s3'); e(f's_add_u32 s54, s54, {WS_QKV}')
    e('s_add_u32 s46, s46, s6')
    e('s_lshl_b32 s47, s33, 7'); e('s_add_u32 s47, s47, s6'); e(f's_add_u32 s47, s47, {ST_F3}')
    e('s_cmp_eq_u32 s34, 16'); e('s_cselect_b32 s38, s20, 0'); e('s_mov_b32 s39, 0')
    e('s_mov_b32 s16, s8'); e('s_mov_b32 s17, s9'); e('s_cmp_lg_u32 s38, 0'); e('s_cselect_b32 s18, s10, 0')
    e(f's_add_u32 s3, s47, {WS_STEP}')
    e('s_mov_b64 exec, s[38:39]'); e('buffer_store_dword v1, off, s[8:11], s3 sc1'); e('s_mov_b64 exec, -1')
    e(f's_add_u32 s3, s24, {WS_STEP}')
    e('s_mov_b64 exec, s[20:21]'); e('buffer_store_dword v1, off, s[8:11], s3 sc1'); e('s_mov_b64 exec, -1')
    e('s_cmp_eq_u32 s37, 0'); e('s_cbranch_scc1 CV0_top')
    for k in range(4):
        R = WS_STEP + k * STEP_SZ
        e(f's_add_u32 s3, s50, {R + ST_VM}'); e('buffer_load_dword v18, v6, s[8:11], s3 offen sc1')
        e(f's_add_u32 s3, s35, {R}'); e('buffer_load_dword v18, v13, s[8:11], s3 offen sc1')
        e(f's_add_u32 s3, s24, {R}'); e('buffer_load_dword v18, off, s[8:11], s3 sc1')
    e('s_waitcnt vmcnt(0)')
    for k in range(4):
        R = WS_STEP + k * STEP_SZ
        e(f's_add_u32 s3, s50, {R + ST_VM}'); e('buffer_store_dwordx2 v[24:25], v6, s[8:11], s3 offen')
        if k:
            e(f's_add_u32 s3, s35, {R}'); e('buffer_store_dword v24, v13, s[8:11], s3 offen')
            e(f's_add_u32 s3, s24, {R}')
            e('s_mov_b64 exec, s[20:21]'); e('buffer_store_dword v24, off, s[8:11], s3'); e('s_mov_b64 exec, -1')
    for loc in (1, 0):
        LOC[0] = loc
        V_loop(e, f'CV{loc}', KREG)

def V_loop(e, X, KREG):
    e.raw('.p2align 6')
    e.lab(X + '_top')
    e('s_mov_b32 s40, 0')
    q = Seq(e)
    def wrd(n):
        B = 64 + 8 * (n & 1)
        return [(f'ds_read_b128 v[{B+4*hf}:{B+4*hf+3}], v2 offset:{n*2048+hf*1024}', f'W{n}') for hf in range(2)]
    for n in range(2):
        for x, t in wrd(n): q.L(x, t)
    for r in range(16, 24, 2): e(f'v_mov_b64 v[{r}:{r+1}], 0')
    e(f'v_add_u32 v4, 4096, v5'); e(f'v_and_b32 v4, {hex(MEMB + 0x3fff)}, v4')
    gather_mem(e, q, isP=False)
    fill = [[] for _ in range(32)]; pre = [[] for _ in range(32)]
    for n in range(2, 8):
        for k, (x, t) in enumerate(wrd(n)): fill[4 * n - 5 + k].append(('L', x, t))
    for qq in range(1, 4):
        base = 8 * (qq - 1) + (1 if qq == 1 else 0)
        if qq == 1: fill[base] += [('NL', 'AW'), ('X', 's_barrier')]
        for p in range(4):
            R = 32 + 16 * (qq & 1) + 4 * p
            fill[base + p // 2].append(('L', f'ds_read_b128 v[{R}:{R+3}], v4 offset:{p*1024}', f'A{qq}'))
        if qq < 3: fill[base + 2] += [('X', 'v_add_u32 v4, 4096, v4'), ('X', f'v_and_b32 v4, {hex(MEMB + 0x3fff)}, v4')]
        pre[8 * qq].append(('NL', f'A{qq}'))
    k = 0
    for qq in range(4):
        for t in range(2):
            for kp in range(4):
                q.emit(pre[k])
                A = 32 + 16 * (qq & 1) + 4 * kp
                if kp < 3: B = wreg((qq * 3 + kp) * 2 + t)
                else:
                    n = 2 * qq + t; q.need(ltag=f'W{n}'); b = 64 + 8 * t; B = f'v[{b}:{b+7}]'
                e(f'{SMF} v[{16+4*t}:{19+4*t}], v[{A}:{A+3}], {B}, v1')
                q.emit(fill[k]); k += 1
    e('s_add_u32 s42, s32, s50'); e(f's_add_u32 s42, s42, {ST_VM}')
    for r in range(24, 32, 2): e(f'v_mov_b64 v[{r}:{r+1}], 0')
    e('s_nop 1')
    for r in range(4): e(f'v_permlane32_swap_b32 v{16+r}, v{20+r}')
    e('v_pk_add_f32 v[16:17], v[16:17], v[20:21]'); e('v_pk_add_f32 v[18:19], v[18:19], v[22:23]')
    e('v_cvt_pk_bf16_f32 v20, v16, v17'); e('v_cvt_pk_bf16_f32 v21, v18, v19')
    local_store(e, ['buffer_store_dwordx2 v[20:21], v6, s[8:11], s42 offen'])
    stamp(e, 3)
    e(f's_cmp_eq_u32 s31, {NSTEP-1}'); e(f's_cbranch_scc1 {X}_end')
    DEFER.append([f'{X}_end:'] + (['v_mov_b32 v21, s99', 'buffer_store_dword v21, off, s[8:11], s98'] if OPT['stamp'] == 3 else []) + ['s_endpgm'])
    if OPT['vwarm']:
        e('v_readfirstlane_b32 s3, v3'); e('v_lshlrev_b32 v15, 3, v0')
        e(f's_add_u32 s54, s54, {24*KB}')
        e('s_cmp_lt_u32 s3, 96'); e(f's_cbranch_scc1 {X}_nw')
        e('s_mov_b64 exec, 0xffffffffffff' if False else 's_bfm_b64 exec, 48, 0')
        e('buffer_load_dword v14, v15, s[8:11], s54 offen sc1'); e('s_mov_b64 exec, -1')
        e.lab(X + '_nw')
        e('s_add_u32 s3, s31, 2'); e('s_lshr_b32 s3, s3, 2'); e('s_lshl_b32 s3, s3, 7'); e(f's_add_u32 s3, s3, {WS_CNT + C_KV*128}')
        e('buffer_load_dword v3, off, s[8:11], s3 sc1')
    e(f'v_mov_b32 v22, {hex(SENT)}'); e(f'v_mov_b32 v23, {hex(SENT)}')
    e('s_add_u32 s42, s25, s50'); e(f's_add_u32 s42, s42, {ST_VM}'); e('s_add_u32 s43, s25, s35'); e('s_add_u32 s44, s25, s46'); e('s_add_u32 s3, s25, s24')
    e('buffer_store_dword v22, v13, s[8:11], s44 offen sc1')
    e('s_add_u32 s44, s25, s47'); e('s_mov_b64 exec, s[38:39]'); e('buffer_store_dword v22, off, s[8:11], s44 sc1'); e('s_mov_b64 exec, -1')
    local_store(e, ['buffer_store_dwordx2 v[22:23], v6, s[8:11], s42 offen', 'buffer_store_dword v22, v13, s[8:11], s43 offen',
                    's_mov_b64 exec, s[20:21]', 'buffer_store_dword v22, off, s[8:11], s3', 's_mov_b64 exec, -1'])
    for n in range(16): e(f'ds_read_b128 v[{64+4*n}:{67+4*n}], v8 offset:{n*1024}')
    for r in range(16, 32, 2): e(f'v_mov_b64 v[{r}:{r+1}], 0')
    e('s_add_u32 s42, s32, s36'); e('s_add_u32 s43, s42, 4096'); e('s_add_u32 s44, s32, s53')
    e('s_waitcnt lgkmcnt(0)')
    stamp(e, 4)
    probe(e, 'v9', 's44', 'f', None, sleep=OPT['sleepF'])
    for k in range(OPT['dlyF'] // 16): e('s_nop 15')
    if OPT['dlyF'] % 16: e(f's_nop {OPT["dlyF"] % 16}')
    stamp(e, 5)
    OI = [(32 + 4 * ks, 'v0', 's42' if ks < 4 else 's43', (ks & 3) * 1024) for ks in range(8)]
    NA = OPT['ahead']
    for k, it in enumerate(OI[:NA]):
        e(ldx4(*it))
        if OPT['pace'] and k < NA - 1: e(f's_nop {OPT["pace"]}')
    def chk(ks):
        R = 32 + 4 * ks
        return [[f's_waitcnt vmcnt({min(7, ks + NA - 1) - ks + (1 if ks > OPT["f3pos"] >= 0 else 0)})', f'v_max3_u32 v14, v{R}, v{R+1}, v{R+2}'],
                [f'v_max_u32 v14, v14, v{R+3}', f'v_cmp_eq_u32 vcc, {hex(SENT)}, v14'], [f's_cbranch_vccnz {X}_f{ks}', f'{X}_b{ks}:']]
    def put(l):
        for x in l:
            if x.endswith(':'): e.raw(x)
            else: e(x)
    for l in chk(0): put(l)
    stamp(e, 11)
    e('s_add_u32 s44, s26, s24'); e('s_add_u32 s3, s26, s47')
    def sm(ks, t):
        R = 32 + 4 * ks
        B = wreg(24 + KREG[ks] * 4 + t) if ks in KREG else f'v[{64+32*(ks>>2)+8*t}:{64+32*(ks>>2)+8*t+7}]'
        e(f'{SMF} v[{16+4*t}:{19+4*t}], v[{R}:{R+3}], {B}, v1')
    def red(c):
        a = 16 + 8 * c
        return [f'v_permlane32_swap_b32 v{a+r}, v{a+4+r}' for r in range(4)] + \
               [f'v_pk_add_f32 v[{a}:{a+1}], v[{a}:{a+1}], v[{a+4}:{a+5}]', f'v_pk_add_f32 v[{a+2}:{a+3}], v[{a+2}:{a+3}], v[{a+6}:{a+7}]'] + \
               [f'ds_write2_b32 v{11-c}, v{a+r}, v{a+r+1} offset0:{r*40} offset1:{r*40+40}' for r in (0, 2)]
    F3 = ['s_mov_b64 exec, 1', 'buffer_store_dword v1, off, s[16:19], s3 sc1', 's_mov_b64 exec, -1']
    assert OPT['f3pos'] < 0 or OPT['f3pos'] + NA >= 7
    for ks in range(6):
        for t in range(4):
            sm(ks, t)
            if t == 0 and ks + NA < 8: e(ldx4(*OI[ks + NA]))
            if t == 0 and ks == OPT['f3pos']: e.many(F3)
            if t > 0: put(chk(ks + 1)[t - 1])
    c7 = chk(7)
    sm(6, 0)
    if OPT['f3pos'] == 6: e.many(F3)
    put(c7[0]); sm(6, 1); put(c7[1]); sm(6, 2); put(c7[2])
    sm(7, 0)
    if OPT['f3pos'] == 7: e.many(F3)
    sm(7, 1)
    e('s_add_u32 s31, s31, 1'); e('s_add_u32 s42, s26, s46')
    sm(6, 3)
    e('s_add_u32 s43, s26, s35'); e('v_mov_b32 v15, 0')
    sm(7, 2)
    e('v_mov_b32 v15, 0')
    sm(7, 3)
    stamp(e, 7)
    r0, r1 = red(0), red(1)
    e.many(r0); e.many(r1)
    if OPT['f2pos'] == 8: local_store(e, ['s_mov_b64 exec, s[20:21]', 'buffer_store_dword v1, off, s[8:11], s44', 's_mov_b64 exec, -1'])
    stamp(e, 8)
    for k in range(OPT['warm1']): e('v_mov_b32 v15, 0')
    e('s_waitcnt lgkmcnt(0)')
    stamp(e, 9)
    e('s_barrier')
    stamp(e, 10)
    for w in range(4): e(f'ds_read_b64 v[{36+2*w}:{37+2*w}], v7 offset:{w*1280}')
    if OPT['f2pos'] == 9: local_store(e, ['s_mov_b64 exec, s[20:21]', 'buffer_store_dword v1, off, s[8:11], s44', 's_mov_b64 exec, -1'])
    for k in range(OPT['warm2']): e('v_mov_b32 v15, 0')
    e('s_waitcnt lgkmcnt(2)')
    e('v_pk_add_f32 v[36:37], v[36:37], v[38:39]')
    e('s_waitcnt lgkmcnt(0)')
    e('v_pk_add_f32 v[40:41], v[40:41], v[42:43]')
    e('v_pk_add_f32 v[36:37], v[36:37], v[40:41]')
    e('v_cvt_pk_bf16_f32 v24, v36, v37')
    if OPT['lfirst']: local_store(e, ['buffer_store_dword v24, v13, s[8:11], s43 offen'])
    if OPT['lgap']: e(f's_nop {OPT["lgap"]}')
    e('buffer_store_dword v24, v13, s[8:11], s42 offen sc1')
    if not OPT['lfirst']: local_store(e, ['buffer_store_dword v24, v13, s[8:11], s43 offen'])
    stamp(e, 6)
    if OPT['rpf'] >= 0 and OPT['vdir'] < 0:
        e(f's_xor_b32 s42, s42, {32*KB}')
        for k in range(OPT['rpf'] // 16): e('s_nop 15')
        if OPT['rpf'] % 16: e(f's_nop {OPT["rpf"] % 16}')
        e('buffer_load_dword v47, v13, s[8:11], s42 offen sc1')
    e('s_mov_b32 s25, s32'); e('s_mov_b32 s32, s26'); e(f's_add_u32 s26, s26, {STEP_SZ}'); e('s_and_b32 s26, s26, 0xfffff'); e(f's_or_b32 s26, s26, {WS_STEP}')
    stamp_flush(e)
    e(f's_branch {X}_top')
    for ks in range(8):
        e.lab(f'{X}_f{ks}')
        if OPT['stamp']: e('s_add_u32 s99, s99, 1')
        poll(e, OI[ks:min(8, ks + NA)], 'o', issued=True)
        e(f's_branch {X}_b{ks}')
    flush_defer(e)

def gen_chain(e):
    gen_P(e); gen_VO(e)
```

```python
from common import *
from k_bulk import setup_load, wait_counter, P_WO, P_WQ, P_WK, P_WV, P_X, F_K0, tstamp, BOPT
LB = 128 * KB
def dbg_add(e, off, total=None, go=None):
    L = e.uniq('DA')
    e('s_cmp_lg_u32 s27, 0'); e(f's_cbranch_scc1 {L}')
    e('v_mov_b32 v18, 1'); e('s_mov_b64 exec, 1')
    e(f'buffer_atomic_add v18, off, s[68:71], 0 offset:{off} sc1')
    e('s_mov_b64 exec, -1')
    e.lab(L)

def gen_start(e):
    D = 32; F = 64
    e('s_bitcmp1_b32 s2, 2'); e('s_cbranch_scc0 ST_misc')
    srd(e, 44, P_X, 4 * MB)
    e('s_lshr_b32 s23, s2, 3'); e('s_lshl_b32 s23, s23, 2'); e('s_and_b32 s3, s2, 3'); e('s_add_u32 s23, s23, s3')
    e('v_lshrrev_b32 v23, 8, v0')
    e('v_bfe_u32 v24, v0, 4, 4')
    e('v_lshlrev_b32 v25, 11, v24')
    e('v_lshl_add_u32 v25, v23, 3, v25')
    e('s_lshl_b32 s3, s23, 15'); e('s_lshl_b32 s4, s27, 9'); e('s_add_u32 s3, s3, s4')
    for kk in range(8):
        e(f'buffer_load_dwordx2 v[{D+4*kk}:{D+4*kk+1}], v25, s[44:47], s3 offen offset:{kk*64}')
        e(f'buffer_load_dwordx2 v[{D+4*kk+2}:{D+4*kk+3}], v25, s[44:47], s3 offen offset:{kk*64+32}')
    e('v_lshlrev_b32 v26, 6, v24'); e(f'v_add_u32 v26, {LB}, v26')
    e('s_lshl_b32 s3, s27, 4'); e('v_lshl_add_u32 v27, v23, 2, v26'); e('v_add_u32 v27, s3, v27')
    for n in range(32):
        if n % 2 == 0: e(f's_waitcnt vmcnt({15 - n // 2})')
        e(f'v_lshlrev_b32 v{F+2*n}, 16, v{D+n}')
        e(f'v_and_b32 v{F+2*n+1}, 0xffff0000, v{D+n}')
    if BOPT['tstamp'] == 2: tstamp(e)
    A = 28
    def tree(src, n):
        e(f'v_pk_add_f32 v[{A}:{A+1}], v[{src}:{src+1}], v[{src+2}:{src+3}]'); e(f'v_pk_add_f32 v[{A+2}:{A+3}], v[{src+4}:{src+5}], v[{src+6}:{src+7}]')
        for k in range(8, n, 2): t = A + (k & 2); e(f'v_pk_add_f32 v[{t}:{t+1}], v[{t}:{t+1}], v[{src+k}:{src+k+1}]')
    def fold(): e(f'v_pk_add_f32 v[{A}:{A+1}], v[{A}:{A+1}], v[{A+2}:{A+3}]'); e(f'v_add_f32 v{A}, v{A}, v{A+1}')
    def finish(off):
        fold()
        e(f'ds_write_b32 v27, v{A} offset:{off}')
        e('s_waitcnt lgkmcnt(0)'); e('s_barrier')
        for q in range(4): e(f'ds_read_b128 v[{D+4*q}:{D+4*q+3}], v26 offset:{off+16*q}')
        e('s_waitcnt lgkmcnt(0)')
        tree(D, 16); fold()
        e(f'v_mul_f32 v{A}, 0x3a800000, v{A}')
    e(f'buffer_load_dword v21, off, s[68:71], 0 offset:{D_ROT} sc1')
    tree(F, 64)
    finish(0)
    e(f'v_mov_b32 v22, v{A}')
    for n in range(0, 64, 2):
        t = A + (n & 2)
        e(f'v_pk_add_f32 v[24:25], v[{F+n}:{F+n+1}], v[22:23] op_sel_hi:[1,0] neg_lo:[0,1] neg_hi:[0,1]')
        if n < 4: e(f'v_pk_mul_f32 v[{t}:{t+1}], v[24:25], v[24:25]')
        else: e(f'v_pk_fma_f32 v[{t}:{t+1}], v[24:25], v[24:25], v[{t}:{t+1}]')
    finish(1024)
    e(f'v_cvt_pk_bf16_f32 v24, v22, v{A}')
    e('v_lshlrev_b32 v22, 16, v24')
    e(f'v_and_b32 v{A}, 0xffff0000, v24')
    e(f'v_add_f32 v{A}, 0x3727c5ac, v{A}')
    e(f'v_cvt_pk_bf16_f32 v{A}, v{A}, v{A}'); e(f'v_lshlrev_b32 v{A}, 16, v{A}')
    e(f'v_sqrt_f32 v{A}, v{A}'); e('s_nop 0')
    e(f'v_cvt_pk_bf16_f32 v{A}, v{A}, v{A}'); e(f'v_lshlrev_b32 v{A}, 16, v{A}')
    e(f'v_rcp_f32 v{A}, v{A}')
    e('s_waitcnt vmcnt(0)')
    verify_rot(e, issued=True, reg=21)
    e('s_lshl_b32 s3, s23, 10'); e('s_lshl_b32 s4, s27, 20'); e('s_add_u32 s3, s3, s4')
    for n in range(32):
        e(f'v_pk_add_f32 v[24:25], v[{F+2*n}:{F+2*n+1}], v[22:23] op_sel_hi:[1,0] neg_lo:[0,1] neg_hi:[0,1]')
        e('v_cvt_pk_bf16_f32 v25, v24, v25')
        e('v_lshlrev_b32 v24, 16, v25'); e('v_and_b32 v25, 0xffff0000, v25')
        e(f'v_pk_mul_f32 v[24:25], v[24:25], v[{A}:{A+1}] op_sel_hi:[1,0]')
        e(f'v_cvt_pk_bf16_f32 v{D+n}, v24, v25')
        if n % 4 == 3:
            kk = n // 4
            e(f'buffer_store_dwordx4 v[{D+4*kk}:{D+4*kk+3}], v0, s[8:11], s3 offen sc1')
            e(f's_add_u32 s3, s3, {128*KB}')
    if BOPT['tstamp'] == 2: tstamp(e)
    e('s_waitcnt vmcnt(0)'); e('s_barrier')
    if BOPT['tstamp'] == 2: tstamp(e)
    e('s_cmp_ge_u32 s23, 8'); e('s_cbranch_scc1 ST_n0')
    dbg_add(e, D_XN0, 9, D_XGO0)
    e.lab('ST_n0')
    dbg_add(e, D_XN, 192, D_XGO)
    e('s_branch L_sched')
    e.lab('ST_misc')
    verify_rot(e)
    e('s_lshr_b32 s23, s2, 3'); e('s_lshl_b32 s23, s23, 1'); e('s_and_b32 s3, s2, 7'); e(f's_cmp_eq_u32 s3, {MISC[1]}'); e('s_addc_u32 s23, s23, 0')
    for r in range(16): e(f'v_mov_b32 v{32+r}, {hex(SENT)}')
    e('s_lshl_b32 s5, s27, 10'); e('v_add_u32 v22, s5, v0')
    e('s_cmp_ge_u32 s23, 6'); e('s_cbranch_scc1 ST_fill')
    srd(e, 44, P_X + 2, 16 * KB)
    e('s_mov_b32 s3, 0x13'); e('s_bitcmp1_b32 s3, s23'); e('s_cselect_b32 s46, s46, 0')
    e('v_bfe_u32 v18, v22, 4, 3'); e('v_lshlrev_b32 v23, 11, v18')
    e('v_lshrrev_b32 v18, 9, v22'); e('v_lshl_add_u32 v23, v18, 6, v23')
    e('v_bfe_u32 v18, v22, 8, 1'); e('v_lshl_add_u32 v23, v18, 4, v23')
    e('v_bfe_u32 v18, v22, 7, 1'); e('v_lshl_add_u32 v23, v18, 2, v23')
    e('s_and_b32 s4, s23, 1'); e('s_lshl_b32 s4, s4, 10')
    e('s_cmp_eq_u32 s23, 4'); e('s_cselect_b32 s5, 1024, 0')
    for p in range(4):
        e(f's_add_u32 s3, s4, {(p&1)*512}')
        if p >= 2: e('s_add_u32 s3, s3, s5')
        for a_ in range(4): e(f'buffer_load_dword v{48+4*p+a_}, v23, s[44:47], s3 offen offset:{32*(a_&1) + 8*(a_>>1)}')
    e('s_waitcnt vmcnt(0)')
    for r in range(16):
        e(f'v_cmp_eq_u32 vcc, v{32+r}, v{48+r}'); e('s_nop 1'); e(f'v_cndmask_b32 v{32+r}, v{48+r}, -1, vcc')
    e.lab('ST_fill')
    e('s_lshl_b32 s3, s23, 14'); e(f's_add_u32 s3, s3, {WS_STEP}')
    for p in range(4):
        e(f'buffer_store_dwordx4 v[{32+4*p}:{35+4*p}], v22, s[8:11], s3 offen sc1'); e('s_add_u32 s3, s3, 4096')
    e('v_mov_b32 v19, 0'); e('s_lshl_b32 s3, s23, 8'); e(f's_add_u32 s3, s3, {WS_CNT}')
    e('v_lshrrev_b32 v18, 2, v0'); e('buffer_store_dword v19, v18, s[8:11], s3 offen sc1')
    e('s_waitcnt vmcnt(0)'); e('s_barrier')
    e('s_cmp_lg_u32 s23, 0'); e('s_cbranch_scc1 ST_n1')
    dbg_add(e, D_XN0, 9, D_XGO0)
    e.lab('ST_n1')
    dbg_add(e, D_XN, 192, D_XGO)
    e(f's_cmp_eq_u32 s2, {MISC_WG}'); e('s_cbranch_scc1 ST_cal')
    if BOPT['wpf'] == 2:
        e('v_lshlrev_b32 v18, 3, v0')
        e('s_lshl_b32 s3, s23, 2'); e('s_add_u32 s3, s3, s27'); e('s_lshl_b32 s3, s3, 15')
        srd(e, 44, P_WO, 8 * MB)
        for i in range(4): e('buffer_load_dword v200, v18, s[44:47], s3 offen'); e('s_add_u32 s3, s3, 8192')
    if BOPT['wpf'] == 1:
        e('v_lshlrev_b32 v18, 3, v0')
        e('s_lshl_b32 s3, s23, 2'); e('s_add_u32 s3, s3, s27'); e('s_lshl_b32 s3, s3, 1')
        e('s_and_b32 s4, s3, 127'); e('s_lshr_b32 s3, s3, 7'); e('s_lshl_b32 s3, s3, 8'); e('s_add_u32 s3, s3, s4'); e('s_add_u32 s3, s3, 128')
        e('s_lshl_b32 s3, s3, 13'); e('s_add_u32 s4, s3, 8192')
        for P in (P_WQ, P_WK, P_WV):
            srd(e, 44, P, 8 * MB)
            e('buffer_load_dword v200, v18, s[44:47], s3 offen'); e('buffer_load_dword v200, v18, s[44:47], s4 offen')
    e('s_branch L_sched')
    e.lab('ST_cal')
    e('s_cmp_lg_u32 s27, 0'); e('s_cbranch_scc1 ST_mw')
    e('s_mov_b64 exec, 1')
    e('s_mov_b32 s23, 0')
    for k in range(-1, 4):
        for par in ((0,) if k < 0 else (0, 1) if k & 1 else (1, 0)):
            e(f's_mov_b32 s3, {hex(WS_STEP + ST_PR + max(k, 0)*STEP_SZ + 240*KB + par*8*KB + (k&1)*4*KB)}')
            e('s_waitcnt vmcnt(0)')
            e('s_memtime s[4:5]'); e('s_waitcnt lgkmcnt(0)')
            e('buffer_store_dword v19, off, s[8:11], s3 sc1')
            e('s_waitcnt vmcnt(0)')
            e('s_memtime s[6:7]'); e('s_waitcnt lgkmcnt(0)')
            if k >= 0:
                e('s_sub_u32 s6, s6, s4'); e('s_min_u32 s6, s6, 3000')
                e('s_add_u32 s23, s23, s6' if par == 0 else 's_sub_u32 s23, s23, s6')
    e('s_cmp_gt_i32 s23, 0'); e('s_cselect_b32 s3, 3, 2')
    e('s_lshl_b32 s23, s23, 2'); e('s_or_b32 s3, s3, s23')
    e('v_mov_b32 v18, s3')
    e(f'buffer_store_dword v18, off, s[68:71], 0 offset:{D_PAR} sc1')
    wait_counter(e, '0', 192, 'all', 's[68:71]', 1, wg=False, imm=D_XN)
    e(f'buffer_store_dword v18, off, s[68:71], 0 offset:{D_XGO} sc1')
    e('s_mov_b64 exec, -1')
    e.lab('ST_mw')
    e('s_barrier')
    e('s_branch L_sched')
```

```python
from build import *
import heapq
def make_schedule(step_us=2.5, t0=14.0, split={15: 16, 14: 8, 13: 4, 12: 2, 11: 2}, verbose=False, n2=1, n4=4, quiet=5, furow=4, qrows=8, lite=0, fukey=80):
    quiet0 = quiet; quiet = [quiet]
    xcds = [x for x in range(8) if x not in XG]
    part = [x for x in xcds if (x ^ 1) in XG]
    rest = [x for x in xcds if x not in part] if quiet0 < 1e9 else xcds
    def speed(x): return 20.3 if x in part else 23.3
    def dur(t, x):
        u = speed(x)
        if t['t'] in (T_QK, T_VV): return u * (1.0, 0.58, 0.5)[t['nj4']]
        if t['t'] == T_FU: return u * 1.03
        if t['t'] == T_FD: return 50.0
        if t['t'] == T_WO: return 2.4 * t['nk'] + 2.5
        return 1.0 + 0.8 * t['nk']
    cols = [(T_QK, h) for h in range(32)] + [(T_VV, hp) for hp in range(16)]
    pools = {x: [] for x in xcds}
    rows = [(a, 2, hb) for a in range(n2) for hb in range(2)] + [(a, 1, 0) for a in range(n2, n4)] + [(a, 0, 0) for a in range(n4, 16, 2)]
    for ri, (a, nj4, hb) in enumerate(rows):
        for c, (ty, b) in enumerate(cols):
            pools[xcds[c % 6] if ri < qrows else rest[c % len(rest)]].append(T(ty, a, b, nj4, urgent=1 if a < 4 else 0, hb=hb))
    if furow:
        for g in range(0, 8, furow):
            for f in range(28):
                for r in range(g, g + furow): pools[rest[f % len(rest)]].append(T(T_FU, 2 * r, f))
    else:
        for f in range(28):
            for r in range(8): pools[rest[f % len(rest)]].append(T(T_FU, 2 * r, f))
    def key(t):
        if t['t'] == T_FU: return fukey + (t['a'] // (2 * furow) if furow else 0) * 22.0 * furow / 4
        return t0 + step_us * 4 * t['a'] - 40
    for x in pools: pools[x].sort(key=key)
    shared = [T(T_FD, a, n, 1) for a in range(16) for n in range(4)]
    for a in range(16):
        ns = split.get(a, 1)
        if ns == 1: shared += [T(T_WO, a, n, 1, mode=1, nk=16) for n in range(4)]
        elif a == 15:
            shared += [T(T_WO, a, n, 2, k0=k, nk=1, p=1 + k, hb=hb) for k in range(16) for hb in range(2) for n in range(4)]
            shared += [T(T_FIN, a, u, k0=n, nk=1, p=17) for u in range(16) for n in range(4)]
        else:
            shared += [T(T_WO, a, n, 1, k0=k * 16 // ns, nk=16 // ns, p=1 + k) for k in range(ns) for n in range(4)]
            shared += [T(T_FIN, a, u * 16 // ns, k0=n, nk=16 // ns, p=1 + ns) for u in range(ns) for n in range(4)]
    fins = {}
    for t in [t for t in shared if t['t'] == T_FIN]: fins.setdefault((t['a'], t['k0']), []).append(t)
    shared = [t for t in shared if t['t'] != T_FIN]
    fu_done = {a: [] for a in range(16)}; y_done = {a: [] for a in range(16)}; fd_started = {a: 0 for a in range(16)}
    kv_done = {a: [] for a in range(16)}
    INF = 1e9
    def ready(t):
        a = t['a']
        if t['t'] == T_FD: return max(fu_done[a]) if len(fu_done[a]) == 28 else INF
        if fd_started[a] < 4: return INF
        return t0 + step_us * (4 * (a + 1) + (0.6 if a < 15 else 0))
    def allowed(t, x, now):
        if x in part and now >= quiet[0]: return t['t'] == T_WO and t['a'] == 15
        return True
    def pref(t, x):
        return 0 if (x in rest and t['b'] == rest.index(x) % 4) else 1
    heap = [(0.0, wg) for wg in BULK]; heapq.heapify(heap)
    lists = {}; end = 0; last = {}
    while heap and (shared or any(pools.values())):
        now, wg = heapq.heappop(heap); x = wg & 7
        quiet[0] = 1e9 if (wg >> 3) < lite else quiet0
        pick = None; own = pools[x]
        if own and own[0]['t'] != T_FU: pick = own.pop(0); st = now
        if pick is None:
            fu_left = any(pools.values())
            c = [(t['t'] != T_FD, pref(t, x), i) for i, t in enumerate(shared) if ready(t) <= now and allowed(t, x, now) and (t['t'] == T_FD or not fu_left)]
            if c: pick = shared.pop(min(c)[2]); st = now
        if pick is None and own: pick = own.pop(0); st = now
        if pick is None and not (x in part and now >= quiet[0]):
            y = max(rest, key=lambda k: len(pools[k]))
            if pools[y]: pick = pools[y].pop(0 if furow else -1); st = now
        if pick is None:
            c = [(ready(t), pref(t, x), i) for i, t in enumerate(shared) if allowed(t, x, max(now, ready(t)))]
            if not c: continue
            r, _, i = min(c)
            if r >= INF or (r > now + 3 and any(ready(t) >= INF for t in shared)):
                heapq.heappush(heap, (now + 1.0, wg)); continue
            pick = shared.pop(i); st = max(now, r)
        fin = st + dur(pick, x); a = pick['a']
        if pick['t'] == T_WO and pick['mode'] == 1: fin = max(fin, max(y_done[a][:4]) + 1.5)
        if pick['t'] == T_FU: fu_done[a].append(fin); fu_done[a + 1].append(fin)
        if pick['t'] in (T_QK, T_VV):
            kv_done[a].append(fin)
            if not pick['nj4']: kv_done[a + 1].append(fin)
        if pick['t'] == T_FD: fd_started[a] += 1
        if pick['t'] == T_FD or (pick['t'] == T_WO and pick['mode'] == 0): y_done[a].append(fin)
        lists.setdefault(wg, []).append(pick)
        if pick['t'] == T_WO and pick['mode'] == 0 and pick['hb'] == 0 and fins.get((a, pick['b'])):
            f = fins[a, pick['b']].pop(); lists[wg].append(f); fin = max(fin, max(y_done[a][:4])) + 1.0 + dur(f, x)
        if pick['t'] == T_WO: last[a] = max(last.get(a, 0), fin)
        end = max(end, fin)
        heapq.heappush(heap, (fin, wg))
    assert not any(fins.values()) and not shared and not any(pools.values())
    if verbose:
        print('sim end', round(end, 1), 'kv', [round(max(kv_done[a])) for a in range(16)], 'fu', [round(max(fu_done[a])) for a in range(0, 16, 2)], 'fd', [round(max(y_done[a][:4])) for a in range(16)], 'out', [round(last[a]) for a in range(16)])
    return lists
```
